```python
import torch

def _softmax(x, axis=-1):
    return torch.softmax(x, dim=axis)
def _gelu(x):
    return torch.nn.functional.gelu(x, approximate="tanh")
def _silu(x):
    return torch.nn.functional.silu(x)
def _sigmoid(x):
    return torch.sigmoid(x)
def _layernorm(x, axis=-1, eps=1e-5):
    m = x.mean(dim=axis, keepdim=True)
    v = x.var(dim=axis, keepdim=True, unbiased=False)
    return (x - m) / torch.sqrt(v + eps)
def _scatter_add(tgt, idx, src, axis=0):
    return tgt.clone().index_add_(axis, idx, src)
def _segment_sum(src, seg, n):
    out = torch.zeros((n,) + src.shape[1:], dtype=src.dtype)
    return out.index_add_(0, seg, src)
def _pad(x, pw):
    flat = tuple(v for pair in reversed(pw) for v in pair)
    return torch.nn.functional.pad(x, flat)

kernel_name = 'gated_mix__softmax_full_mha__geglu_ffn__prompt'

def setup_inputs():

    _w = (lambda a: (lambda t: t.to(torch.bfloat16) if t.is_floating_point() else t)(torch.as_tensor(a)))
    def _A_setup():
        B, S, D = 1, 2048, 576
        return {
            "x": _w((lambda *s: torch.randn(*s, dtype=torch.bfloat16) * 0.05)(B, S, D)),
            "wqkv": _w((lambda *s: torch.randn(*s, dtype=torch.bfloat16) * 0.8)(D, 3 * D)),
            "wo": _w((lambda *s: torch.randn(*s, dtype=torch.bfloat16) * 0.05)(D, D)),
        }
    _A_in = _A_setup()

    def _B_setup():
        B, S, D, F = 1, 2048, 576, 4608
        return {
            "x": _w((lambda *s: torch.randn(*s, dtype=torch.bfloat16) * 0.05)(B, S, D)),
            "w_gate": _w((lambda *s: torch.randn(*s, dtype=torch.bfloat16) * 0.1)(D, F)),
            "w_up": _w((lambda *s: torch.randn(*s, dtype=torch.bfloat16) * 0.1)(D, F)),
            "w_down": _w((lambda *s: torch.randn(*s, dtype=torch.bfloat16) * 0.1)(F, D)),
        }
    _B_in = _B_setup()

    return {
        "A_x": _A_in["x"],
        "A_wqkv": _A_in["wqkv"],
        "A_wo": _A_in["wo"],
        "B_x": _B_in["x"],
        "B_w_gate": _B_in["w_gate"],
        "B_w_up": _B_in["w_up"],
        "B_w_down": _B_in["w_down"],
        "gate_w": _w((lambda *s: torch.randn(*s, dtype=torch.bfloat16) * 0.05)(576) * 16.0),
    }

def reference(A_x, A_wqkv, A_wo, B_x, B_w_gate, B_w_up, B_w_down, gate_w):
    def _A_ref(x, wqkv, wo):
        B, S, D = x.shape
        H = 32; Dh = D // H
        qkv = (lambda x, *d: x.permute(*d))((x @ wqkv).reshape(B, S, 3, H, Dh), 2, 0, 3, 1, 4)
        q, k, v = qkv[0], qkv[1], qkv[2]
        scale = Dh ** -0.5
        scores = torch.einsum("bhqd,bhkd->bhqk", q, k) * scale
        p = _softmax(scores, axis=-1)
        o = torch.einsum("bhqk,bhkd->bhqd", p, v)
        return (lambda x, *d: x.permute(*d))(o, 0, 2, 1, 3).reshape(B, S, D) @ wo

    def _B_ref(x, w_gate, w_up, w_down):
        return (_gelu(x @ w_gate) * (x @ w_up)) @ w_down

    x = A_x
    g = _sigmoid((x * gate_w).sum(-1, keepdims=True))
    a = _A_ref(x, A_wqkv, A_wo)
    b = _B_ref(x, B_w_gate, B_w_up, B_w_down)
    return g * a + (1 - g) * b
```

```python
import re

_REG = re.compile(r'\b([vsa])(\d+)\b|\b([vsa])\[(\d+):(\d+)\]')

def regs_of(op):
    out = []
    for m in _REG.finditer(op):
        if m.group(1):
            out.append((m.group(1), int(m.group(2))))
        else:
            for i in range(int(m.group(4)), int(m.group(5)) + 1):
                out.append((m.group(3), i))
    if re.search(r'\bvcc\b', op): out.append(('s', 'vcc'))
    if re.search(r'\bm0\b', op): out.append(('s', 'm0'))
    if re.search(r'\bexec\b', op): out.append(('s', 'exec'))
    return out

TRANS = ('v_exp_f32', 'v_rcp_f32', 'v_log_f32', 'v_rsq_f32', 'v_sqrt_f32', 'v_sin_f32', 'v_cos_f32')

def split_ops(s):
    ops, depth, cur = [], 0, ''
    for ch in s:
        if ch == '[': depth += 1
        if ch == ']': depth -= 1
        if ch == ',' and depth == 0:
            ops.append(cur.strip()); cur = ''
        else:
            cur += ch
    if cur.strip(): ops.append(cur.strip())
    return ops

class Ins:
    __slots__ = ('text', 'op', 'kind', 'wr', 'rd', 'srcc', 'passes', 'states', 'stdata', 'sdwa', 'ab')
    def __init__(self, text):
        self.text = text
        t = text.split(';')[0].strip()
        parts = t.split(None, 1)
        op = parts[0]
        self.op = op
        ops = split_ops(parts[1]) if len(parts) > 1 else []
        self.wr, self.rd, self.srcc, self.stdata, self.ab = set(), set(), set(), set(), set()
        self.passes = 0
        self.states = 1
        self.sdwa = ('dst_sel' in t) or ('op_sel' in t and not op.startswith('v_pk') )
        if op == 's_nop':
            self.kind = 'nop'; self.states = int(ops[0]) + 1
        elif op.startswith('v_mfma'):
            self.kind = 'mfma'
            self.passes = 8 if '32x32' in op else 4
            self.wr = set(regs_of(ops[0]))
            self.ab = set(regs_of(ops[1])) | set(regs_of(ops[2]))
            self.srcc = set(regs_of(ops[3].split()[0]))
            self.rd = self.ab | self.srcc
        elif op.startswith('v_'):
            self.kind = 'trans' if op.replace('_e32', '').replace('_e64', '') in TRANS else 'valu'
            if op.startswith('v_cmp'):
                self.wr = set(regs_of(ops[0]))
                if op.startswith('v_cmpx'): self.wr.add(('s', 'exec'))
                for o in ops[1:]: self.rd |= set(regs_of(o))
            elif op.startswith('v_permlane') and 'swap' in op:
                self.wr = set(regs_of(ops[0])) | set(regs_of(ops[1]))
                self.rd = set(self.wr)
            else:
                self.wr = set(regs_of(ops[0]))
                rest = ops[1:]
                if op.startswith(('v_add_co', 'v_addc_co', 'v_sub_co', 'v_subb_co', 'v_mad_u64', 'v_div_scale')):
                    self.wr |= set(regs_of(ops[1])); rest = ops[2:]
                for o in rest: self.rd |= set(regs_of(o))
                if op.startswith(('v_fmac', 'v_dot2c', 'v_mac')) or 'UNUSED_PRESERVE' in t:
                    self.rd |= set(regs_of(ops[0]))
        elif op.startswith('ds_'):
            self.kind = 'ds'
            if op.startswith(('ds_read', 'ds_bpermute', 'ds_permute', 'ds_swizzle')) or '_rtn' in op:
                self.wr = set(regs_of(ops[0]))
                for o in ops[1:]: self.rd |= set(regs_of(o))
            else:
                for o in ops: self.rd |= set(regs_of(o))
        elif op.startswith(('buffer_', 'global_', 'flat_')):
            self.kind = 'vmem'
            lds = bool(re.search(r'\blds\b', t)) or '_lds_' in op
            if 'load' in op and not lds:
                self.wr = set(regs_of(ops[0]))
                for o in ops[1:]: self.rd |= set(regs_of(o))
            else:
                for o in ops: self.rd |= set(regs_of(o))
                if lds: self.rd.add(('s', 'm0'))
                if 'store' in op and ('x4' in op or 'x3' in op):
                    d = ops[0] if op.startswith('buffer_') else ops[1]
                    self.stdata = set(regs_of(d))
                if 'atomic' in op and 'sc0' in t:
                    self.wr = set(regs_of(ops[0]))
        elif op.startswith('s_'):
            self.kind = 'salu'
            if op.startswith(('s_cmp', 's_cbranch', 's_branch', 's_waitcnt', 's_barrier', 's_endpgm', 's_setprio', 's_sleep', 's_bitcmp')):
                for o in ops: self.rd |= set(regs_of(o))
            else:
                if ops: self.wr = set(regs_of(ops[0]))
                for o in ops[1:]: self.rd |= set(regs_of(o))
                if 'saveexec' in op: self.wr.add(('s', 'exec'))
        else:
            raise ValueError('unknown op ' + text)

def need_states(p, c):
    n = 0
    pv = p.kind in ('valu', 'trans')
    cv = c.kind in ('valu', 'trans')
    vw = {r for r in p.wr if r[0] in 'va'}
    sw = {r for r in p.wr if r[0] == 's'}
    if pv:
        if c.kind == 'mfma' and vw & c.rd: n = max(n, 2)
        if c.kind == 'mfma' and ('s', 'exec') in p.wr: n = max(n, 4)
        if c.kind == 'vmem' and sw & c.rd: n = max(n, 5)
        if cv and sw & c.rd:
            n = max(n, 4 if c.op.startswith(('v_readlane', 'v_writelane')) else 2)
        if c.op.startswith(('v_readfirstlane', 'v_readlane')) and vw & c.rd: n = max(n, 1)
        if c.op.startswith('v_permlane') and vw & c.rd: n = max(n, 2)
        if cv and 'dpp' in c.text.lower() and vw & c.rd: n = max(n, 2)
        if cv and ('row_' in c.text or 'quad_perm' in c.text) and vw & c.rd: n = max(n, 2)
        if p.kind == 'trans' and c.kind == 'valu' and vw & c.rd: n = max(n, 1)
        if p.kind == 'trans' and c.kind in ('vmem', 'ds') and vw & c.rd: n = max(n, 1)
        if p.sdwa and cv and vw & (c.rd | c.wr): n = max(n, 1)
        if ('s', 'exec') in p.wr and c.op.startswith(('v_readlane', 'v_readfirstlane', 'v_writelane', 'v_permlane')): n = max(n, 4)
        if c.kind == 'salu' and sw & c.rd: n = max(n, 1)
    if p.kind == 'salu':
        if ('s', 'm0') in p.wr and ('s', 'm0') in c.rd and c.kind in ('vmem', 'ds'): n = max(n, 1)
        if ('s', 'exec') in p.wr and c.kind == 'mfma': n = max(n, 1)
    if p.kind == 'vmem' and p.stdata and (p.stdata & c.wr): n = max(n, 2)
    if p.kind == 'mfma':
        big = 12 if p.passes == 8 else 8
        if c.kind == 'mfma':
            if p.wr & c.ab: n = max(n, big)
            if p.wr & c.srcc:
                if not (p.wr == c.srcc and p.passes == c.passes): n = max(n, big - 2)
            elif p.wr & c.wr: n = max(n, big)
        elif c.kind in ('valu', 'trans', 'vmem', 'ds'):
            if p.wr & (c.rd | c.wr): n = max(n, big)
        if cv and p.srcc & c.wr: n = max(n, 7 if p.passes == 8 else 3)
        if c.kind in ('vmem', 'ds') and p.srcc & c.wr: n = max(n, 7 if p.passes == 8 else 3)
    return n

class Asm:
    def __init__(self):
        self.lines = []
        self.hist = []
        self.vmr = {'A': 0, 'B': 0}
        self.role = None
        self.lg = 0
        self.nops = 0
        self.count = 0
    def raw(self, s):
        self.lines.append(s)
    def comment(self, s):
        self.lines.append('  ; ' + s)
    def label(self, name, flush=True):
        self.lines.append(name + ':')
    def fence(self):
        need = 0
        dist = 0
        for p in reversed(self.hist[-400:]):
            if dist >= 16: break
            if p.kind == 'mfma': w = 12 if p.passes == 8 else 8
            elif p.kind in ('valu', 'trans'): w = 5 if any(r[0] == 's' for r in p.wr) else 2
            elif p.kind == 'vmem' and p.stdata: w = 2
            elif p.kind == 'salu' and ('s', 'm0') in p.wr: w = 1
            else: w = 0
            need = max(need, w - dist)
            dist += p.states
        if need > 0: self._nop(need)
        self.hist = []
    def _nop(self, n):
        while n > 0:
            k = min(n, 16)
            i = Ins(f's_nop {k-1}')
            self.lines.append(f'  s_nop {k-1}')
            self.hist.append(i)
            self.nops += 1
            n -= k
    def __call__(self, text):
        for t in text.strip().split('\n'):
            t = t.strip()
            if not t or t.startswith(';'):
                continue
            self.emit(t)
    def emit(self, text):
        c = Ins(text)
        need = 0
        dist = 0
        for p in reversed(self.hist[-400:]):
            need = max(need, need_states(p, c) - dist)
            dist += p.states
            if dist >= 16: break
        if need > 0: self._nop(need)
        self.lines.append('  ' + text)
        self.hist.append(c)
        self.count += 1
        if c.kind == 'vmem':
            for r in ('A', 'B'):
                if self.role in (None, r): self.vmr[r] += 1
            return dict(self.vmr)
        if c.kind == 'ds':
            self.lg += 1
            return self.lg
        return None
    def skip_begin(self):
        return len(self.hist)
    def skip_end(self, mark):
        for i in self.hist[mark:]:
            i.states = 0
    def wait_vm(self, idx, extra=0):
        roles = ('A', 'B') if self.role is None else (self.role,)
        n = min(self.vmr[r] - idx[r] for r in roles) + extra
        self.emit(f's_waitcnt vmcnt({max(0,min(n, 63))})')
    def wait_lg(self, idx):
        n = self.lg - idx
        self.emit(f's_waitcnt lgkmcnt({max(0,min(n, 15))})')
    def text(self):
        return '\n'.join(self.lines) + '\n'

def vr(a, n=1):
    return f'v{a}' if n == 1 else f'v[{a}:{a+n-1}]'
def sr(a, n=1):
    return f's{a}' if n == 1 else f's[{a}:{a+n-1}]'
```

```python
import struct
from asmdsl import *
from layout import *

def f2u(x): return struct.unpack('<I', struct.pack('<f', x))[0]
OOB = 0x80000000

def load_kernargs(a):
    a("""
    s_load_dwordx16 s[4:19], s[0:1], 0
    s_load_dwordx4 s[20:23], s[0:1], 64
    s_load_dwordx2 s[24:25], s[0:1], 80
    """)
P_X, P_QKV, P_WO, P_WG, P_WU, P_WD, P_GW, P_OUT, P_DBG, P_WS = 4, 6, 8, 12, 14, 16, 18, 20, 22, 24

def make_srd(a, d, p, nbytes):
    a(f"s_mov_b32 s{d}, s{p}")
    a(f"s_and_b32 s{d+1}, s{p+1}, 0xffff")
    a(f"s_mov_b32 s{d+2}, {nbytes}")
    a(f"s_mov_b32 s{d+3}, 0x00020000")

def kdesc(name, vgpr=256):
    return f"""
.amdhsa_kernel {name}
  .amdhsa_next_free_vgpr {vgpr}
  .amdhsa_next_free_sgpr 102
  .amdhsa_accum_offset {(vgpr+3)//4*4}
  .amdhsa_group_segment_fixed_size 0
  .amdhsa_kernarg_size 88
  .amdhsa_user_sgpr_count 2
  .amdhsa_user_sgpr_kernarg_segment_ptr 1
  .amdhsa_system_sgpr_workgroup_id_x 1
.end_amdhsa_kernel
"""

class Stamper:
    def __init__(self, a, on, vreg, s_w, r_ws, base):
        self.a, self.on, self.v, self.s_w, self.r_ws, self.base = a, on, vreg, s_w, r_ws, base
        self.labels = []
    def __call__(self, label):
        if not self.on: return
        a = self.a
        i = len(self.labels); self.labels.append(label)
        a("s_memtime s[100:101]")
        a("s_waitcnt lgkmcnt(0)")
        a(f"v_writelane_b32 v{self.v}, s100, {i}")
    def out(self, tmp):
        if not self.on: return
        a = self.a
        a("s_memrealtime s[100:101]")
        a("s_waitcnt lgkmcnt(0)")
        a(f"v_writelane_b32 v{self.v}, s100, 63")
        a(f"s_lshl_b32 s100, s2, 3")
        a(f"s_add_u32 s100, s100, s{self.s_w}")
        a(f"s_lshl_b32 s100, s100, 8")
        a(f"s_add_u32 s100, s100, {self.base}")
        a(f"s_add_u32 s{self.r_ws+2}, s{self.r_ws+2}, {4<<20}")
        a(f"v_lshlrev_b32 v{tmp}, 2, v0")
        a(f"buffer_store_dword v{self.v}, v{tmp}, {sr(self.r_ws,4)}, s100 offen")

def gen_k1(name="k1_kernel", opts=None):
    opts = opts or {}
    a = Asm()
    XF = lambda u, ks: 112 + (ks*2+u)*4
    ACC = lambda t, u: 48 + (t*2+u)*4
    WF = lambda i: 24 + (i % 6)*4
    V_TRB, V_DMA, V_DMA2, V_HST, V_XD0, V_XD1, V_XR = 1, 2, 3, 4, 5, 6, 7
    V_TR = [20, 21]; V_TS = 22; V_STAMP = 23
    T = 8
    G2A = 96
    R_X, R_G, R_U, R_Q, R_WS, R_SEL, R_GW = 28, 32, 36, 40, 44, 48, 52
    S_W, S_XCD, S_B, S_MB, S_H, S_L = 56, 57, 58, 59, 60, 61
    S_TOK, S_T0, S_T1, S_T2, S_T3 = 62, 63, 64, 65, 66
    S_GOFF, S_HB = 67, 68
    S_A2, S_B2, S_C2, S_D2, S_E2, S_F2, S_R2 = 69, 70, 71, 72, 73, 74, 75
    S_K, S_C2G = 76, 77
    S_XB, S_TT = 78, 79
    S_REC, S_QF, S_QX, S_WB = 82, 83, 84, 85
    S_PK, S_PKA, S_PKB, S_PKC, S_PKD, S_PKNB, S_PKON = 86, 87, 88, 89, 90, 91, 92
    SLOT = [0, 49152, 98304]
    NST = 15
    def stage_info(s):
        if s < 9: return 0, 2*s, 2
        if s < 12: return 1, 6*(s-9), 6
        return 2, 6*(s-12), 6
    stamp = Stamper(a, opts.get('stamp', False), V_STAMP, S_W, R_WS, WS_USED)
    a.stamps = stamp.labels

    a.raw(f".globl {name}\n.p2align 8\n.type {name},@function\n{name}:")
    a("s_cmp_ge_u32 s2, 256")
    a(f"s_cbranch_scc1 {name}_end")
    stamp('start')
    load_kernargs(a)
    a(f"""
    v_lshrrev_b32 v1, 6, v0
    v_and_b32 v0, 63, v0
    s_and_b32 s{S_XCD}, s2, 7
    v_readfirstlane_b32 s{S_W}, v1
    s_lshr_b32 s{S_T0}, s2, 3
    s_and_b32 s{S_B}, s{S_T0}, 3
    s_lshr_b32 s{S_MB}, s{S_T0}, 2
    s_lshl_b32 s{S_H}, s{S_XCD}, 2
    s_add_u32 s{S_H}, s{S_H}, s{S_B}
    s_mul_i32 s{S_L}, s{S_XCD}, 9
    s_lshl_b32 s{S_T1}, s{S_B}, 1
    s_add_u32 s{S_L}, s{S_L}, s{S_T1}
    s_lshl_b32 s{S_GOFF}, s{S_L}, 7
    s_lshl_b32 s{S_TT}, s{S_MB}, 3
    s_add_u32 s{S_TT}, s{S_TT}, s{S_W}
    s_mul_i32 s{S_TOK}, s{S_TT}, {32*1152}
    s_lshl_b32 s{S_WB}, s{S_W}, 10
    s_lshl_b32 s{S_XB}, s{S_W}, 12
    s_add_u32 s{S_XB}, s{S_XB}, 16384
    """)
    a(f"""
    v_lshrrev_b32 v8, 3, v0
    v_lshrrev_b32 v9, 4, v0
    v_xor_b32 v9, v9, v0
    v_and_b32 v9, 7, v9
    v_mul_u32_u24 v8, 1152, v8
    v_lshl_add_u32 v{V_XD0}, v9, 4, v8
    v_xor_b32 v9, 4, v9
    v_add_u32 v8, {8*1152}, v8
    v_lshl_add_u32 v{V_XD1}, v9, 4, v8
    """)
    a(f"""
    s_and_b32 s{S_T0}, s{S_W}, 1
    s_lshl_b32 s{S_T0}, s{S_T0}, 1
    v_bfe_u32 v13, v0, 4, 1
    v_or_b32 v13, s{S_T0}, v13
    v_bfe_u32 v14, v0, 1, 2
    v_xor_b32 v13, v13, v14
    v_lshlrev_b32 v13, 5, v13
    v_and_b32 v14, 1, v0
    v_lshl_add_u32 v13, v14, 4, v13
    v_lshrrev_b32 v14, 3, v0
    s_lshl_b32 s{S_T0}, s{S_W}, 3
    v_add_u32 v14, s{S_T0}, v14
    v_mul_u32_u24 v14, 9216, v14
    v_add_u32 v{V_DMA}, v13, v14
    """)
    a("s_waitcnt lgkmcnt(0)")
    stamp('karg')
    make_srd(a, R_X, P_X, 2048*1152)
    make_srd(a, R_G, P_WG, 576*9216)
    make_srd(a, R_U, P_WU, 576*9216)

    dma_id = {}
    def note(stage, idd):
        d = dma_id.setdefault(stage, {})
        for r in ('A', 'B'):
            if a.role in (None, r): d[r] = idd[r]
    def dma(stage):
        if stage == NST: return pack_dma()
        grp, k0, nk = stage_info(stage)
        slot = SLOT[stage % 3]
        if grp == 0:
            for i in range(2):
                srd = R_G if i == 0 else R_U
                a(f"s_add_u32 s{S_T0}, s{S_GOFF}, {k0*32*9216}")
                a(f"s_add_u32 m0, s{S_WB}, {slot + i*8192}")
                a(f"buffer_load_dwordx4 v{V_DMA}, {sr(srd,4)}, s{S_T0} offen lds")
            for i in range(4):
                a(f"s_add_u32 s{S_T0}, s{S_TOK}, {k0*64 + (i>>1)*16*1152}")
                a(f"s_add_u32 m0, s{S_XB}, {slot + i*1024}")
                note(stage, a.emit(f"buffer_load_dwordx4 v{V_XD1 if i & 1 else V_XD0}, {sr(R_X,4)}, s{S_T0} offen lds"))
        elif grp == 1:
            for i in range(6):
                srd = R_G if i < 3 else R_U
                a(f"s_add_u32 s{S_T0}, s{S_GOFF}, {(k0*32 + (i%3)*64)*9216 + 128}")
                a(f"s_add_u32 m0, s{S_WB}, {slot + (i//3)*24576 + (i%3)*8192}")
                note(stage, a.emit(f"buffer_load_dwordx4 v{V_DMA}, {sr(srd,4)}, s{S_T0} offen lds"))
        else:
            for i in range(6):
                if i == 0:
                    a(f"s_mov_b32 s{S_T0}, s{S_A2}")
                    a(f"s_add_u32 s{S_T2}, s{S_D2}, {slot}")
                elif i == 3:
                    a(f"s_add_u32 s{S_T0}, s{S_A2}, s{S_C2}")
                    a(f"s_add_u32 s{S_T2}, s{S_D2}, {slot}")
                    a(f"s_add_u32 s{S_T2}, s{S_T2}, s{S_F2}")
                else:
                    a(f"s_add_u32 s{S_T0}, s{S_T0}, s{S_B2}")
                    a(f"s_add_u32 s{S_T2}, s{S_T2}, s{S_E2}")
                a(f"s_mov_b32 m0, s{S_T2}")
                note(stage, a.emit(f"buffer_load_dwordx4 v{V_DMA2}, {sr(R_SEL,4)}, s{S_T0} offen lds"))
            a(f"s_add_u32 s{S_A2}, s{S_A2}, s{S_R2}")

    lab = [0]
    class only:
        def __init__(self, role): self.role = role
        def __enter__(self):
            lab[0] += 1; self.l = f"{name}_r{lab[0]}"
            a(f"s_cmp_ge_u32 s{S_W}, 4")
            a(f"s_cbranch_scc{'1' if self.role=='A' else '0'} {self.l}")
            self.m = a.skip_begin(); a.role = self.role
        def __exit__(self, *e):
            a.skip_end(self.m); a.role = None
            a.label(self.l)

    dma(0)
    make_srd(a, R_GW, P_GW, 1152)
    a(f"""
    v_lshlrev_b32 v10, 4, v0
    v_cmp_gt_u32 vcc, 8, v0
    v_add_u32 v11, 1024, v10
    v_mov_b32 v12, {OOB}
    v_cndmask_b32 v11, v12, v11, vcc
    s_lshl_b32 s{S_T0}, s{S_MB}, 8
    s_lshl_b32 s{S_T1}, s{S_H}, 3
    s_add_u32 s{S_T0}, s{S_T0}, s{S_T1}
    s_add_u32 s{S_T3}, s{S_T0}, s{S_W}
    s_mul_i32 s{S_T1}, s{S_T3}, 1152
    """)
    make_srd(a, R_Q, P_QKV, 576*3456)
    make_srd(a, R_WS, P_WS, WS_USED)
    a(f"""
    s_lshr_b32 s{S_HB}, s{S_TT}, 2
    s_mul_i32 s{S_HB}, s{S_HB}, {288*4096}
    s_and_b32 s{S_T0}, s{S_TT}, 3
    s_lshl_b32 s{S_T0}, s{S_T0}, 10
    s_add_u32 s{S_HB}, s{S_HB}, s{S_T0}
    s_lshl_b32 s{S_T0}, s{S_H}, 6
    s_add_u32 s{S_T0}, s{S_T0}, s{S_TT}
    s_mul_i32 s{S_REC}, s{S_T0}, {KVREC}
    s_add_u32 s{S_REC}, s{S_REC}, {KV}
    s_lshl_b32 s{S_QF}, s{S_T0}, 10
    s_add_u32 s{S_QF}, s{S_QF}, {QF}
    s_lshl_b32 s{S_QX}, s{S_T0}, 7
    s_add_u32 s{S_QX}, s{S_QX}, {QX}
    s_mov_b32 s{S_K}, {f2u(GELU_K)}
    s_mov_b32 s{S_C2G}, {f2u(GELU_C2)}
    """)
    a(f"""
    v_lshrrev_b32 v12, 4, v0
    v_bfe_u32 v13, v0, 2, 2
    v_lshl_add_u32 v14, v12, 3, v13
    v_lshlrev_b32 v14, 7, v14
    v_bfe_u32 v15, v0, 3, 2
    v_lshl_add_u32 v14, v15, 5, v14
    v_and_b32 v15, 3, v0
    v_lshl_add_u32 v{V_TRB}, v15, 3, v14
    """)
    a(f"""
    v_lshrrev_b32 v14, 5, v0
    v_lshlrev_b32 v14, 12, v14
    v_bfe_u32 v15, v0, 4, 1
    v_lshl_add_u32 v14, v15, 9, v14
    v_and_b32 v15, 15, v0
    v_lshl_add_u32 v{V_HST}, v15, 4, v14
    """)
    a(f"""
    v_bfe_u32 v14, v0, 1, 3
    v_xor_b32 v14, v14, v12
    v_lshlrev_b32 v14, 4, v14
    v_lshl_add_u32 v14, v15, 7, v14
    v_add_u32 v{V_XR}, s{S_XB}, v14
    """)
    dma(1)
    GL = 240
    a(f"buffer_load_dwordx4 {vr(GL,4)}, v10, {sr(R_X,4)}, s{S_T1} offen")
    a(f"buffer_load_dwordx4 {vr(GL+4,4)}, v11, {sr(R_X,4)}, s{S_T1} offen")
    a(f"buffer_load_dwordx4 {vr(GL+8,4)}, v10, {sr(R_GW,4)}, 0 offen")
    g_id = a.emit(f"buffer_load_dwordx4 {vr(GL+12,4)}, v11, {sr(R_GW,4)}, 0 offen")
    with only('B'): dma(2)
    a(f"""
    v_bfe_u32 v14, v0, 1, 1
    v_bfe_u32 v15, v0, 5, 1
    v_xor_b32 v14, v14, v15
    v_and_b32 v15, 1, v0
    v_lshl_add_u32 v14, v14, 1, v15
    v_lshlrev_b32 v15, 4, v14
    v_min_u32 v15, 20, v15
    v_lshrrev_b32 v16, 2, v0
    v_mul_u32_u24 v16, 3456, v16
    v_add_u32 v15, v15, v16
    v_cmp_eq_u32 vcc, 3, v14
    v_mov_b32 v16, {OOB}
    v_cndmask_b32 v15, v15, v16, vcc
    v_lshrrev_b32 v16, 1, v0
    v_and_b32 v17, 0x13, v16
    v_bfe_u32 v18, v16, 2, 1
    v_lshl_or_b32 v17, v18, 3, v17
    v_bfe_u32 v18, v16, 3, 1
    v_lshl_or_b32 v17, v18, 2, v17
    v_mul_u32_u24 v17, 9216, v17
    v_and_b32 v18, 1, v0
    v_lshl_add_u32 v17, v18, 4, v17
    s_cmp_lt_u32 s{S_W}, 6
    s_cselect_b64 vcc, -1, 0
    v_cndmask_b32 v{V_DMA2}, v17, v15, vcc
    """)
    a(f"""
    s_mul_i32 s{S_T0}, s{S_W}, {32*3456}
    s_mul_i32 s{S_T2}, s{S_H}, 36
    s_add_u32 s{S_T0}, s{S_T0}, s{S_T2}
    s_mul_i32 s{S_T2}, s{S_XCD}, {9*128}
    s_add_u32 s{S_T2}, s{S_T2}, {8*128}
    s_lshl_b32 s{S_A2}, s{S_B}, 5
    s_add_u32 s{S_T2}, s{S_T2}, s{S_A2}
    s_lshl_b32 s{S_D2}, s{S_W}, 11
    s_add_u32 s{S_D2}, s{S_D2}, 12288
    s_cmp_eq_u32 s{S_W}, 7
    s_cselect_b32 s{S_E2}, 6144, 0
    s_cselect_b32 s{R_SEL}, s{R_U}, s{R_G}
    s_cselect_b32 s{R_SEL+1}, s{R_U+1}, s{R_G+1}
    s_cmp_lt_u32 s{S_W}, 6
    s_cselect_b32 s{S_A2}, s{S_T0}, s{S_T2}
    s_cselect_b32 s{S_D2}, s{S_D2}, s{S_E2}
    s_cselect_b32 s{R_SEL}, s{R_Q}, s{R_SEL}
    s_cselect_b32 s{R_SEL+1}, s{R_Q+1}, s{R_SEL+1}
    s_mov_b32 s{S_T0}, {576*9216}
    s_cselect_b32 s{R_SEL+2}, {576*3456}, s{S_T0}
    s_mov_b32 s{R_SEL+3}, 0x00020000
    s_mov_b32 s{S_T0}, {32*9216}
    s_cselect_b32 s{S_B2}, 1152, s{S_T0}
    s_mov_b32 s{S_T0}, {96*9216}
    s_cselect_b32 s{S_C2}, {16*3456}, s{S_T0}
    s_movk_i32 s{S_T0}, 1024
    s_cselect_b32 s{S_E2}, 12288, s{S_T0}
    s_movk_i32 s{S_T0}, 3072
    s_cselect_b32 s{S_F2}, 1024, s{S_T0}
    s_mov_b32 s{S_T0}, {192*9216}
    s_cselect_b32 s{S_R2}, {192*3456}, s{S_T0}
    """)
    GT = 240
    def g_compute():
        a.wait_vm(g_id)
        a("v_mov_b32 v12, 0")
        for i in range(8):
            a(f"v_dot2_f32_bf16 v12, v{GL+i}, v{GL+8+i}, v12")
        a("s_nop 3")
        a("""
        v_add_f32_dpp v12, v12, v12 quad_perm:[1,0,3,2] row_mask:0xf bank_mask:0xf
        v_add_f32_dpp v12, v12, v12 quad_perm:[2,3,0,1] row_mask:0xf bank_mask:0xf
        v_add_f32_dpp v12, v12, v12 row_half_mirror row_mask:0xf bank_mask:0xf
        v_add_f32_dpp v12, v12, v12 row_mirror row_mask:0xf bank_mask:0xf
        """)
        a(f"""
        v_readlane_b32 s{S_T0}, v12, 16
        v_readlane_b32 s{S_T2}, v12, 32
        v_readlane_b32 s{S_T1}, v12, 48
        v_add_f32 v12, s{S_T0}, v12
        v_add_f32 v12, s{S_T2}, v12
        v_add_f32 v12, s{S_T1}, v12
        v_mul_f32 v12, {f2u(-1.4426950408889634)}, v12
        v_exp_f32 v12, v12
        v_cmp_eq_u32 vcc, 0, v0
        v_add_f32 v12, 1.0, v12
        v_rcp_f32 v12, v12
        v_mov_b32 v13, {OOB}
        v_cndmask_b32 v13, v13, v0, vcc
        s_lshl_b32 s{S_T0}, s{S_T3}, 2
        s_add_u32 s{S_T0}, s{S_T0}, {GB}
        buffer_store_dword v12, v13, {sr(R_WS,4)}, s{S_T0} offen
        """)

    def barrier_for(role, stage):
        with only(role):
            a.wait_vm(dma_id[stage])
            a("s_waitcnt lgkmcnt(0)")
            a("s_barrier")

    def tiles_of(grp):
        if grp < 2:
            up = 8192 if grp == 0 else 24576
            out = []
            for p in range(4):
                out.append((p, ('x', p), 0, 4096, 512, False))
                out.append((p+4, ('x', p), up, 4096, 512, False))
            return out
        return [(0, ('r', G2A+0), 0, 1024, 256, False),
                (1, ('r', G2A+0), 6144, 1024, 256, False),
                (2, ('r', G2A+1), 12288, 2048, 256, False),
                (3, ('r', G2A+1), 12288+16, 2048, 256, False),
                (4, ('r', G2A+2), 36864, 2048, 256, True),
                (5, ('r', G2A+3), 12288, 2048, 256, True)]

    def g2_addr_setup(slot, first):
        if first:
            a(f"""
            v_lshrrev_b32 v8, 4, v0
            v_bfe_u32 v9, v0, 2, 2
            v_and_b32 v10, 3, v0
            v_bfe_u32 v11, v0, 4, 1
            v_lshrrev_b32 v12, 5, v0
            v_lshl_add_u32 v12, v12, 4, v9
            v_lshl_add_u32 v12, v11, 2, v12
            v_lshlrev_b32 v12, 5, v12
            v_lshl_add_u32 v{G2A+4}, v10, 3, v12
            v_lshl_add_u32 v12, v8, 3, v9
            v_lshlrev_b32 v12, 6, v12
            v_lshl_add_u32 v13, v11, 5, v12
            v_lshl_add_u32 v{G2A+6}, v10, 3, v13
            v_and_b32 v14, 1, v10
            v_lshl_add_u32 v13, v14, 3, v13
            v_lshrrev_b32 v14, 1, v10
            v_mul_u32_u24 v14, 12288, v14
            v_add_u32 v{G2A+5}, v13, v14
            v_xor_b32 v11, 1, v11
            v_lshl_add_u32 v12, v11, 5, v12
            v_add_u32 v12, 8, v12
            v_add_u32 v14, 2, v10
            v_cmp_lt_u32 vcc, 2, v14
            v_subrev_u32 v15, 3, v14
            v_cndmask_b32 v14, v14, v15, vcc
            v_mul_u32_u24 v14, 12288, v14
            v_cmp_eq_u32 vcc, 3, v10
            v_mov_b32 v15, 8
            v_cndmask_b32 v14, v14, v15, vcc
            v_add_u32 v{G2A+7}, v12, v14
            """)
        for i in range(4):
            a(f"v_add_u32 v{G2A+i}, {slot}, v{G2A+4+i}")

    def pre_stage(stage):
        grp, k0, nk = stage_info(stage)
        slot = SLOT[stage % 3]
        if grp < 2:
            a(f"v_add_u32 v{V_TS}, {slot}, v{V_TRB}")
            a(f"v_add_u32 v{V_TR[0]}, {slot}, v{V_TRB}")
        if grp == 0:
            a(f"v_add_u32 v{T+10}, {slot}, v{V_XR}")
            a(f"v_xor_b32 v{T+11}, 64, v{T+10}")
        if grp == 2:
            g2_addr_setup(slot, stage == 12)

    def mblock(stage):
        grp, k0, nk = stage_info(stage)
        tl = tiles_of(grp)
        frags, mf = [], []
        ch = 2 if nk == 2 else 3
        for ti in range(len(tl)):
            for h in range(nk // ch):
                base = len(frags)
                for f in range(ch): frags.append((ti, h*ch + f))
                subs = (0, 1) if h == 0 else (1, 0)
                for u in subs:
                    for f in range(ch): mf.append((base + f, u))
        nf = len(frags)
        last_use = {}
        for i, (f, u) in enumerate(mf): last_use[f] = i
        rid = {}
        cur = [('x', 0)]
        rq = [(f, sec) for f in range(nf) for sec in range(2)]
        rp = [0]
        def issue_read():
            f, sec = rq[rp[0]]; rp[0] += 1
            ti, ks = frags[f]
            t, ak, base, kst, sst, sw = tl[ti]
            if ak[0] == 'x':
                reg = V_TR[ak[1] & 1]
                if cur[0] != ak:
                    a(f"v_xor_b32 v{reg}, {ak[1] << 5}, v{V_TS}")
                    cur[0] = ak
            else:
                reg = ak[1]
            rid[f] = a.emit(f"ds_read_b64_tr_b16 {vr(WF(f)+2*sec,2)}, v{reg} offset:{base + ks*kst + sec*sst}")
        def can_read(done):
            if rp[0] >= len(rq): return False
            f, sec = rq[rp[0]]
            return f < 6 or last_use[f-6] < done
        xid = {}
        if grp == 0:
            issue_read(); issue_read()
            for u in range(2):
                for kk in range(2):
                    xid[(u, kk)] = a.emit(f"ds_read_b128 {vr(XF(u,k0+kk),4)}, v{T+10+kk} offset:{u*2048}")
                    if kk == 0 and u == 0: issue_read(); issue_read()
            for _ in range(5): issue_read()
        else:
            for _ in range(9): issue_read()
        waited = 0
        bar_at = len(mf) - opts.get('tailm', 6)
        for i, (f, u) in enumerate(mf):
            ti, ks = frags[f]
            t, ak, base, kst, sst, sw = tl[ti]
            if i == bar_at and stage < NST - 1:
                assert rp[0] == len(rq)
                barrier_for('B', stage + 1)
            need = rid[f]
            if grp == 0 and (u, ks) in xid: need = max(need, xid[(u, ks)])
            if need > waited:
                a.wait_lg(need); waited = need
            acc = vr(ACC(t, u), 4)
            c = "0" if (k0 + ks == 0) else acc
            wv, xv = vr(WF(f), 4), vr(XF(u, k0 + ks), 4)
            A_, B_ = (xv, wv) if sw else (wv, xv)
            a(f"v_mfma_f32_16x16x32_bf16 {acc}, {A_}, {B_}, {c}")
            if can_read(i + 1): issue_read()

    def gelu4(g, up, out2, t):
        for j in range(4): a(f"v_fma_f32 v{t+j}, v{g+j}, v{g+j}, s{S_K}")
        for j in range(4): a(f"v_mul_f32 v{t+4+j}, s{S_C2G}, v{g+j}")
        for j in range(4): a(f"v_mul_f32 v{t+j}, v{t+j}, v{t+4+j}")
        for j in range(4): a(f"v_exp_f32 v{t+j}, v{t+j}")
        for j in range(4): a(f"v_mul_f32 v{t+4+j}, v{g+j}, v{up+j}")
        for j in range(4): a(f"v_add_f32 v{t+j}, 1.0, v{t+j}")
        for j in range(4): a(f"v_rcp_f32 v{t+j}, v{t+j}")
        for j in range(4): a(f"v_mul_f32 v{t+j}, v{t+j}, v{t+4+j}")
        for j in range(2): a(f"v_cvt_pk_bf16_f32 v{out2+j}, v{t+2*j}, v{t+2*j+1}")

    def epilogue(grp):
        if grp < 2:
            k = 0
            for pp in range(2):
                for u in range(2):
                    o = 24 + (k % 2)*4; k += 1
                    gelu4(ACC(2*pp, u), ACC(2*pp+4, u), o, T)
                    gelu4(ACC(2*pp+1, u), ACC(2*pp+5, u), o+2, T)
                    if u == 0:
                        a(f"s_lshl_b32 s{S_T0}, s{S_L}, 14")
                        a(f"s_add_u32 s{S_T0}, s{S_T0}, s{S_HB}")
                        a(f"s_add_u32 s{S_T0}, s{S_T0}, {HF + (grp*4 + 2*pp)*4096}")
                    a(f"buffer_store_dwordx4 {vr(o,4)}, v{V_HST}, {sr(R_WS,4)}, s{S_T0} offen offset:{u*256}")
        else:
            a(f"""
            v_lshrrev_b32 v32, 5, v0
            v_lshlrev_b32 v32, 9, v32
            v_bfe_u32 v33, v0, 4, 1
            v_lshl_add_u32 v32, v33, 3, v32
            v_and_b32 v34, 15, v0
            v_lshl_add_u32 v32, v34, 4, v32
            s_mul_i32 s{S_T0}, s{S_XCD}, 36
            s_add_u32 s{S_T0}, s{S_T0}, 32
            s_add_u32 s{S_T0}, s{S_T0}, s{S_B}
            s_lshl_b32 s{S_T0}, s{S_T0}, 12
            s_add_u32 s{S_T0}, s{S_T0}, s{S_HB}
            """)
            for u in range(2):
                gelu4(ACC(0, u), ACC(1, u), 24 + 2*u, T)
                a(f"buffer_store_dwordx2 {vr(24+2*u,2)}, v32, {sr(R_WS,4)}, s{S_T0} offen offset:{u*256}")
            a(f"""
            v_and_b32 v35, 7, v0
            v_bfe_u32 v36, v0, 3, 1
            v_lshl_add_u32 v35, v36, 4, v35
            v_lshl_add_u32 v35, v33, 5, v35
            v_lshlrev_b32 v35, 4, v35
            v_cmp_gt_u32 vcc, 32, v0
            v_mov_b32 v36, s{S_REC}
            v_mov_b32 v37, s{S_QF}
            v_cndmask_b32 v36, v36, v37, vcc
            v_add_u32 v35, v35, v36
            v_mov_b32 v36, 1.0
            v_mov_b32 v37, {f2u(QSCALE)}
            v_cndmask_b32 v36, v36, v37, vcc
            """)
            for u in range(2):
                o = 40 + 4*u
                for t in range(2):
                    r = ACC(2+t, u)
                    for i in range(4): a(f"v_mul_f32 v{r+i}, v36, v{r+i}")
                    a(f"v_cvt_pk_bf16_f32 v{o+2*t}, v{r}, v{r+1}")
                    a(f"v_cvt_pk_bf16_f32 v{o+2*t+1}, v{r+2}, v{r+3}")
                a(f"buffer_store_dwordx4 {vr(o,4)}, v35, {sr(R_WS,4)}, 0 offen offset:{u*128}")
            a(f"""
            v_lshrrev_b32 v8, 4, v0
            v_mul_u32_u24 v9, 320, v8
            v_lshl_add_u32 v10, v34, 4, v9
            """)
            for u in range(2):
                r = ACC(4, u)
                a(f"v_cvt_pk_bf16_f32 v{12+2*u}, v{r}, v{r+1}")
                a(f"v_cvt_pk_bf16_f32 v{13+2*u}, v{r+2}, v{r+3}")
            a(f"buffer_store_dwordx4 v[12:15], v10, {sr(R_WS,4)}, s{S_REC} offen offset:1024")
            a(f"""
            v_xor_b32 v16, 2, v34
            v_lshl_add_u32 v16, v16, 4, v9
            v_add_u32 v16, {1024+256}, v16
            v_add_u32 v16, s{S_REC}, v16
            v_and_b32 v17, 1, v0
            v_lshlrev_b32 v17, 6, v17
            v_lshl_add_u32 v17, v8, 4, v17
            v_add_u32 v18, s{S_QX}, v17
            v_add_u32 v17, 2304, v17
            v_add_u32 v17, s{S_REC}, v17
            v_lshrrev_b32 v19, 1, v34
            v_mov_b32 v20, {OOB}
            v_cmp_gt_u32 vcc, 2, v19
            v_cndmask_b32 v20, v20, v16, vcc
            v_cmp_eq_u32 vcc, 5, v19
            v_cndmask_b32 v20, v20, v17, vcc
            v_cmp_eq_u32 vcc, 3, v19
            v_cndmask_b32 v20, v20, v18, vcc
            v_mov_b32 v21, 1.0
            v_cndmask_b32 v21, v21, v37, vcc
            """)
            for u in range(2):
                r = ACC(5, u)
                for i in range(4): a(f"v_mul_f32 v{r+i}, v21, v{r+i}")
                a(f"v_cvt_pk_bf16_f32 v{28+2*u}, v{r}, v{r+1}")
                a(f"v_cvt_pk_bf16_f32 v{29+2*u}, v{r+2}, v{r+3}")
            a(f"""
            v_cmp_eq_u32 vcc, 0, v34
            v_mov_b32 v22, 0
            v_mov_b32 v38, 0x3f803f80
            v_cndmask_b32 v22, v22, v38, vcc
            v_cmp_gt_u32 vcc, 2, v34
            """)
            for i in range(4): a(f"v_cndmask_b32 v{28+i}, v{28+i}, v22, vcc")
            a(f"buffer_store_dwordx4 v[28:31], v20, {sr(R_WS,4)}, 0 offen")

    R_PK = R_GW
    def pack_setup():
        a(f"""
        s_lshl_b32 s{S_T0}, s{S_W}, 8
        s_add_u32 s{S_T0}, s{S_T0}, s2
        s_cmp_lt_u32 s{S_T0}, 1296
        s_cselect_b32 s{S_PKON}, 1, 0
        s_and_b32 s{S_T1}, s{S_T0}, 3
        s_lshr_b32 s{S_T0}, s{S_T0}, 2
        s_lshr_b32 s{S_T2}, s{S_T0}, 2
        s_mul_i32 s{S_T3}, s{S_T2}, 57
        s_lshr_b32 s{S_T3}, s{S_T3}, 9
        s_mul_i32 s{S_T3}, s{S_T3}, 9
        s_sub_u32 s{S_T3}, s{S_T2}, s{S_T3}
        s_lshr_b32 s{S_PK}, s{S_T0}, 1
        s_lshl_b32 s{S_PK}, s{S_PK}, 5
        s_and_b32 s{S_T2}, s{S_T0}, 1
        s_lshl_b32 s{S_T2}, s{S_T2}, 3
        s_add_u32 s{S_PK}, s{S_PK}, s{S_T2}
        s_lshl_b32 s{S_T2}, s{S_T0}, 4
        s_cmp_eq_u32 s{S_T3}, 8
        s_cselect_b32 s{S_PK}, s{S_T2}, s{S_PK}
        s_cselect_b32 s{S_PKA}, 4, 16
        s_cselect_b32 s{S_PKB}, 8, 4
        s_mov_b32 s{S_PKC}, 2
        s_mul_i32 s{S_PKD}, s{S_T1}, 576
        s_add_u32 s{S_PKD}, s{S_PKD}, s{S_T0}
        s_mul_i32 s{S_PKD}, s{S_PKD}, 2304
        s_add_u32 s{S_PKD}, s{S_PKD}, {WDP}
        s_mov_b32 s{S_PKNB}, {288*2304}
        s_mov_b32 s{R_PK}, s{P_WD}
        s_and_b32 s{R_PK+1}, s{P_WD+1}, 0xffff
        s_mov_b32 s{R_PK+2}, {4608*1152}
        s_cmp_lt_u32 s{S_T0}, 288
        s_cbranch_scc1 {name}_pk_wd
        """)
        m = a.skip_begin()
        a(f"""
        s_sub_u32 s{S_T0}, s{S_T0}, 288
        s_mul_i32 s{S_PKD}, s{S_T1}, 72
        s_add_u32 s{S_PKD}, s{S_PKD}, s{S_T0}
        s_mul_i32 s{S_PKD}, s{S_PKD}, 2304
        s_add_u32 s{S_PKD}, s{S_PKD}, {WOP}
        s_mov_b32 s{S_PKNB}, {36*2304}
        s_mov_b32 s{R_PK}, s{P_WO}
        s_and_b32 s{R_PK+1}, s{P_WO+1}, 0xffff
        s_mov_b32 s{R_PK+2}, {576*1152}
        s_mul_i32 s{S_PK}, s{S_T0}, 18
        s_sub_u32 s{S_T2}, s{S_T0}, 32
        s_mul_i32 s{S_T2}, s{S_T2}, 144
        s_add_u32 s{S_T2}, s{S_T2}, 16
        s_cmp_lt_u32 s{S_T0}, 32
        s_cselect_b32 s{S_PK}, s{S_PK}, s{S_T2}
        s_cselect_b32 s{S_PKA}, 4, 36
        s_cselect_b32 s{S_PKB}, 8, 72
        s_cselect_b32 s{S_PKC}, 2, 18
        """)
        a.skip_end(m)
        a.label(f"{name}_pk_wd")
        a(f"""
        s_mul_i32 s{S_PK}, s{S_PK}, 1152
        s_mul_i32 s{S_T1}, s{S_T1}, 288
        s_add_u32 s{S_PK}, s{S_PK}, s{S_T1}
        s_mul_i32 s{S_PKA}, s{S_PKA}, 1152
        s_mul_i32 s{S_PKB}, s{S_PKB}, 1152
        s_mul_i32 s{S_PKC}, s{S_PKC}, 1152
        s_cmp_eq_u32 s{S_PKON}, 0
        s_cselect_b32 s{R_PK+2}, 0, s{R_PK+2}
        """)
        a(f"""
        v_bfe_u32 v8, v0, 2, 1
        v_mul_u32_u24 v8, 1152, v8
        v_bfe_u32 v9, v0, 3, 1
        v_mul_lo_u32 v9, v9, s{S_PKC}
        v_add_u32 v8, v8, v9
        v_bfe_u32 v9, v0, 4, 1
        v_mul_lo_u32 v9, v9, s{S_PKB}
        v_add_u32 v8, v8, v9
        v_bfe_u32 v9, v0, 5, 1
        v_mul_lo_u32 v9, v9, s{S_PKA}
        v_add_u32 v8, v8, v9
        v_and_b32 v9, 3, v0
        v_lshlrev_b32 v9, 7, v9
        v_min_u32 v9, 284, v9
        v_add_u32 v8, v8, v9
        buffer_load_dword v{V_XR}, v8, {sr(R_PK,4)}, s{S_PK} offen
        """)
    def pack_dma():
        a(f"""
        v_lshrrev_b32 v8, 5, v0
        v_mul_u32_u24 v8, 1152, v8
        v_and_b32 v9, 31, v0
        v_lshl_add_u32 v8, v9, 4, v8
        v_cmp_gt_u32 vcc, 18, v9
        v_mov_b32 v9, {OOB}
        v_cndmask_b32 v8, v9, v8, vcc
        s_lshl_b32 s{S_XB}, s{S_W}, 13
        s_cmp_ge_u32 s{S_W}, 6
        s_cselect_b32 s{S_T2}, {147456 - 49152}, 0
        s_add_u32 s{S_XB}, s{S_XB}, s{S_T2}
        """)
        for i in range(8):
            a(f"s_mov_b32 s{S_T0}, s{S_PK}")
            if i & 1: a(f"s_add_u32 s{S_T0}, s{S_T0}, s{S_PKC}")
            if i & 2: a(f"s_add_u32 s{S_T0}, s{S_T0}, s{S_PKB}")
            if i & 4: a(f"s_add_u32 s{S_T0}, s{S_T0}, s{S_PKA}")
            a(f"s_add_u32 m0, s{S_XB}, {SLOT[0] + i*1024}")
            note(NST, a.emit(f"buffer_load_dwordx4 v8, {sr(R_PK,4)}, s{S_T0} offen lds"))
    def pack_finish():
        P = 24
        lab[0] += 1; skip = f"{name}_r{lab[0]}"
        a(f"s_cmp_eq_u32 s{S_PKON}, 0")
        a(f"s_cbranch_scc1 {skip}")
        a(f"""
        v_lshrrev_b32 v8, 5, v0
        v_bfe_u32 v9, v0, 2, 2
        v_lshl_add_u32 v8, v8, 2, v9
        v_lshlrev_b32 v8, 9, v8
        v_add_u32 v8, s{S_XB}, v8
        v_and_b32 v9, 1, v0
        v_lshl_add_u32 v10, v9, 5, v8
        v_bfe_u32 v9, v0, 1, 1
        v_lshl_add_u32 v10, v9, 3, v10
        v_and_b32 v9, 3, v0
        v_lshl_add_u32 v8, v9, 3, v8
        v_bfe_u32 v9, v0, 4, 1
        v_lshl_add_u32 v10, v9, 4, v10
        v_mul_u32_u24 v11, 144, v9
        v_add_u32 v11, v11, v8
        v_lshlrev_b32 v12, 4, v0
        v_mul_lo_u32 v13, v9, s{S_PKNB}
        v_lshrrev_b32 v14, 5, v0
        v_lshl_add_u32 v13, v14, 7, v13
        v_and_b32 v14, 15, v0
        v_lshl_add_u32 v13, v14, 4, v13
        v_cmp_gt_u32 vcc, 8, v14
        v_mov_b32 v14, {OOB}
        v_cndmask_b32 v13, v14, v13, vcc
        s_add_u32 s{S_T0}, s{S_PKD}, s{S_PKNB}
        """)
        a.wait_vm(dma_id[NST])
        offs = [0, 64, 144, 144+64]
        for i in range(4):
            a(f"ds_read_b64_tr_b16 {vr(P+4*i,2)}, v10 offset:{SLOT[0]+offs[i]}")
            a(f"ds_read_b64_tr_b16 {vr(P+2+4*i,2)}, v10 offset:{SLOT[0]+offs[i]+4096}")
        a(f"ds_read_b64_tr_b16 {vr(P+16,2)}, v11 offset:{SLOT[0]+128}")
        a(f"ds_read_b64_tr_b16 {vr(P+18,2)}, v11 offset:{SLOT[0]+128+4096}")
        a("s_waitcnt lgkmcnt(0)")
        for i in range(4):
            so = S_PKD if i < 2 else S_T0
            a(f"buffer_store_dwordx4 {vr(P+4*i,4)}, v12, {sr(R_WS,4)}, s{so} offen offset:{(i&1)*1024}")
        a(f"buffer_store_dwordx4 {vr(P+16,4)}, v13, {sr(R_WS,4)}, s{S_PKD} offen offset:2048")
        a.label(skip)

    stamp('issued')
    pre_stage(0)
    a.wait_vm(dma_id[0])
    a("s_barrier")
    stamp('bar0')
    for s in range(NST):
        mblock(s)
        stamp(f'M{s}')
        if s + 3 <= NST:
            with only('B'): dma(s + 3)
        if s + 2 <= NST:
            with only('A'): dma(s + 2)
        if s in (8, 11, 14): epilogue(stage_info(s)[0])
        if s == 1: g_compute()
        if s == 9: pack_setup()
        if s == NST - 2:
            with only('B'): pack_finish()
        if s == NST - 1:
            with only('A'): pack_finish()
        if s < NST - 1:
            pre_stage(s + 1)
            barrier_for('A', s + 1)
        stamp(f'S{s}')
    if stamp.on:
        a("s_waitcnt vmcnt(0)")
        stamp('end')
        stamp.out(8)
    a.label(f"{name}_end")
    a("s_endpgm")
    return a, kdesc(name), dict(grid=256, block=512, lds=163840)
```

```python
from asmdsl import *
from layout import *
from k1 import f2u, OOB, load_kernargs, make_srd, kdesc, Stamper, P_WS, P_OUT

KVB = 64*KVREC
FLAG = KVB

def gen_k2(name="k2_kernel", opts=None):
    opts = opts or {}
    a = Asm()
    R_WS = 28
    S_W, S_XCD, S_LOC, S_H, S_QB, S_T0, S_T1, S_T2, S_T3 = 32, 33, 34, 35, 36, 37, 38, 39, 40
    S_KVO, S_IT, S_HO, S_WO, S_M0 = 41, 42, 43, 44, 45
    V_STAMP = 255
    stamp = Stamper(a, opts.get('stamp', False), V_STAMP, S_W, R_WS, WS_USED + (1 << 20))
    a.stamps = stamp.labels
    NFIRST = 3
    a.raw(f".globl {name}\n.p2align 8\n.type {name},@function\n{name}:")
    a("s_cmp_ge_u32 s2, 256")
    a(f"s_cbranch_scc1 {name}_end")
    stamp('start')
    a("s_load_dwordx2 s[24:25], s[0:1], 80")
    a(f"""
    v_lshrrev_b32 v1, 6, v0
    v_and_b32 v0, 63, v0
    s_and_b32 s{S_XCD}, s2, 7
    v_readfirstlane_b32 s{S_W}, v1
    s_lshr_b32 s{S_LOC}, s2, 3
    s_and_b32 s{S_T0}, s{S_LOC}, 3
    s_lshl_b32 s{S_H}, s{S_XCD}, 2
    s_add_u32 s{S_H}, s{S_H}, s{S_T0}
    s_lshr_b32 s{S_QB}, s{S_LOC}, 2
    s_mul_i32 s{S_KVO}, s{S_H}, {KVB}
    s_add_u32 s{S_KVO}, s{S_KVO}, {KV}
    v_lshlrev_b32 v1, 4, v0
    s_lshl_b32 s{S_M0}, s{S_W}, 10
    s_add_u32 s{S_T0}, s{S_KVO}, s{S_M0}
    s_waitcnt lgkmcnt(0)
    """)
    make_srd(a, R_WS, P_WS, WS_USED)
    for i in range(NFIRST):
        a(f"s_add_u32 m0, s{S_M0}, {i*8192}")
        a(f"s_add_u32 s{S_T1}, s{S_T0}, {i*8192}")
        first_id = a.emit(f"buffer_load_dwordx4 v1, {sr(R_WS,4)}, s{S_T1} offen lds")
    a(f"s_cmp_ge_u32 s{S_W}, 4")
    a(f"s_cbranch_scc1 {name}_gemm")
    a.fence()
    base_vm = dict(a.vmr)

    SA, SB, PA, PB, OA, OB = 16, 32, 48, 56, 64, 80
    QA0, QA1, QB0, QB1 = 96, 100, 104, 108
    K0 = [112, 116]; KX = [120, 124]; V0 = [128, 136]
    A_K, A_X, A_V = 2, 3, 4
    GA, GBr = 5, 6
    V_ST, V_STX = 7, 8
    a("s_setprio 1")
    a(f"""
    s_lshl_b32 s{S_T0}, s{S_QB}, 3
    s_lshl_b32 s{S_T1}, s{S_W}, 1
    s_add_u32 s{S_T0}, s{S_T0}, s{S_T1}
    s_lshl_b32 s{S_T1}, s{S_H}, 6
    s_add_u32 s{S_T1}, s{S_T1}, s{S_T0}
    s_lshl_b32 s{S_T2}, s{S_T1}, 10
    s_add_u32 s{S_T2}, s{S_T2}, {QF}
    s_lshl_b32 s{S_T3}, s{S_T1}, 7
    s_add_u32 s{S_T3}, s{S_T3}, {QX}
    buffer_load_dwordx4 {vr(QA0,4)}, v1, {sr(R_WS,4)}, s{S_T2} offen
    buffer_load_dwordx4 {vr(QB0,4)}, v1, {sr(R_WS,4)}, s{S_T2} offen offset:1024
    """)
    a(f"""
    v_lshrrev_b32 v9, 5, v0
    v_lshlrev_b32 v10, 6, v9
    v_bfe_u32 v11, v0, 4, 1
    v_lshl_add_u32 v10, v11, 5, v10
    v_bfe_u32 v11, v0, 2, 1
    v_lshl_add_u32 v10, v11, 4, v10
    v_bfe_u32 v11, v0, 3, 1
    v_lshl_add_u32 v10, v11, 3, v10
    v_and_b32 v11, 3, v0
    v_lshl_add_u32 v10, v11, 1, v10
    buffer_load_ushort v{QA1}, v10, {sr(R_WS,4)}, s{S_T3} offen
    buffer_load_ushort v{QB1}, v10, {sr(R_WS,4)}, s{S_T3} offen offset:128
    v_add_u32 v{A_X}, 2304, v10
    v_mov_b32 v{A_K}, v1
    """)
    a(f"""
    v_and_b32 v11, 7, v0
    v_bfe_u32 v12, v0, 3, 1
    v_lshl_add_u32 v11, v12, 4, v11
    v_bfe_u32 v12, v0, 4, 1
    v_lshl_add_u32 v11, v12, 3, v11
    v_lshlrev_b32 v12, 2, v11
    s_lshl_b32 s{S_T1}, s{S_T0}, 7
    s_add_u32 s{S_T1}, s{S_T1}, {GB}
    buffer_load_dword v{GA}, v12, {sr(R_WS,4)}, s{S_T1} offen
    """)
    q_id = a.emit(f"buffer_load_dword v{GBr}, v12, {sr(R_WS,4)}, s{S_T1} offen offset:128")
    a(f"""
    v_lshlrev_b32 v12, 4, v11
    v_lshl_add_u32 v{V_ST}, v9, 9, v12
    v_cmp_gt_u32 vcc, 32, v0
    v_mov_b32 v13, {OOB}
    v_cndmask_b32 v{V_STX}, v13, v12, vcc
    """)
    a(f"""
    v_and_b32 v11, 31, v0
    v_and_b32 v12, 0x13, v11
    v_bfe_u32 v13, v11, 2, 1
    v_lshl_or_b32 v12, v13, 3, v12
    v_bfe_u32 v13, v11, 3, 1
    v_lshl_or_b32 v12, v13, 2, v12
    v_mov_b32 v13, 19
    v_cmp_gt_u32 vcc, 19, v11
    v_cndmask_b32 v12, v13, v12, vcc
    v_mov_b32 v13, 18
    v_cmp_eq_u32 vcc, 22, v11
    v_cndmask_b32 v12, v12, v13, vcc
    v_mul_u32_u24 v13, 20, v9
    v_add_u32 v12, v12, v13
    v_lshlrev_b32 v12, 4, v12
    v_add_u32 v{A_V}, 1024, v12
    """)
    for r in list(range(PB, PB+8)) + list(range(OA, OA+32)) + list(range(V0[1], V0[1]+8)) + \
             [QA1+1, QA1+2, QA1+3, QB1+1, QB1+2, QB1+3, KX[0]+2, KX[0]+3, KX[1]+2, KX[1]+3]:
        a(f"v_mov_b32 v{r}, 0")
    a(f"v_mov_b32 v{KX[0]+1}, 0x3f80")
    a(f"v_mov_b32 v{KX[1]+1}, 0x3f80")
    a(f"""
    v_mov_b32 v11, {FLAG}
    v_mov_b32 v12, 0
    v_mov_b32 v13, 0
    ds_write_b64 v11, v[12:13]
    """)
    a.wait_vm(first_id)
    a("s_waitcnt lgkmcnt(0)")
    a("s_barrier")
    stamp('bar1')
    a(f"ds_read_b128 {vr(K0[0],4)}, v{A_K}")
    a(f"ds_read_u16 v{KX[0]}, v{A_X}")
    a.wait_vm(q_id)
    a("s_waitcnt lgkmcnt(0)")
    def qk(S, q0, q1, kb):
        return [f"v_mfma_f32_32x32x16_bf16 {vr(S,16)}, {vr(K0[kb],4)}, {vr(q0,4)}, 0",
                f"v_mfma_f32_32x32x16_bf16 {vr(S,16)}, {vr(KX[kb],4)}, {vr(q1,4)}, {vr(S,16)}"]
    def pv(O, P, vb):
        return [f"v_mfma_f32_32x32x16_bf16 {vr(O,16)}, {vr(V0[vb],4)}, {vr(P,4)}, {vr(O,16)}",
                f"v_mfma_f32_32x32x16_bf16 {vr(O,16)}, {vr(V0[vb]+4,4)}, {vr(P+4,4)}, {vr(O,16)}"]
    for x in qk(SA, QA0, QA1, 0) + qk(SB, QB0, QB1, 0): a(x)
    a("v_cmp_gt_u32 vcc, 32, v0")
    for S, Q1, t in ((SA, QA1, 10), (SB, QB1, 12)):
        a(f"v_max3_f32 v{t}, v{S}, v{S+1}, v{S+2}")
        for i in range(3, 15, 2): a(f"v_max3_f32 v{t}, v{t}, v{S+i}, v{S+i+1}")
        a(f"v_max_f32 v{t}, v{t}, v{S+15}")
        a(f"v_mov_b32 v{t+1}, v{t}")
        a(f"v_permlane32_swap_b32 v{t}, v{t+1}")
        a(f"v_max_f32 v{t}, v{t}, v{t+1}")
        a(f"v_cvt_pk_bf16_f32 v{t}, -v{t}, 0")
        a(f"v_cndmask_b32 v{Q1+1}, 0, v{t}, vcc")
    for x in qk(SA, QA0, QA1, 0): a(x)
    a(f"s_mov_b32 s{S_IT}, 0")
    a.fence()
    stamp('pre')

    UN = 8
    def half(S, P, mf, extra):
        valu = []
        for q in range(4):
            g = [f"v_exp_f32 v{S+4*q+i}, v{S+4*q+i}" for i in range(4)]
            valu.append(g)
        cv = [f"v_cvt_pk_bf16_f32 v{P+j}, v{S+2*j}, v{S+2*j+1}" for j in range(8)]
        seq = []
        seq += [('m', 0)] + valu[0] + valu[1][:2]
        seq += [('m', 1)] + [cv[0], valu[1][2], cv[1], valu[1][3], cv[2], valu[2][0], valu[2][1]]
        seq += [('m', 2)] + [cv[3], valu[2][2], cv[4], valu[2][3], valu[3][0], valu[3][1]]
        seq += [('m', 3)] + [cv[5], valu[3][2], valu[3][3], cv[6], cv[7]]
        k = 0
        for x in seq:
            if isinstance(x, tuple):
                for e in extra.get(('m', x[1]), []): e()
                a(mf[x[1]])
            else:
                a(x)
                for e in extra.get(k, []): e()
                k += 1
    a.raw(".p2align 3")
    a.label(f"{name}_aloop")
    a(f"s_bitcmp1_b32 {(1 << 1) | (1 << 6)}, s{S_IT}")
    a(f"s_cbranch_scc1 {name}_astub")
    a.label(f"{name}_acont")
    for t in range(UN):
        p = t & 1
        o = t * KVREC
        ids = {}
        def rd(key, txt):
            def f(): ids[key] = a.emit(txt)
            return f
        half(SA, PA, qk(SB, QB0, QB1, p) + pv(OB, PB, p ^ 1),
             {1: [rd('k', f"ds_read_b128 {vr(K0[p^1],4)}, v{A_K} offset:{o + KVREC}")],
              3: [rd('x', f"ds_read_u16 v{KX[p^1]}, v{A_X} offset:{o + KVREC}")],
              7: [rd('v0', f"ds_read_b128 {vr(V0[p],4)}, v{A_V} offset:{o}")],
              9: [rd('v1', f"ds_read_b128 {vr(V0[p]+4,4)}, v{A_V} offset:{o + 640}")]})
        ex = {('m', 0): [lambda: a("s_waitcnt lgkmcnt(0)")]}
        if t == UN - 1:
            ex[1] = [lambda: a(f"v_add_u32 v{A_K}, {UN*KVREC}, v{A_K}")]
            ex[3] = [lambda: a(f"v_add_u32 v{A_X}, {UN*KVREC}, v{A_X}")]
            ex[5] = [lambda: a(f"v_add_u32 v{A_V}, {UN*KVREC}, v{A_V}")]
            ex[7] = [lambda: a(f"s_add_u32 s{S_IT}, s{S_IT}, 1"), lambda: a(f"s_cmp_lt_u32 s{S_IT}, {64//UN}")]
        half(SB, PB, qk(SA, QA0, QA1, p ^ 1) + pv(OA, PA, p), ex)
    a(f"s_cbranch_scc1 {name}_aloop")
    for x in pv(OB, PB, (UN - 1) & 1): a(x)
    stamp('loop')
    a(f"""
    s_lshl_b32 s{S_T0}, s{S_QB}, 2
    s_add_u32 s{S_T0}, s{S_T0}, s{S_W}
    s_mul_i32 s{S_T0}, s{S_T0}, {36*2048}
    s_add_u32 s{S_T0}, s{S_T0}, {OF}
    s_lshl_b32 s{S_T1}, s{S_H}, 11
    s_add_u32 s{S_T1}, s{S_T1}, s{S_T0}
    s_lshr_b32 s{S_T2}, s{S_H}, 3
    s_add_u32 s{S_T2}, s{S_T2}, 32
    s_lshl_b32 s{S_T2}, s{S_T2}, 11
    s_add_u32 s{S_T2}, s{S_T2}, s{S_T0}
    s_bfe_u32 s{S_T3}, s{S_H}, 0x10002
    s_lshl_b32 s{S_T3}, s{S_T3}, 9
    s_add_u32 s{S_T2}, s{S_T2}, s{S_T3}
    s_and_b32 s{S_T3}, s{S_H}, 3
    s_lshl_b32 s{S_T3}, s{S_T3}, 2
    s_add_u32 s{S_T2}, s{S_T2}, s{S_T3}
    """)
    for tt, (O, G, P) in enumerate(((OA, GA, SA), (OB, GBr, SB))):
        a(f"v_rcp_f32 v{P+8}, v{O+10}")
        a(f"v_mul_f32 v{P+8}, v{P+8}, v{G}")
        for i in range(10): a(f"v_mul_f32 v{O+i}, v{O+i}, v{P+8}")
        for j in range(5): a(f"v_cvt_pk_bf16_f32 v{P+j}, v{O+2*j}, v{O+2*j+1}")
        a(f"buffer_store_dwordx4 {vr(P,4)}, v{V_ST}, {sr(R_WS,4)}, s{S_T1} offen offset:{tt*1024}")
        a(f"buffer_store_dword v{P+4}, v{V_STX}, {sr(R_WS,4)}, s{S_T2} offen offset:{tt*1024}")
    if stamp.on:
        a("s_waitcnt vmcnt(0)")
        stamp('end')
        stamp.out(9)
    a("s_endpgm")
    a.fence()
    a.label(f"{name}_astub")
    a(f"s_cmp_eq_u32 s{S_IT}, 1")
    a(f"s_cbranch_scc0 {name}_astub2")
    a("s_barrier")
    a(f"s_branch {name}_acont")
    a.label(f"{name}_astub2")
    a(f"""
    v_mov_b32 v10, {FLAG}
    v_mov_b32 v11, 1
    v_cmp_eq_u32 vcc, 0, v0
    s_and_saveexec_b64 s[46:47], vcc
    ds_add_u32 v10, v11
    s_mov_b64 exec, s[46:47]
    s_nop 4
    s_branch {name}_acont
    """)
    a.fence()

    a.vmr = dict(base_vm)
    nstamp_att = len(stamp.labels)
    stamp.labels_att = list(stamp.labels)
    del stamp.labels[1:]
    a.label(f"{name}_gemm")
    ACC32 = lambda tt, h: 4 + tt*36 + h*16
    ACC16 = lambda tt: 4 + tt*36 + 32
    BUF = lambda b: 148 + b*28
    V_W8 = 2
    a(f"""
    s_sub_u32 s{S_T3}, s{S_W}, 4
    s_and_b32 s{S_T0}, s{S_XCD}, 1
    s_mul_i32 s{S_T0}, s{S_T0}, 144
    s_mul_i32 s{S_T1}, s{S_T3}, 36
    s_add_u32 s{S_T0}, s{S_T0}, s{S_T1}
    s_lshr_b32 s{S_T1}, s{S_XCD}, 1
    s_lshl_b32 s{S_T1}, s{S_T1}, 2
    s_lshr_b32 s{S_T2}, s{S_LOC}, 3
    s_add_u32 s{S_QB}, s{S_T1}, s{S_T2}
    s_and_b32 s{S_H}, s{S_LOC}, 7
    s_mul_i32 s{S_HO}, s{S_QB}, 288
    s_add_u32 s{S_HO}, s{S_HO}, s{S_T0}
    s_lshl_b32 s{S_HO}, s{S_HO}, 12
    s_mul_i32 s{S_WO}, s{S_H}, 288
    s_add_u32 s{S_WO}, s{S_WO}, s{S_T0}
    s_mul_i32 s{S_WO}, s{S_WO}, 2304
    s_add_u32 s{S_WO}, s{S_WO}, {WDP}
    """)
    w8_voffset(a, V_W8, 3)
    a.wait_vm(first_id)
    a("s_barrier")
    stamp('bar1')
    rest = 152 - NFIRST*8
    assert rest % 4 == 0
    a(f"s_lshl_b32 s{S_M0}, s{S_T3}, 10")
    a(f"s_add_u32 s{S_T0}, s{S_KVO}, s{S_M0}")
    for i in range(rest // 4):
        off = NFIRST*8192 + i*4096
        a(f"s_add_u32 m0, s{S_M0}, {off}")
        a(f"s_add_u32 s{S_T1}, s{S_T0}, {off}")
        kv_id = a.emit(f"buffer_load_dwordx4 v1, {sr(R_WS,4)}, s{S_T1} offen lds")
    def ldH(b, tt): return a.emit(f"buffer_load_dwordx4 {vr(BUF(b)+4*tt,4)}, v1, {sr(R_WS,4)}, s{S_HO} offen offset:{tt*1024}")
    def ldW(b):
        a(f"buffer_load_dwordx4 {vr(BUF(b)+16,4)}, v1, {sr(R_WS,4)}, s{S_WO} offen")
        a(f"buffer_load_dwordx4 {vr(BUF(b)+20,4)}, v1, {sr(R_WS,4)}, s{S_WO} offen offset:1024")
        a(f"buffer_load_dwordx4 {vr(BUF(b)+24,4)}, v{V_W8}, {sr(R_WS,4)}, s{S_WO} offen offset:2048")
    def adv():
        a(f"s_add_u32 s{S_HO}, s{S_HO}, 4096")
        a(f"s_add_u32 s{S_WO}, s{S_WO}, 2304")
    for b in range(3):
        for tt in range(4): ldH(b, tt)
        ldW(b); adv()
    for r in range(4, 148): a(f"v_mov_b32 v{r}, 0")
    a.wait_vm(kv_id)
    a("s_barrier")
    stamp('bar2')
    a(f"s_mov_b32 s{S_IT}, 0")
    a.fence()
    a.label(f"{name}_gloop")
    def kstep(b, load):
        a(f"s_waitcnt vmcnt({14 if load is True else load})")
        for tt in range(4):
            h = vr(BUF(b)+4*tt, 4)
            a(f"v_mfma_f32_32x32x16_bf16 {vr(ACC32(tt,0),16)}, {vr(BUF(b)+16,4)}, {h}, {vr(ACC32(tt,0),16)}")
            a(f"v_mfma_f32_32x32x16_bf16 {vr(ACC32(tt,1),16)}, {vr(BUF(b)+20,4)}, {h}, {vr(ACC32(tt,1),16)}")
            a(f"v_mfma_f32_16x16x32_bf16 {vr(ACC16(tt),4)}, {vr(BUF(b)+24,4)}, {h}, {vr(ACC16(tt),4)}")
            if load is True: ldH(b, tt)
        if load is True:
            ldW(b); adv()
    for b in range(3): kstep(b, True)
    a(f"s_add_u32 s{S_IT}, s{S_IT}, 1")
    a(f"s_cmp_lt_u32 s{S_IT}, 11")
    a(f"s_cbranch_scc1 {name}_gloop")
    kstep(0, 14); kstep(1, 7); kstep(2, 0)
    stamp('loop')
    a(f"v_mov_b32 v150, {FLAG}")
    a.fence()
    a.label(f"{name}_gw1")
    a(f"""
    ds_read_b32 v151, v150
    s_waitcnt lgkmcnt(0)
    v_readfirstlane_b32 s{S_T0}, v151
    s_cmp_ge_u32 s{S_T0}, 4
    s_cbranch_scc1 {name}_gw1d
    s_sleep 8
    s_branch {name}_gw1
    """)
    a.label(f"{name}_gw1d")
    stamp('flag1')
    for d in range(1, 4):
        pass
    for wv in range(4):
        a(f"s_cmp_lg_u32 s{S_T3}, {wv}")
        a(f"s_cbranch_scc1 {name}_gr{wv}")
        for d in range(1, 4):
            dst = (wv + d) & 3
            base = (dst*3 + (d-1)) * 9216
            a(f"v_add_u32 v152, {base}, v1")
            for i in range(9):
                a(f"ds_write_b128 v152, {vr(4 + dst*36 + 4*i, 4)} offset:{i*1024}")
        if wv != 0:
            a("s_waitcnt lgkmcnt(0)")
            for i in range(36): a(f"v_mov_b32 v{4+i}, v{4 + wv*36 + i}")
        a.fence()
        a.label(f"{name}_gr{wv}")
    a(f"""
    s_waitcnt lgkmcnt(0)
    v_mov_b32 v151, 1
    v_cmp_eq_u32 vcc, 0, v0
    s_and_saveexec_b64 s[46:47], vcc
    ds_add_u32 v150, v151 offset:4
    s_mov_b64 exec, s[46:47]
    """)
    a.fence()
    a.label(f"{name}_gw2")
    a(f"""
    ds_read_b32 v151, v150 offset:4
    s_waitcnt lgkmcnt(0)
    v_readfirstlane_b32 s{S_T0}, v151
    s_cmp_ge_u32 s{S_T0}, 4
    s_cbranch_scc1 {name}_gw2d
    s_sleep 2
    s_branch {name}_gw2
    """)
    a.label(f"{name}_gw2d")
    a(f"""
    s_mul_i32 s{S_T0}, s{S_T3}, {3*9216}
    v_add_u32 v152, s{S_T0}, v1
    s_and_b32 s{S_T0}, s{S_XCD}, 1
    s_lshl_b32 s{S_T0}, s{S_T0}, 4
    s_add_u32 s{S_T0}, s{S_T0}, s{S_QB}
    s_lshl_b32 s{S_T0}, s{S_T0}, 3
    s_add_u32 s{S_T0}, s{S_T0}, s{S_H}
    s_lshl_b32 s{S_T0}, s{S_T0}, 2
    s_add_u32 s{S_T0}, s{S_T0}, s{S_T3}
    s_mul_i32 s{S_T0}, s{S_T0}, 9216
    s_add_u32 s{S_T0}, s{S_T0}, {BP}
    """)
    ids = {}
    for i in range(9):
        for sl in range(3):
            ids[(i, sl)] = a.emit(f"ds_read_b128 {vr(40 + (i*3+sl)*4, 4)}, v152 offset:{sl*9216 + i*1024}")
            if a.lg % 12 == 0: a.wait_lg(a.lg - 6)
    for i in range(9):
        a.wait_lg(ids[(i, 2)])
        for sl in range(3):
            for j in range(4):
                a(f"v_add_f32 v{4+4*i+j}, v{4+4*i+j}, v{40 + (i*3+sl)*4 + j}")
        if i % 4 == 0 and i: a(f"s_add_u32 s{S_T0}, s{S_T0}, 4096")
        a(f"buffer_store_dwordx4 {vr(4+4*i,4)}, v1, {sr(R_WS,4)}, s{S_T0} offen offset:{(i%4)*1024}")
    if stamp.on:
        a("s_waitcnt vmcnt(0)")
        stamp('end')
        stamp.out(9)
    a.label(f"{name}_end")
    a("s_endpgm")
    a.stamps = ["/".join(x) for x in zip(stamp.labels_att + ["-"]*8, stamp.labels)] if stamp.on else []
    return a, kdesc(name), dict(grid=256, block=512, lds=163840)

def w8_voffset(a, dst, tmp):
    a(f"""
    v_bfe_u32 v{dst}, v0, 3, 1
    v_bfe_u32 v{tmp}, v0, 4, 1
    v_cmp_eq_u32 vcc, v{dst}, v{tmp}
    v_lshrrev_b32 v{tmp}, 5, v0
    v_lshlrev_b32 v{tmp}, 7, v{tmp}
    v_and_b32 v{dst}, 7, v0
    v_lshl_add_u32 v{tmp}, v{dst}, 4, v{tmp}
    v_mov_b32 v{dst}, {OOB}
    v_cndmask_b32 v{dst}, v{dst}, v{tmp}, vcc
    """)

def gen_k3(name="k3_kernel", opts=None):
    opts = opts or {}
    a = Asm()
    R_WS, R_OUT = 28, 48
    S_W, S_XCD, S_LOC, S_NB, S_MB, S_T0, S_T1, S_T2, S_T3, S_OO, S_WO = 32, 33, 34, 35, 36, 37, 38, 39, 40, 41, 42
    V_STAMP = 255
    stamp = Stamper(a, opts.get('stamp', False), V_STAMP, S_W, R_WS, WS_USED + (2 << 20))
    a.stamps = stamp.labels
    a.raw(f".globl {name}\n.p2align 8\n.type {name},@function\n{name}:")
    a("s_cmp_ge_u32 s2, 256")
    a(f"s_cbranch_scc1 {name}_end")
    stamp('start')
    a("s_load_dwordx2 s[24:25], s[0:1], 80")
    a("s_load_dwordx2 s[20:21], s[0:1], 64")
    a(f"""
    v_lshrrev_b32 v1, 6, v0
    v_and_b32 v0, 63, v0
    s_and_b32 s{S_XCD}, s2, 7
    v_readfirstlane_b32 s{S_W}, v1
    s_lshr_b32 s{S_LOC}, s2, 3
    s_and_b32 s{S_NB}, s{S_LOC}, 7
    s_lshr_b32 s{S_T0}, s{S_LOC}, 3
    s_lshl_b32 s{S_MB}, s{S_XCD}, 2
    s_add_u32 s{S_MB}, s{S_MB}, s{S_T0}
    v_lshlrev_b32 v1, 4, v0
    s_mul_i32 s{S_T0}, s{S_W}, 9
    s_mul_i32 s{S_OO}, s{S_MB}, 36
    s_add_u32 s{S_OO}, s{S_OO}, s{S_T0}
    s_lshl_b32 s{S_OO}, s{S_OO}, 11
    s_add_u32 s{S_OO}, s{S_OO}, {OF}
    s_mul_i32 s{S_WO}, s{S_NB}, 36
    s_add_u32 s{S_WO}, s{S_WO}, s{S_T0}
    s_mul_i32 s{S_WO}, s{S_WO}, 2304
    s_add_u32 s{S_WO}, s{S_WO}, {WOP}
    """)
    w8_voffset(a, 2, 3)
    a("s_waitcnt lgkmcnt(0)")
    make_srd(a, R_WS, P_WS, WS_USED)
    make_srd(a, R_OUT, P_OUT, 2048*1152)
    ACC32 = lambda tt, h: 4 + tt*36 + h*16
    ACC16 = lambda tt: 4 + tt*36 + 32
    NB = 6
    BUF = lambda b: 76 + (b % NB)*20
    PB = 196
    ids = {}
    def ld(k):
        b = BUF(k)
        a(f"buffer_load_dwordx4 {vr(b,4)}, v1, {sr(R_WS,4)}, s{S_OO} offen")
        a(f"buffer_load_dwordx4 {vr(b+4,4)}, v1, {sr(R_WS,4)}, s{S_OO} offen offset:1024")
        a(f"buffer_load_dwordx4 {vr(b+8,4)}, v1, {sr(R_WS,4)}, s{S_WO} offen")
        a(f"buffer_load_dwordx4 {vr(b+12,4)}, v1, {sr(R_WS,4)}, s{S_WO} offen offset:1024")
        ids[k] = a.emit(f"buffer_load_dwordx4 {vr(b+16,4)}, v2, {sr(R_WS,4)}, s{S_WO} offen offset:2048")
        a(f"s_add_u32 s{S_OO}, s{S_OO}, 2048")
        a(f"s_add_u32 s{S_WO}, s{S_WO}, 2304")
    for k in range(NB): ld(k)
    a(f"""
    s_lshr_b32 s{S_T0}, s{S_MB}, 1
    s_lshl_b32 s{S_T0}, s{S_T0}, 3
    s_add_u32 s{S_T0}, s{S_T0}, s{S_NB}
    s_lshl_b32 s{S_T0}, s{S_T0}, 2
    s_and_b32 s{S_T1}, s{S_MB}, 1
    s_lshl_b32 s{S_T1}, s{S_T1}, 1
    s_add_u32 s{S_T0}, s{S_T0}, s{S_T1}
    s_lshr_b32 s{S_T1}, s{S_W}, 1
    s_add_u32 s{S_T0}, s{S_T0}, s{S_T1}
    s_mul_i32 s{S_T0}, s{S_T0}, 9216
    s_add_u32 s{S_T0}, s{S_T0}, {BP}
    s_and_b32 s{S_T2}, s{S_W}, 1
    s_lshl_b32 s{S_T3}, s{S_T2}, 12
    s_add_u32 s{S_T3}, s{S_T3}, s{S_T0}
    s_add_u32 s{S_T0}, s{S_T0}, 8192
    """)
    def ldp():
        for kh in range(2):
            for i in range(4):
                a(f"buffer_load_dwordx4 {vr(PB+kh*20+4*i,4)}, v1, {sr(R_WS,4)}, s{S_T3} offen offset:{i*1024}")
            a(f"buffer_load_dwordx4 {vr(PB+kh*20+16,4)}, v1, {sr(R_WS,4)}, s{S_T0} offen")
            if kh == 0:
                a(f"s_add_u32 s{S_T3}, s{S_T3}, {BP_SZ//2}")
                a(f"s_add_u32 s{S_T0}, s{S_T0}, {BP_SZ//2}")
        a(f"""
        s_lshl_b32 s{S_T0}, s{S_MB}, 1
        s_add_u32 s{S_T0}, s{S_T0}, s{S_T1}
        s_lshl_b32 s{S_T3}, s{S_T0}, 7
        s_add_u32 s{S_T3}, s{S_T3}, {GB}
        v_and_b32 v236, 31, v0
        v_lshlrev_b32 v237, 2, v236
        buffer_load_dword v240, v237, {sr(R_WS,4)}, s{S_T3} offen
        v_and_b32 v238, 15, v0
        v_lshrrev_b32 v239, 5, v0
        v_lshl_add_u32 v238, v239, 4, v238
        v_lshlrev_b32 v237, 2, v238
        """)
        return a.emit(f"buffer_load_dword v241, v237, {sr(R_WS,4)}, s{S_T3} offen")
    stamp('issued')
    for k in range(9):
        a.wait_vm(ids[k])
        b = BUF(k)
        for tt in range(2):
            o = vr(b+4*tt, 4)
            c = lambda x: "0" if k == 0 else x
            a(f"v_mfma_f32_32x32x16_bf16 {vr(ACC32(tt,0),16)}, {vr(b+8,4)}, {o}, {c(vr(ACC32(tt,0),16))}")
            a(f"v_mfma_f32_32x32x16_bf16 {vr(ACC32(tt,1),16)}, {vr(b+12,4)}, {o}, {c(vr(ACC32(tt,1),16))}")
            a(f"v_mfma_f32_16x16x32_bf16 {vr(ACC16(tt),4)}, {vr(b+16,4)}, {o}, {c(vr(ACC16(tt),4))}")
        if k + NB < 9: ld(k + NB)
        if k + NB == 9: p_id = ldp()
    stamp('mfma')
    a(f"s_mul_i32 s{S_T3}, s{S_W}, 18432")
    a(f"v_add_u32 v3, s{S_T3}, v1")
    for i in range(18):
        a(f"ds_write_b128 v3, {vr(4+4*i,4)} offset:{i*1024}")
    a(f"""
    s_mul_i32 s{S_T0}, s{S_T0}, {32*1152}
    s_mul_i32 s{S_T3}, s{S_NB}, 144
    s_add_u32 s{S_T0}, s{S_T0}, s{S_T3}
    s_lshl_b32 s{S_T3}, s{S_T2}, 6
    s_add_u32 s{S_OO}, s{S_T0}, s{S_T3}
    v_mul_u32_u24 v242, 1152, v236
    v_lshl_add_u32 v242, v239, 5, v242
    v_mul_u32_u24 v243, 1152, v238
    v_bfe_u32 v237, v0, 4, 1
    v_lshl_add_u32 v243, v237, 3, v243
    s_mul_i32 s{S_T3}, s{S_T1}, 9216
    v_add_u32 v244, s{S_T3}, v1
    s_lshl_b32 s{S_T3}, s{S_T2}, 12
    v_add_u32 v245, s{S_T3}, v244
    s_waitcnt lgkmcnt(0)
    s_barrier
    """)
    R = 76
    for wv in range(4):
        for i in range(4):
            a(f"ds_read_b128 {vr(R + wv*20 + 4*i, 4)}, v245 offset:{wv*18432 + i*1024}")
        a(f"ds_read_b128 {vr(R + wv*20 + 16, 4)}, v244 offset:{wv*18432 + 8192}")
        if wv == 1: a("s_waitcnt lgkmcnt(4)")
    a.wait_vm(p_id)
    a("v_sub_f32 v240, 1.0, v240")
    a("v_sub_f32 v241, 1.0, v241")
    for i in range(20): a(f"v_add_f32 v{PB+i}, v{PB+i}, v{PB+20+i}")
    a("s_waitcnt lgkmcnt(0)")
    for i in range(20):
        a(f"v_add_f32 v{R+i}, v{R+i}, v{R+20+i}")
        a(f"v_add_f32 v{R+40+i}, v{R+40+i}, v{R+60+i}")
    for i in range(20):
        a(f"v_add_f32 v{R+i}, v{R+i}, v{R+40+i}")
    for i in range(20):
        a(f"v_fmac_f32 v{R+i}, v{PB+i}, v{240 if i < 16 else 241}")
    for j in range(10): a(f"v_cvt_pk_bf16_f32 v{4+j}, v{R+2*j}, v{R+2*j+1}")
    a(f"buffer_store_dwordx4 v[4:7], v242, {sr(R_OUT,4)}, s{S_OO} offen")
    a(f"buffer_store_dwordx4 v[8:11], v242, {sr(R_OUT,4)}, s{S_OO} offen offset:16")
    a(f"s_cmp_lg_u32 s{S_T2}, 0")
    a(f"s_cbranch_scc1 {name}_fin")
    a(f"buffer_store_dwordx2 v[12:13], v243, {sr(R_OUT,4)}, s{S_T0} offen offset:128")
    a.label(f"{name}_fin")
    if stamp.on:
        a("s_waitcnt vmcnt(0)")
        stamp('end')
        stamp.out(9)
    a.label(f"{name}_end")
    a("s_endpgm")
    return a, kdesc(name), dict(grid=256, block=256, lds=73728)
```

```python
S, D, F, NH, DH = 2048, 576, 4608, 32, 18
HF   = 0
HF_SZ = 16*288*4*1024
WDP  = HF + HF_SZ
WDP_SZ = 8*288*2304
WOP  = WDP + WDP_SZ
WOP_SZ = 8*36*2304
KV   = WOP + WOP_SZ
KVREC = 2432
KV_SZ = 32*64*KVREC
QF   = KV + KV_SZ
QF_SZ = 32*64*1024
QX   = QF + QF_SZ
QX_SZ = 32*64*128
OF   = QX + QX_SZ
OF_SZ = 32*36*2*1024
GB   = OF + OF_SZ
GB_SZ = 2048*4
BP   = GB + GB_SZ
BP_SZ = 2*16*8*36864
WS_USED = BP + BP_SZ
assert all(x % 128 == 0 for x in (WDP, WOP, KV, QF, QX, OF, GB, BP))
import math
QSCALE = (DH ** -0.5) * math.log2(math.e)
GELU_C1 = -2.0 * math.sqrt(2.0/math.pi) * math.log2(math.e)
GELU_C2 = GELU_C1 * 0.044715
GELU_K  = 1.0/0.044715
if __name__ == "__main__":
    print({k: v for k, v in globals().items() if k.isupper()})
```

```python
import sys
from k1 import gen_k1
from k2 import gen_k2, gen_k3
HEADER = open('gated_mix__softmax_full_mha__geglu_ffn__prompt.s.ref').read().split('; Override')[0]

def assemble(kernels):
    out = [HEADER.rstrip('\n')]
    for name, a, kd, l in kernels:
        out.append(f"; @launch kernel={name} grid=({l['grid']},1,1) block=({l['block']},1,1) lds={l['lds']}")
    out.append('.amdgcn_target "amdgcn-amd-amdhsa--gfx950"')
    out.append('.text')
    for name, a, kd, l in kernels:
        out.append(a.text())
    out.append('.section .rodata,"a"')
    for name, a, kd, l in kernels:
        out.append('.p2align 6')
        out.append(kd.strip())
    return '\n'.join(out) + '\n'

def build(opts=None, stamp=False):
    opts = dict(opts or {}); opts['stamp'] = stamp
    ks = []
    for nm, g in (("k1_kernel", gen_k1), ("k2_kernel", gen_k2), ("k3_kernel", gen_k3)):
        a, kd, l = g(nm, opts)
        ks.append((nm, a, kd, l))
    txt = assemble(ks)
    if stamp:
        txt = "".join("; stamps " + ",".join(k[1].stamps) + "\n" for k in ks) + txt
    return txt, ks

if __name__ == "__main__":
    txt, ks = build()
    for k in ks: print(k[0], "instrs", k[1].count, "nops", k[1].nops)
    open('full.s', 'w').write(txt)
    open('gated_mix__softmax_full_mha__geglu_ffn__prompt.s', 'w').write(txt)
    txt, ks = build(stamp=True)
    open('fullstamp.s', 'w').write(txt)
```

```python
import re

_REG = re.compile(r'\b([vsa])(\d+)\b|\b([vsa])\[(\d+):(\d+)\]')

def regs_of(op):
    out = []
    for m in _REG.finditer(op):
        if m.group(1):
            out.append((m.group(1), int(m.group(2))))
        else:
            for i in range(int(m.group(4)), int(m.group(5)) + 1):
                out.append((m.group(3), i))
    if re.search(r'\bvcc\b', op): out.append(('s', 'vcc'))
    if re.search(r'\bm0\b', op): out.append(('s', 'm0'))
    if re.search(r'\bexec\b', op): out.append(('s', 'exec'))
    return out

TRANS = ('v_exp_f32', 'v_rcp_f32', 'v_log_f32', 'v_rsq_f32', 'v_sqrt_f32', 'v_sin_f32', 'v_cos_f32')

def split_ops(s):
    ops, depth, cur = [], 0, ''
    for ch in s:
        if ch == '[': depth += 1
        if ch == ']': depth -= 1
        if ch == ',' and depth == 0:
            ops.append(cur.strip()); cur = ''
        else:
            cur += ch
    if cur.strip(): ops.append(cur.strip())
    return ops

class Ins:
    __slots__ = ('text', 'op', 'kind', 'wr', 'rd', 'srcc', 'passes', 'states', 'stdata', 'sdwa', 'ab')
    def __init__(self, text):
        self.text = text
        t = text.split(';')[0].strip()
        parts = t.split(None, 1)
        op = parts[0]
        self.op = op
        ops = split_ops(parts[1]) if len(parts) > 1 else []
        self.wr, self.rd, self.srcc, self.stdata, self.ab = set(), set(), set(), set(), set()
        self.passes = 0
        self.states = 1
        self.sdwa = ('dst_sel' in t) or ('op_sel' in t and not op.startswith('v_pk') )
        if op == 's_nop':
            self.kind = 'nop'; self.states = int(ops[0]) + 1
        elif op.startswith('v_mfma'):
            self.kind = 'mfma'
            self.passes = 8 if '32x32' in op else 4
            self.wr = set(regs_of(ops[0]))
            self.ab = set(regs_of(ops[1])) | set(regs_of(ops[2]))
            self.srcc = set(regs_of(ops[3].split()[0]))
            self.rd = self.ab | self.srcc
        elif op.startswith('v_'):
            self.kind = 'trans' if op.replace('_e32', '').replace('_e64', '') in TRANS else 'valu'
            if op.startswith('v_cmp'):
                self.wr = set(regs_of(ops[0]))
                if op.startswith('v_cmpx'): self.wr.add(('s', 'exec'))
                for o in ops[1:]: self.rd |= set(regs_of(o))
            elif op.startswith('v_permlane') and 'swap' in op:
                self.wr = set(regs_of(ops[0])) | set(regs_of(ops[1]))
                self.rd = set(self.wr)
            else:
                self.wr = set(regs_of(ops[0]))
                rest = ops[1:]
                if op.startswith(('v_add_co', 'v_addc_co', 'v_sub_co', 'v_subb_co', 'v_mad_u64', 'v_div_scale')):
                    self.wr |= set(regs_of(ops[1])); rest = ops[2:]
                for o in rest: self.rd |= set(regs_of(o))
                if op.startswith(('v_fmac', 'v_dot2c', 'v_mac')) or 'UNUSED_PRESERVE' in t:
                    self.rd |= set(regs_of(ops[0]))
        elif op.startswith('ds_'):
            self.kind = 'ds'
            if op.startswith(('ds_read', 'ds_bpermute', 'ds_permute', 'ds_swizzle')) or '_rtn' in op:
                self.wr = set(regs_of(ops[0]))
                for o in ops[1:]: self.rd |= set(regs_of(o))
            else:
                for o in ops: self.rd |= set(regs_of(o))
        elif op.startswith(('buffer_', 'global_', 'flat_')):
            self.kind = 'vmem'
            lds = bool(re.search(r'\blds\b', t)) or '_lds_' in op
            if 'load' in op and not lds:
                self.wr = set(regs_of(ops[0]))
                for o in ops[1:]: self.rd |= set(regs_of(o))
            else:
                for o in ops: self.rd |= set(regs_of(o))
                if lds: self.rd.add(('s', 'm0'))
                if 'store' in op and ('x4' in op or 'x3' in op):
                    d = ops[0] if op.startswith('buffer_') else ops[1]
                    self.stdata = set(regs_of(d))
                if 'atomic' in op and 'sc0' in t:
                    self.wr = set(regs_of(ops[0]))
        elif op.startswith('s_'):
            self.kind = 'salu'
            if op.startswith(('s_cmp', 's_cbranch', 's_branch', 's_waitcnt', 's_barrier', 's_endpgm', 's_setprio', 's_sleep', 's_bitcmp')):
                for o in ops: self.rd |= set(regs_of(o))
            else:
                if ops: self.wr = set(regs_of(ops[0]))
                for o in ops[1:]: self.rd |= set(regs_of(o))
                if 'saveexec' in op: self.wr.add(('s', 'exec'))
        else:
            raise ValueError('unknown op ' + text)

def need_states(p, c):
    n = 0
    pv = p.kind in ('valu', 'trans')
    cv = c.kind in ('valu', 'trans')
    vw = {r for r in p.wr if r[0] in 'va'}
    sw = {r for r in p.wr if r[0] == 's'}
    if pv:
        if c.kind == 'mfma' and vw & c.rd: n = max(n, 2)
        if c.kind == 'mfma' and ('s', 'exec') in p.wr: n = max(n, 4)
        if c.kind == 'vmem' and sw & c.rd: n = max(n, 5)
        if cv and sw & c.rd:
            n = max(n, 4 if c.op.startswith(('v_readlane', 'v_writelane')) else 2)
        if c.op.startswith(('v_readfirstlane', 'v_readlane')) and vw & c.rd: n = max(n, 1)
        if c.op.startswith('v_permlane') and vw & c.rd: n = max(n, 2)
        if cv and 'dpp' in c.text.lower() and vw & c.rd: n = max(n, 2)
        if cv and ('row_' in c.text or 'quad_perm' in c.text) and vw & c.rd: n = max(n, 2)
        if p.kind == 'trans' and c.kind == 'valu' and vw & c.rd: n = max(n, 1)
        if p.kind == 'trans' and c.kind in ('vmem', 'ds') and vw & c.rd: n = max(n, 1)
        if p.sdwa and cv and vw & (c.rd | c.wr): n = max(n, 1)
        if ('s', 'exec') in p.wr and c.op.startswith(('v_readlane', 'v_readfirstlane', 'v_writelane', 'v_permlane')): n = max(n, 4)
        if c.kind == 'salu' and sw & c.rd: n = max(n, 1)
    if p.kind == 'salu':
        if ('s', 'm0') in p.wr and ('s', 'm0') in c.rd and c.kind in ('vmem', 'ds'): n = max(n, 1)
        if ('s', 'exec') in p.wr and c.kind == 'mfma': n = max(n, 1)
    if p.kind == 'vmem' and p.stdata and (p.stdata & c.wr): n = max(n, 2)
    if p.kind == 'mfma':
        big = 12 if p.passes == 8 else 8
        if c.kind == 'mfma':
            if p.wr & c.ab: n = max(n, big)
            if p.wr & c.srcc:
                if not (p.wr == c.srcc and p.passes == c.passes): n = max(n, big - 2)
            elif p.wr & c.wr: n = max(n, big)
        elif c.kind in ('valu', 'trans', 'vmem', 'ds'):
            if p.wr & (c.rd | c.wr): n = max(n, big)
        if cv and p.srcc & c.wr: n = max(n, 7 if p.passes == 8 else 3)
        if c.kind in ('vmem', 'ds') and p.srcc & c.wr: n = max(n, 7 if p.passes == 8 else 3)
    return n

class Asm:
    def __init__(self):
        self.lines = []
        self.hists = [[]]
        self.vmr = {'A': 0, 'B': 0}
        self.role = None
        self.lg = 0
        self.nops = 0
        self.count = 0
    def raw(self, s):
        self.lines.append(s)
    def comment(self, s):
        self.lines.append('  ; ' + s)
    def label(self, name):
        self.lines.append(name + ':')
    def fence(self):
        need = 0
        for h in self.hists:
            dist = 0
            for p, st in reversed(h):
                if dist >= 16: break
                if p.kind == 'mfma': w = 12 if p.passes == 8 else 8
                elif p.kind in ('valu', 'trans'): w = 5 if any(r[0] == 's' for r in p.wr) else 2
                elif p.kind == 'vmem' and p.stdata: w = 2
                elif p.kind == 'salu' and ('s', 'm0') in p.wr: w = 1
                else: w = 0
                need = max(need, w - dist)
                dist += st
        if need > 0: self._nop(need)
        self.hists = [[]]
    def _push(self, i):
        ent = (i, i.states)
        for h in self.hists:
            h.append(ent)
            if len(h) > 200: del h[:100]
        if len(self.hists) > 1:
            uniq = []
            for h in self.hists:
                if not any(len(h) >= 20 and len(u) >= 20 and all(x is y for x, y in zip(h[-20:], u[-20:])) for u in uniq):
                    uniq.append(h)
            self.hists = uniq
    def _nop(self, n):
        while n > 0:
            k = min(n, 16)
            self.lines.append(f'  s_nop {k-1}')
            self._push(Ins(f's_nop {k-1}'))
            self.nops += 1
            n -= k
    def __call__(self, text):
        for t in text.strip().split('\n'):
            t = t.strip()
            if not t or t.startswith(';'):
                continue
            self.emit(t)
    def need_for(self, c):
        need = 0
        for h in self.hists:
            dist = 0
            for p, st in reversed(h):
                need = max(need, need_states(p, c) - dist)
                dist += st
                if dist >= 16: break
        return need
    def emit(self, text):
        if getattr(self, 'drop', None) and self.drop(text): return dict(self.vmr)
        c = Ins(text)
        need = self.need_for(c)
        if need > 0: self._nop(need)
        self.lines.append('  ' + text)
        ent = (c, c.states)
        for h in self.hists:
            h.append(ent)
            if len(h) > 200: del h[:100]
        if len(self.hists) > 1:
            uniq = []
            for h in self.hists:
                if not any(len(h) >= 20 and len(u) >= 20 and all(x is y for x, y in zip(h[-20:], u[-20:])) for u in uniq):
                    uniq.append(h)
            self.hists = uniq
        self.count += 1
        if c.kind == 'vmem':
            for r in ('A', 'B'):
                if self.role in (None, r): self.vmr[r] += 1
            return dict(self.vmr)
        if c.kind == 'ds':
            self.lg += 1
            return self.lg
        return None
    def snapshot(self):
        return [list(h) for h in self.hists]
    def restore(self, snap):
        self.hists = [list(h) for h in snap]
    def merge(self, snap):
        self.hists = self.hists + [list(h) for h in snap]
    def skip_begin(self):
        return self.snapshot()
    def skip_end(self, mark):
        self.merge(mark)
    def wait_vm(self, idx, extra=0):
        roles = ('A', 'B') if self.role is None else (self.role,)
        n = min(self.vmr[r] - idx[r] for r in roles) + extra
        self.emit(f's_waitcnt vmcnt({max(0,min(n, 63))})')
    def wait_lg(self, idx):
        n = self.lg - idx
        self.emit(f's_waitcnt lgkmcnt({max(0,min(n, 15))})')
    def text(self):
        return '\n'.join(self.lines) + '\n'

def vr(a, n=1):
    return f'v{a}' if n == 1 else f'v[{a}:{a+n-1}]'
def sr(a, n=1):
    return f's{a}' if n == 1 else f's[{a}:{a+n-1}]'
```

```python
import struct
from asmdsl import *
from layout import *

def f2u(x): return struct.unpack('<I', struct.pack('<f', x))[0]
OOB = 0x80000000

def load_kernargs(a):
    a("""
    s_load_dwordx16 s[4:19], s[0:1], 0
    s_load_dwordx4 s[20:23], s[0:1], 64
    s_load_dwordx2 s[24:25], s[0:1], 80
    """)
P_X, P_QKV, P_WO, P_WG, P_WU, P_WD, P_GW, P_OUT, P_DBG, P_WS = 4, 6, 8, 12, 14, 16, 18, 20, 22, 24

WSBASE = [0]
STFLAG = [""]
def make_srd(a, d, p, nbytes):
    if p == P_WS and WSBASE[0]:
        a(f"s_add_u32 s{d}, s{p}, {WSBASE[0]}")
        a(f"s_addc_u32 s{d+1}, s{p+1}, 0")
        a(f"s_and_b32 s{d+1}, s{d+1}, 0xffff")
    else:
        a(f"s_mov_b32 s{d}, s{p}")
        a(f"s_and_b32 s{d+1}, s{p+1}, 0xffff")
    a(f"s_mov_b32 s{d+2}, {nbytes}")
    a(f"s_mov_b32 s{d+3}, 0x00020000")

def kdesc(name, vgpr=256):
    return f"""
.amdhsa_kernel {name}
  .amdhsa_next_free_vgpr {vgpr}
  .amdhsa_next_free_sgpr 102
  .amdhsa_accum_offset {(vgpr+3)//4*4}
  .amdhsa_group_segment_fixed_size 0
  .amdhsa_kernarg_size 88
  .amdhsa_user_sgpr_count 2
  .amdhsa_user_sgpr_kernarg_segment_ptr 1
  .amdhsa_system_sgpr_workgroup_id_x 1
.end_amdhsa_kernel
"""

class Stamper:
    def __init__(self, a, on, vreg, s_w, r_ws, base):
        self.a, self.on, self.v, self.s_w, self.r_ws, self.base = a, on, vreg, s_w, r_ws, base
        self.labels = []
    def __call__(self, label, idx=None):
        if not self.on: return
        if idx == -1: return
        if idx is None and getattr(self, 'keep', None) is not None and label not in self.keep: return -1
        a = self.a
        if idx is None:
            i = len(self.labels); self.labels.append(label)
        else: i = idx
        if i == 0:
            a("s_memrealtime s[100:101]")
            a("s_waitcnt lgkmcnt(0)")
            a(f"v_writelane_b32 v{self.v}, s100, 62")
        a("s_memrealtime s[100:101]" if getattr(self, 'real', False) else "s_memtime s[100:101]")
        a("s_waitcnt lgkmcnt(0)")
        a(f"v_writelane_b32 v{self.v}, s100, {i}")
        return i
    def out(self, tmp):
        if not self.on: return
        a = self.a
        a("s_memrealtime s[100:101]")
        a("s_waitcnt lgkmcnt(0)")
        a(f"v_writelane_b32 v{self.v}, s100, 63")
        a("s_memtime s[100:101]")
        a("s_waitcnt lgkmcnt(0)")
        a(f"v_writelane_b32 v{self.v}, s100, 61")
        a(f"s_lshl_b32 s100, s2, 3")
        a(f"s_add_u32 s100, s100, s{self.s_w}")
        a(f"s_lshl_b32 s100, s100, 8")
        a(f"s_add_u32 s100, s100, {self.base}")
        a(f"s_add_u32 s{self.r_ws+2}, s{self.r_ws+2}, {4<<20}")
        a(f"v_lshlrev_b32 v{tmp}, 2, v0")
        a(f"buffer_store_dword v{self.v}, v{tmp}, {sr(self.r_ws,4)}, s100 offen")
```

```python
from common import *

def gen_k1(name="k1_kernel", opts=None):
    opts = opts or {}
    a = Asm()
    XF = lambda u, ks: 112 + (ks*2+u)*4
    ACC = lambda t, u: 48 + (t*2+u)*4
    WF = lambda i: 24 + (i % 6)*4
    V_TRB, V_DMA, V_DMAQ, V_HST, V_XD0, V_XD1, V_XR = 1, 2, 3, 4, 5, 6, 7
    V_DMAG = V_XD0
    V_GUB = V_XD1
    V_TR = [20, 21]; V_TS = 22; V_STAMP = 23
    T = 8
    OUT = 12
    V_XA = [18, 19]
    V_GU = V_XR
    QA = 96
    R_X, R_G, R_U, R_Q, R_WS, R_GW = 28, 32, 36, 40, 44, 52
    S_W, S_XCD, S_B, S_MB, S_J, S_L = 56, 57, 58, 59, 60, 61
    S_TOK, S_T0, S_T1, S_T2, S_T3 = 62, 63, 64, 65, 66
    S_GOFF, S_HB, S_G2O, S_QO = 67, 68, 69, 70
    S_K, S_C2G = 76, 77
    S_XB, S_TT, S_GT = 78, 79, 80
    S_WB = 85
    S_PK, S_PKA, S_PKB, S_PKC, S_PKD, S_PKNB, S_PKON = 86, 87, 88, 89, 90, 91, 92
    S_U = 93
    S_PKL = 81
    S_CR, S_H2 = 82, 83
    SLOT = [0, 49152, 98304]
    NST = 15
    def stage_info(s):
        if s < 9: return 0, 2*s, 2
        if s < 12: return 2, 6*(s-9), 6
        return 1, 6*(s-12), 6
    stamp = Stamper(a, opts.get('stamp', False), V_STAMP, S_W, R_WS, WS_USED)
    a.stamps = stamp.labels
    stamp.keep = opts.get('keep1')
    if opts.get('nostore'): a.drop = lambda t: t.startswith('buffer_store_dwordx')
    lab = [0]
    def newlab():
        lab[0] += 1; return f"{name}_l{lab[0]}"

    a.raw(f".globl {name}\n.p2align 8\n.type {name},@function\n{name}:")
    a("s_cmp_ge_u32 s2, 256")
    a(f"s_cbranch_scc1 {name}_end")
    stamp('start')
    load_kernargs(a)
    a(f"""
    v_lshrrev_b32 v1, 6, v0
    v_and_b32 v0, 63, v0
    s_and_b32 s{S_XCD}, s2, 7
    v_readfirstlane_b32 s{S_W}, v1
    s_lshr_b32 s{S_T0}, s2, 3
    s_and_b32 s{S_B}, s{S_T0}, 3
    s_lshr_b32 s{S_MB}, s{S_T0}, 2
    s_lshl_b32 s{S_J}, s{S_XCD}, 2
    s_add_u32 s{S_J}, s{S_J}, s{S_B}
    s_mul_i32 s{S_L}, s{S_XCD}, 9
    s_lshl_b32 s{S_T1}, s{S_B}, 1
    s_add_u32 s{S_L}, s{S_L}, s{S_T1}
    s_lshl_b32 s{S_GOFF}, s{S_L}, 7
    s_lshl_b32 s{S_TT}, s{S_MB}, 3
    s_add_u32 s{S_TT}, s{S_TT}, s{S_W}
    s_mul_i32 s{S_TOK}, s{S_TT}, {32*1152}
    s_lshl_b32 s{S_WB}, s{S_W}, 10
    s_lshl_b32 s{S_XB}, s{S_W}, 12
    s_add_u32 s{S_XB}, s{S_XB}, 16384
    """)
    if opts.get('ctouch', True):
        a("s_getpc_b64 s[26:27]")
        a.label(f"{name}_pc")
        a(f"""
        s_lshr_b32 s{S_T0}, s2, 3
        s_lshl_b32 s{S_T0}, s{S_T0}, 3
        s_add_u32 s{S_T0}, s{S_T0}, s{S_W}
        s_lshl_b32 s{S_T0}, s{S_T0}, 8
        v_and_b32 v8, 1, v0
        v_lshlrev_b32 v8, 7, v8
        v_add_u32 v8, s{S_T0}, v8
        v_min_u32 v8, all_code_end-{name}_pc-4, v8
        s_mov_b32 m0, 163584
        global_load_lds_dword v8, s[26:27]
        """)
    a(f"""
    v_lshrrev_b32 v8, 3, v0
    v_lshrrev_b32 v9, 4, v0
    v_xor_b32 v9, v9, v0
    v_and_b32 v9, 7, v9
    v_mul_u32_u24 v10, 1152, v8
    v_lshl_add_u32 v{V_XD0}, v9, 4, v10
    v_xor_b32 v9, 4, v9
    v_add_u32 v10, {8*1152}, v10
    v_lshl_add_u32 v{V_XD1}, v9, 4, v10
    """)
    a(f"""
    s_and_b32 s{S_T0}, s{S_W}, 1
    s_lshl_b32 s{S_T0}, s{S_T0}, 1
    v_bfe_u32 v13, v0, 4, 1
    v_or_b32 v13, s{S_T0}, v13
    v_bfe_u32 v14, v0, 1, 2
    v_xor_b32 v13, v13, v14
    v_lshlrev_b32 v13, 5, v13
    v_and_b32 v14, 1, v0
    v_lshl_add_u32 v13, v14, 4, v13
    s_lshl_b32 s{S_T0}, s{S_W}, 3
    v_add_u32 v14, s{S_T0}, v8
    v_mul_u32_u24 v15, 9216, v14
    v_add_u32 v{V_DMA}, v13, v15
    """)
    a("s_waitcnt lgkmcnt(0)")
    stamp('karg')
    make_srd(a, R_X, P_X, 2048*1152)
    make_srd(a, R_G, P_WG, 576*9216)
    make_srd(a, R_U, P_WU, 576*9216)

    dma_id = {}
    def note(stage, idd):
        d = dma_id.setdefault(stage, {})
        for r in ('A', 'B'):
            if a.role in (None, r): d[r] = idd[r]
    def dma(stage):
        if stage >= NST: return
        grp, k0, nk = stage_info(stage)
        slot = SLOT[stage % 3]
        if opts.get('nodma') and stage > 2:
            if stage == 9:
                a(f"v_mov_b32 v{V_DMAG}, v{V_G2S}")
                a(f"v_mov_b32 v{V_GUB}, v{V_G2S+1}")
            note(stage, dict(a.vmr)); return
        if grp == 0:
            a(f"s_add_u32 s{S_T0}, s{S_GOFF}, {k0*32*9216}")
            for i in range(2):
                a(f"s_add_u32 m0, s{S_WB}, {slot + i*8192}")
                a(f"buffer_load_dwordx4 v{V_DMA}, {sr(R_G if i == 0 else R_U,4)}, s{S_T0} offen lds")
            for i in range(4):
                if i % 2 == 0: a(f"s_add_u32 s{S_T0}, s{S_TOK}, {k0*64 + (i>>1)*16*1152}")
                a(f"s_add_u32 m0, s{S_XB}, {slot + i*1024}")
                note(stage, a.emit(f"buffer_load_dwordx4 v{V_XD1 if i & 1 else V_XD0}, {sr(R_X,4)}, s{S_T0} offen lds"))
        elif grp == 1:
            for i in range(3):
                a(f"s_add_u32 s{S_T0}, s{S_GOFF}, {(k0*32 + i*64)*9216 + 128}")
                for gu in range(2):
                    a(f"s_add_u32 m0, s{S_WB}, {slot + gu*24576 + i*8192}")
                    note(stage, a.emit(f"buffer_load_dwordx4 v{V_DMA}, {sr(R_U if gu else R_G,4)}, s{S_T0} offen lds"))
        else:
            if stage == 9:
                a(f"v_mov_b32 v{V_DMAG}, v{V_G2S}")
                a(f"v_mov_b32 v{V_GUB}, v{V_G2S+1}")
            a(f"s_add_u32 s{S_T0}, s{S_G2O}, {k0*32*9216}")
            for gu in range(2):
                a(f"s_add_u32 m0, s{S_WB}, {slot + gu*8192}")
                a(f"buffer_load_dwordx4 v{V_DMAG}, {sr(R_U if gu else R_G,4)}, s{S_T0} offen lds")
            for i in range(3):
                a(f"s_add_u32 s{S_T0}, s{S_QO}, {(k0*32 + i*64)*3456}")
                a(f"s_add_u32 m0, s{S_WB}, {slot + 16384 + i*8192}")
                note(stage, a.emit(f"buffer_load_dwordx4 v{V_DMAQ}, {sr(R_Q,4)}, s{S_T0} offen lds"))
    def g2_dma_setup():
        a(f"""
        v_lshrrev_b32 v8, 1, v0
        v_and_b32 v9, 0x13, v8
        v_bfe_u32 v10, v8, 2, 1
        v_lshl_or_b32 v9, v10, 3, v9
        v_bfe_u32 v10, v8, 3, 1
        v_lshl_or_b32 v9, v10, 2, v9
        s_lshl_b32 s{S_T0}, s{S_W}, 5
        v_add_u32 v9, s{S_T0}, v9
        v_mul_u32_u24 v9, 9216, v9
        v_and_b32 v10, 1, v0
        v_lshl_add_u32 v9, v10, 4, v9
        s_cmp_lt_u32 s{S_W}, 6
        s_cselect_b32 s{S_T0}, 0, {OOB}
        v_or_b32 v250, s{S_T0}, v9
        v_bfe_u32 v8, v0, 2, 2
        v_lshrrev_b32 v9, 5, v0
        v_lshl_add_u32 v9, v9, 4, v8
        v_bfe_u32 v10, v0, 4, 1
        v_lshl_add_u32 v9, v10, 2, v9
        v_lshlrev_b32 v9, 5, v9
        v_and_b32 v10, 3, v0
        v_lshl_add_u32 v251, v10, 3, v9
        """)

    class only:
        def __init__(self, role): self.role = role
        def __enter__(self):
            self.l = newlab()
            a(f"s_cmp_ge_u32 s{S_W}, 4")
            a(f"s_cbranch_scc{'1' if self.role=='A' else '0'} {self.l}")
            self.m = a.skip_begin(); a.role = self.role
        def __exit__(self, *e):
            a.skip_end(self.m); a.role = None
            a.label(self.l)


    SCR = 163840 - 256
    R_TK = [48, 4, 8, 12]
    V_TK = [9, 252, 253, 254]; V_TPK = 255; V_G2S = 250
    TOUCH = opts.get('touch', True)
    def touch(kind):
        if not TOUCH: return
        a(f"s_mov_b32 m0, {SCR}")
        a(f"buffer_load_dword v{V_TK[kind]}, {sr(R_TK[kind],4)}, 0 offen lds")
    def touch_setup(kind):
        R_T = R_TK[kind]
        if not TOUCH: return
        a(f"s_lshr_b32 s{S_T3}, s2, 3")
        if kind in (0, 1):
            x0, nx, kb, nw = ((2, 3, 0, 8), (5, 4, 2, 6))[kind]
            a(f"""
            v_mul_u32_u24 v9, 1152, v0
            v_lshrrev_b32 v10, 2, v0
            v_mul_u32_u24 v10, 9216, v10
            v_and_b32 v11, 3, v0
            v_lshl_add_u32 v10, v11, 8, v10
            v_cmp_gt_u32 vcc, 24, v0
            v_mov_b32 v11, {OOB}
            v_cndmask_b32 v10, v11, v10, vcc
            s_mul_i32 s{S_T0}, s{S_T3}, {64*1152}
            s_lshl_b32 s{S_T1}, s{S_W}, 7
            s_add_u32 s{S_T0}, s{S_T0}, s{S_T1}
            s_add_u32 s{S_T0}, s{S_T0}, {x0*128}
            s_bfe_u32 s{S_T1}, s{S_W}, 0x10001
            s_mul_i32 s{S_T1}, s{S_T1}, 192
            s_mul_i32 s{S_T2}, s{S_T3}, 6
            s_add_u32 s{S_T1}, s{S_T1}, s{S_T2}
            s_add_u32 s{S_T1}, s{S_T1}, {kb*192}
            s_mul_i32 s{S_T1}, s{S_T1}, 9216
            s_mul_i32 s{S_T2}, s{S_XCD}, 1152
            s_add_u32 s{S_T1}, s{S_T1}, s{S_T2}
            s_bitcmp1_b32 s{S_W}, 0
            s_cselect_b32 s{R_T}, s{R_U}, s{R_G}
            s_cselect_b32 s{R_T+1}, s{R_U+1}, s{R_G+1}
            s_cmp_lt_u32 s{S_W}, 4
            s_cselect_b32 s{R_T}, s{R_X}, s{R_T}
            s_cselect_b32 s{R_T+1}, s{R_X+1}, s{R_T+1}
            s_cselect_b32 s{R_T+2}, s{R_X+2}, s{R_G+2}
            s_cselect_b32 s{S_T0}, s{S_T0}, s{S_T1}
            s_cselect_b64 vcc, -1, 0
            v_cndmask_b32 v9, v10, v9, vcc
            s_bitcmp1_b32 {((1 << nx) - 1) | (((1 << nw) - 1) & 0xf0)}, s{S_W}
            """)
        elif kind == 2:
            a(f"""
            v_lshrrev_b32 v9, 3, v0
            s_lshl_b32 s{S_T1}, s{S_W}, 3
            v_add_u32 v9, s{S_T1}, v9
            v_and_b32 v10, 7, v0
            v_min_u32 v10, 4, v10
            v_cmp_gt_u32 vcc, 18, v9
            v_mul_u32_u24 v9, 3456, v9
            v_lshlrev_b32 v10, 7, v10
            v_min_u32 v10, 428, v10
            v_add_u32 v9, v9, v10
            v_mov_b32 v11, {OOB}
            v_cndmask_b32 v9, v11, v9, vcc
            v_mul_u32_u24 v10, 9216, v0
            v_cmp_gt_u32 vcc, 18, v0
            v_cndmask_b32 v10, v11, v10, vcc
            s_mul_i32 s{S_T0}, s{S_T3}, {18*3456}
            s_mul_i32 s{S_T1}, s{S_XCD}, 432
            s_add_u32 s{S_T0}, s{S_T0}, s{S_T1}
            s_mul_i32 s{S_T1}, s{S_T3}, {18*9216}
            s_add_u32 s{S_T1}, s{S_T1}, s{S_G2O}
            s_bitcmp1_b32 s{S_W}, 0
            s_cselect_b32 s{R_T}, s{R_U}, s{R_G}
            s_cselect_b32 s{R_T+1}, s{R_U+1}, s{R_G+1}
            s_cmp_lt_u32 s{S_W}, 4
            s_cselect_b32 s{R_T}, s{R_Q}, s{R_T}
            s_cselect_b32 s{R_T+1}, s{R_Q+1}, s{R_T+1}
            s_cselect_b32 s{R_T+2}, s{R_Q+2}, s{R_G+2}
            s_cselect_b32 s{S_T0}, s{S_T0}, s{S_T1}
            s_cselect_b64 vcc, -1, 0
            v_cndmask_b32 v9, v10, v9, vcc
            s_bitcmp1_b32 0x37, s{S_W}
            """)
        else:
            a(f"""
            v_lshrrev_b32 v9, 2, v0
            v_mul_u32_u24 v9, 9216, v9
            v_and_b32 v11, 3, v0
            v_lshl_add_u32 v9, v11, 8, v9
            v_cmp_gt_u32 vcc, 24, v0
            v_mov_b32 v11, {OOB}
            v_cndmask_b32 v9, v11, v9, vcc
            s_lshr_b32 s{S_T1}, s{S_W}, 1
            s_mul_i32 s{S_T1}, s{S_T1}, 192
            s_mul_i32 s{S_T2}, s{S_T3}, 6
            s_add_u32 s{S_T1}, s{S_T1}, s{S_T2}
            s_mul_i32 s{S_T1}, s{S_T1}, 9216
            s_mul_i32 s{S_T2}, s{S_XCD}, 1152
            s_add_u32 s{S_T0}, s{S_T1}, s{S_T2}
            s_add_u32 s{S_T0}, s{S_T0}, 128
            s_bitcmp1_b32 s{S_W}, 0
            s_cselect_b32 s{R_T}, s{R_U}, s{R_G}
            s_cselect_b32 s{R_T+1}, s{R_U+1}, s{R_G+1}
            s_mov_b32 s{R_T+2}, s{R_G+2}
            s_bitcmp1_b32 0x3f, s{S_W}
            """)
        a(f"""
        s_cselect_b32 s{R_T+2}, s{R_T+2}, 0
        s_mov_b32 s{R_T+3}, 0x00020000
        s_mov_b32 s{14+kind}, s{R_T+2}
        v_add_u32 v{V_TK[kind]}, s{S_T0}, v9
        """)

    dma(0)
    d1 = [0]
    def dma1_piece():
        i = d1[0]; d1[0] += 1
        slot = SLOT[1]
        if i < 2:
            a(f"s_add_u32 s71, s{S_GOFF}, {2*32*9216}")
            a(f"s_add_u32 m0, s{S_WB}, {slot + i*8192}")
            a(f"buffer_load_dwordx4 v{V_DMA}, {sr(R_G if i == 0 else R_U,4)}, s71 offen lds")
        elif i < 6:
            i -= 2
            a(f"s_add_u32 s71, s{S_TOK}, {2*64 + (i>>1)*16*1152}")
            a(f"s_add_u32 m0, s{S_XB}, {slot + i*1024}")
            note(1, a.emit(f"buffer_load_dwordx4 v{V_XD1 if i & 1 else V_XD0}, {sr(R_X,4)}, s71 offen lds"))
    a(f"""
    v_mul_u32_u24 v15, 3456, v14
    v_add_u32 v15, v13, v15
    v_cmp_eq_u32 vcc, 112, v13
    v_mov_b32 v16, {OOB}
    v_cndmask_b32 v{V_DMAQ}, v15, v16, vcc
    """)
    make_srd(a, R_Q, P_QKV, 576*3456)
    make_srd(a, R_WS, P_WS, WS_USED)
    a(f"""
    s_lshr_b32 s{S_HB}, s{S_TT}, 2
    s_mul_i32 s{S_HB}, s{S_HB}, {288*4096}
    s_and_b32 s{S_T0}, s{S_TT}, 3
    s_lshl_b32 s{S_T0}, s{S_T0}, 10
    s_add_u32 s{S_HB}, s{S_HB}, s{S_T0}
    s_mov_b32 s{S_K}, {f2u(GELU_K)}
    s_mov_b32 s{S_C2G}, {f2u(GELU_C2)}
    s_mul_i32 s{S_G2O}, s{S_XCD}, {9*128}
    s_add_u32 s{S_G2O}, s{S_G2O}, {8*128}
    s_lshl_b32 s{S_T0}, s{S_B}, 5
    s_add_u32 s{S_G2O}, s{S_G2O}, s{S_T0}
    s_mul_i32 s{S_QO}, s{S_J}, 108
    s_lshl_b32 s{S_T0}, s{S_MB}, 8
    s_lshl_b32 s{S_T1}, s{S_J}, 3
    s_add_u32 s{S_T0}, s{S_T0}, s{S_T1}
    s_add_u32 s{S_GT}, s{S_T0}, s{S_W}
    """)
    make_srd(a, R_GW, P_GW, 1152)
    dma1_piece()
    a(f"""
    v_lshrrev_b32 v12, 4, v0
    v_bfe_u32 v13, v0, 2, 2
    v_lshl_add_u32 v14, v12, 3, v13
    v_lshlrev_b32 v14, 7, v14
    v_bfe_u32 v15, v0, 3, 2
    v_lshl_add_u32 v14, v15, 5, v14
    v_and_b32 v15, 3, v0
    v_lshl_add_u32 v{V_TRB}, v15, 3, v14
    v_lshrrev_b32 v14, 5, v0
    v_lshlrev_b32 v14, 12, v14
    v_bfe_u32 v15, v0, 4, 1
    v_lshl_add_u32 v14, v15, 9, v14
    v_and_b32 v15, 15, v0
    v_lshl_add_u32 v{V_HST}, v15, 4, v14
    v_bfe_u32 v14, v0, 1, 3
    v_xor_b32 v14, v14, v12
    v_lshlrev_b32 v14, 4, v14
    v_lshl_add_u32 v14, v15, 7, v14
    v_add_u32 v{V_XR}, s{S_XB}, v14
    """)
    g_id = {}
    def g_load():
        a(f"""
        v_lshlrev_b32 v8, 4, v0
        v_lshlrev_b32 v9, 2, v0
        v_cmp_gt_u32 vcc, 32, v0
        v_mov_b32 v10, {OOB}
        v_cndmask_b32 v9, v10, v9, vcc
        s_mul_i32 s{S_T1}, s{S_GT}, 1152
        buffer_load_dwordx4 v[12:15], v8, {sr(R_X,4)}, s{S_T1} offen
        buffer_load_dword v3, v9, {sr(R_X,4)}, s{S_T1} offen offset:1024
        buffer_load_dwordx4 v[16:19], v8, {sr(R_GW,4)}, 0 offen
        """)
        g_id[0] = a.emit(f"buffer_load_dword v5, v9, {sr(R_GW,4)}, 0 offen offset:1024")
    def g_compute():
        a.wait_vm(g_id[0])
        a("v_mov_b32 v8, 0")
        a("v_dot2_f32_bf16 v8, v3, v5, v8")
        for i in range(4):
            a(f"v_dot2_f32_bf16 v8, v{12+i}, v{16+i}, v8")
        a("s_nop 3")
        a(f"""
        v_add_f32_dpp v8, v8, v8 quad_perm:[1,0,3,2] row_mask:0xf bank_mask:0xf
        v_add_f32_dpp v8, v8, v8 quad_perm:[2,3,0,1] row_mask:0xf bank_mask:0xf
        v_add_f32_dpp v8, v8, v8 row_half_mirror row_mask:0xf bank_mask:0xf
        v_add_f32_dpp v8, v8, v8 row_mirror row_mask:0xf bank_mask:0xf
        v_readlane_b32 s{S_T0}, v8, 16
        v_readlane_b32 s{S_T2}, v8, 32
        v_readlane_b32 s{S_T1}, v8, 48
        v_add_f32 v8, s{S_T0}, v8
        v_add_f32 v8, s{S_T2}, v8
        v_add_f32 v8, s{S_T1}, v8
        v_mul_f32 v8, {f2u(-1.4426950408889634)}, v8
        v_exp_f32 v8, v8
        v_cmp_eq_u32 vcc, 0, v0
        v_add_f32 v8, 1.0, v8
        v_rcp_f32 v8, v8
        v_mov_b32 v9, {OOB}
        v_cndmask_b32 v9, v9, v0, vcc
        s_lshl_b32 s{S_T0}, s{S_GT}, 2
        s_add_u32 s{S_T0}, s{S_T0}, {GB}
        buffer_store_dword v8, v9, {sr(R_WS,4)}, s{S_T0} offen
        """)

    def do_barrier(stage):
        a.wait_vm(dma_id[stage])
        a("s_waitcnt lgkmcnt(0)")
        a("s_barrier")

    PORD = {0: (0, 1, 2, 3), 1: (3, 0, 1, 2)}
    def tiles_of(grp):
        if grp < 2:
            up = 8192 if grp == 0 else 24576
            out = []
            for p in PORD[grp]:
                out.append((2*p, ('x', p), 0, 4096, 512, False))
                out.append((2*p+1, ('x', p), up, 4096, 512, False))
            return out
        return [(0, ('r', V_GU), 0, 1024, 256, False), (1, ('r', V_GU), 8192, 1024, 256, False)] + \
               [(2+t, ('x', t), 16384, 4096, 512, True) for t in range(4)]

    V_TS2 = V_GU
    def pre_stage(stage):
        grp, k0, nk = stage_info(stage)
        slot = SLOT[stage % 3]
        if stage == 14:
            a(f"v_add_u32 v{V_TS2}, {slot}, v{V_TRB}")
            return
        a(f"v_add_u32 v{V_TS}, {slot}, v{V_TRB}")
        if grp == 0:
            a(f"v_add_u32 v{V_XA[0]}, {slot}, v{V_XR}")
            a(f"v_xor_b32 v{V_XA[1]}, 64, v{V_XA[0]}")
        if grp == 2:
            a(f"v_add_u32 v{V_GU}, {slot}, v{V_GUB}")

    class Stage:
        def __init__(self, s, fbase):
            self.s = s; self.fbase = fbase
            self.grp, self.k0, self.nk = stage_info(s)
            self.tl = tiles_of(self.grp)
            nt = len(self.tl)
            if s == 13: segs = [(0, 13), (1, 13)]
            elif s == 14:
                segs = [(0, 14), (1, 14)]
                for ti in range(2, nt): segs += [(ti, 13), (ti, 14)]
            else: segs = [(ti, s) for ti in range(nt)]
            self.frags, self.mf = [], []
            ch = 2 if self.nk == 2 else 3
            for ti, ds in segs:
                for h in range(self.nk // ch):
                    base = len(self.frags)
                    for f in range(ch): self.frags.append((ti, h*ch + f, ds))
                    for u in ((0, 1) if h == 0 else (1, 0)):
                        for f in range(ch): self.mf.append((base + f, u))
            self.last_use = {}
            for i, (f, u) in enumerate(self.mf): self.last_use[f] = i
            rq = [('w', f, sec) for f in range(len(self.frags)) for sec in range(2)]
            if self.grp == 0:
                xr = [('x', u, kk) for u in range(2) for kk in range(2)]
                rq = rq[:2] + xr[:1] + rq[2:4] + xr[1:] + rq[4:]
            self.rq = rq
            self.reset()
        def reset(self):
            self.rp = 0; self.rid = {}; self.xid = {}; self.cur = None; self.naddr = 0; self.waited = 0
        def state(self): return (self.rp, dict(self.rid), dict(self.xid), self.cur, self.naddr, self.waited)
        def set_state(self, st): self.rp, self.rid, self.xid, self.cur, self.naddr, self.waited = st[0], dict(st[1]), dict(st[2]), st[3], st[4], st[5]
        def slot_free(self, f, done, prev, prev_done):
            g = f - 6
            if g >= 0: return self.last_use[g] < done
            if prev is None: return True
            return prev.last_use[len(prev.frags) + g] < prev_done
        def can_read(self, done, prev=None, prev_done=10**9):
            if self.rp >= len(self.rq): return False
            r = self.rq[self.rp]
            return r[0] == 'x' or self.slot_free(r[1], done, prev, prev_done)
        def issue_read(self):
            r = self.rq[self.rp]; self.rp += 1
            if r[0] == 'x':
                _, u, kk = r
                self.xid[(u, kk)] = a.emit(f"ds_read_b128 {vr(XF(u,self.k0+kk),4)}, v{V_XA[kk]} offset:{u*2048}")
                return
            _, f, sec = r
            ti, ks, ds = self.frags[f]
            t, ak, base, kst, sst, sw = self.tl[ti]
            if ak[0] == 'x':
                if self.cur != (ak, ds):
                    self.naddr += 1
                    a(f"v_xor_b32 v{V_TR[self.naddr & 1]}, {ak[1] << 5}, v{V_TS2 if ds == 14 else V_TS}")
                    self.cur = (ak, ds)
                reg = V_TR[self.naddr & 1]
            else:
                reg = ak[1]
            self.rid[f] = a.emit(f"ds_read_b64_tr_b16 {vr(WF(self.fbase+f)+2*sec,2)}, v{reg} offset:{base + ks*kst + sec*sst}")
        def mfma(self, i):
            f, u = self.mf[i]
            ti, ks, ds = self.frags[f]
            t, ak, base, kst, sst, sw = self.tl[ti]
            need = self.rid[f]
            if self.grp == 0: need = max(need, self.xid[(u, ks)])
            if need > self.waited:
                a.wait_lg(need); self.waited = need
            kk = stage_info(ds)[1] + ks
            acc = vr(ACC(t, u), 4)
            c = "0" if kk == 0 else acc
            wv, xv = vr(WF(self.fbase+f), 4), vr(XF(u, kk), 4)
            A_, B_ = (xv, wv) if sw else (wv, xv)
            if not opts.get('nomfma'): a(f"v_mfma_f32_16x16x32_bf16 {acc}, {A_}, {B_}, {c}")
        def tile_done_at(self, t):
            return max(i for i, (f, u) in enumerate(self.mf) if self.tl[self.frags[f][0]][0] == t)

    def gelu4(g, up, out2):
        t = T
        L = []
        for j in range(4): L.append(f"v_mul_f32 v{up+j}, v{g+j}, v{up+j}")
        for j in range(4): L.append(f"v_fma_f32 v{t+j}, v{g+j}, v{g+j}, s{S_K}")
        for j in range(4): L.append(f"v_mul_f32 v{g+j}, s{S_C2G}, v{g+j}")
        for j in range(4): L.append(f"v_mul_f32 v{t+j}, v{t+j}, v{g+j}")
        for j in range(4): L.append(f"v_exp_f32 v{t+j}, v{t+j}")
        for j in range(4): L.append(f"v_add_f32 v{t+j}, 1.0, v{t+j}")
        for j in range(4): L.append(f"v_rcp_f32 v{t+j}, v{t+j}")
        for j in range(4): L.append(f"v_mul_f32 v{t+j}, v{t+j}, v{up+j}")
        for j in range(2): L.append(f"v_cvt_pk_bf16_f32 v{out2+j}, v{t+2*j}, v{t+2*j+1}")
        return L
    def epair(grp, p, store, outbase=OUT):
        L = []
        for u in range(2):
            L += gelu4(ACC(2*p, u), ACC(2*p+1, u), outbase + 4*u + 2*(p & 1))
            if store:
                if u == 0:
                    L.append(f"s_add_u32 s{S_T3}, s{S_HB}, {HF + (grp*4 + (p & 2))*4096}")
                L.append(f"buffer_store_dwordx4 {vr(outbase+4*u,4)}, v{V_HST}, {sr(R_WS,4)}, s{S_T3} offen offset:{u*256}")
        return L
    def emit_all(L):
        for x in L: a(x)

    def qkv_scalar_setup():
        for i in range(3):
            a(f"""
            s_mul_i32 s{S_T0}, s{S_J}, 3
            s_add_u32 s{S_T0}, s{S_T0}, {i}
            s_and_b32 s{S_T1}, s{S_T0}, 31
            s_lshl_b32 s{S_T1}, s{S_T1}, 6
            s_add_u32 s{S_T1}, s{S_T1}, s{S_TT}
            s_mul_i32 s{S_T2}, s{S_T1}, {KVREC}
            s_add_u32 s{S_T2}, s{S_T2}, {KV - i*288}
            s_cmp_ge_u32 s{S_T0}, 64
            s_cselect_b32 s{S_T3}, 288, 0
            s_add_u32 s{S_T2}, s{S_T2}, s{S_T3}
            s_mul_i32 s{S_T1}, s{S_T1}, {QREC}
            s_add_u32 s{S_T1}, s{S_T1}, {QF - i*288}
            s_cmp_lt_u32 s{S_T0}, 32
            s_cselect_b32 s{S_U+i}, s{S_T1}, s{S_T2}
            s_cselect_b32 s{S_U+3+i}, 1, 0
            """)
        a(f"""
        s_lshl_b32 s{S_T1}, s{S_J}, 6
        s_add_u32 s{S_T1}, s{S_T1}, s{S_TT}
        s_mul_i32 s{S_CR}, s{S_T1}, {KVREC}
        s_add_u32 s{S_CR}, s{S_CR}, {KV + 2304 - 96}
        s_mul_i32 s{S_H2}, s{S_XCD}, 36
        s_add_u32 s{S_H2}, s{S_H2}, 32
        s_add_u32 s{S_H2}, s{S_H2}, s{S_B}
        s_lshl_b32 s{S_H2}, s{S_H2}, 12
        s_add_u32 s{S_H2}, s{S_H2}, s{S_HB}
        s_lshl_b32 s{S_T3}, s{S_L}, 14
        s_add_u32 s{S_HB}, s{S_HB}, s{S_T3}
        """)
    def qkv_addr_setup():
        a(f"""
        v_and_b32 v8, 15, v0
        v_lshrrev_b32 v9, 4, v0
        v_mul_u32_u24 v9, 288, v9
        """)
        for t in range(4):
            lo, hi = (16*t) // 18, min((16*t + 15) // 18, 2)
            ad, sc = QA + t, QA + 4 + t
            a(f"v_mov_b32 v{ad}, s{S_U+lo}")
            a(f"v_mov_b32 v{sc}, s{S_U+3+lo}")
            if hi != lo:
                a(f"v_cmp_le_u32 vcc, {hi*18 - 16*t}, v8")
                a(f"v_mov_b32 v10, s{S_U+hi}")
                a(f"v_mov_b32 v11, s{S_U+3+hi}")
                a(f"v_cndmask_b32 v{ad}, v{ad}, v10, vcc")
                a(f"v_cndmask_b32 v{sc}, v{sc}, v11, vcc")
            a(f"v_lshl_add_u32 v{ad}, v8, 4, v{ad}")
            a(f"v_sub_u32 v10, 1, v{sc}")
            a(f"v_lshlrev_b32 v10, v10, v9")
            a(f"v_add3_u32 v{ad}, v{ad}, v10, {0}")
            if t: a(f"v_add_u32 v{ad}, {256*t}, v{ad}")
            a(f"v_cmp_eq_u32 vcc, 1, v{sc}")
            a(f"v_mov_b32 v10, {f2u(QSCALE)}")
            a(f"v_cndmask_b32 v{sc}, 1.0, v10, vcc")
        a(f"""
        v_mov_b32 v10, {OOB}
        v_cmp_gt_u32 vcc, 6, v8
        v_cndmask_b32 v{QA+3}, v10, v{QA+3}, vcc
        v_lshl_add_u32 v10, v0, 4, s{S_CR}
        v_and_b32 v11, 62, v0
        v_cmp_eq_u32 vcc, 6, v11
        v_cndmask_b32 v{QA+3}, v{QA+3}, v10, vcc
        v_lshrrev_b32 v10, 5, v0
        v_lshlrev_b32 v10, 9, v10
        v_bfe_u32 v11, v0, 4, 1
        v_lshl_add_u32 v10, v11, 3, v10
        v_lshl_add_u32 v{QA+8}, v8, 4, v10
        """)
    def epi_g2_qkv():
        L = []
        for t in range(4):
            o = 24 + 4*t
            for u in range(2):
                r = ACC(2+t, u)
                for i in range(4): L.append(f"v_mul_f32 v{r+i}, v{QA+4+t}, v{r+i}")
                L.append(f"v_cvt_pk_bf16_f32 v{o+2*u}, v{r}, v{r+1}")
                L.append(f"v_cvt_pk_bf16_f32 v{o+2*u+1}, v{r+2}, v{r+3}")
            if t == 3:
                L += ["v_cmp_eq_u32 vcc, 6, v0", "v_mov_b32 v9, 0x3f803f80", "v_cndmask_b32 v8, 0, v9, vcc",
                      "v_and_b32 v9, 62, v0", "v_cmp_eq_u32 vcc, 6, v9"]
                for i in range(4): L.append(f"v_cndmask_b32 v{o+i}, v{o+i}, v8, vcc")
            L.append(f"buffer_store_dwordx4 {vr(o,4)}, v{QA+t}, {sr(R_WS,4)}, 0 offen")
        return L
    def epi_g2_h():
        L = []
        for u in range(2):
            L += gelu4(ACC(0, u), ACC(1, u), OUT + 2*u)
            L.append(f"buffer_store_dwordx2 {vr(OUT+2*u,2)}, v{QA+8}, {sr(R_WS,4)}, s{S_H2} offen offset:{u*256}")
        return L

    R_PK = 72
    def pack_setup():
        l1 = newlab()
        a(f"""
        s_lshr_b32 s{S_T0}, s{S_W}, 2
        s_sub_u32 s{S_T0}, s{S_W}, s{S_T0}
        s_lshl_b32 s{S_T0}, s{S_T0}, 8
        s_add_u32 s{S_T0}, s{S_T0}, s2
        s_cmp_lt_u32 s{S_T0}, 1296
        s_cselect_b32 s{S_PKON}, 1, 0
        s_cmp_eq_u32 s{S_W}, 3
        s_cselect_b32 s{S_PKON}, 0, s{S_PKON}
        s_and_b32 s{S_T1}, s{S_T0}, 3
        s_lshr_b32 s{S_T0}, s{S_T0}, 2
        s_lshr_b32 s{S_T2}, s{S_T0}, 2
        s_mul_i32 s{S_T3}, s{S_T2}, 57
        s_lshr_b32 s{S_T3}, s{S_T3}, 9
        s_mul_i32 s{S_T3}, s{S_T3}, 9
        s_sub_u32 s{S_T3}, s{S_T2}, s{S_T3}
        s_lshr_b32 s{S_PK}, s{S_T0}, 1
        s_lshl_b32 s{S_PK}, s{S_PK}, 5
        s_and_b32 s{S_T2}, s{S_T0}, 1
        s_lshl_b32 s{S_T2}, s{S_T2}, 3
        s_add_u32 s{S_PK}, s{S_PK}, s{S_T2}
        s_lshl_b32 s{S_T2}, s{S_T0}, 4
        s_cmp_eq_u32 s{S_T3}, 8
        s_cselect_b32 s{S_PK}, s{S_T2}, s{S_PK}
        s_cselect_b32 s{S_PKA}, 4, 16
        s_cselect_b32 s{S_PKB}, 8, 4
        s_mov_b32 s{S_PKC}, 2
        s_mul_i32 s{S_PKD}, s{S_T1}, 576
        s_add_u32 s{S_PKD}, s{S_PKD}, s{S_T0}
        s_mul_i32 s{S_PKD}, s{S_PKD}, 2304
        s_add_u32 s{S_PKD}, s{S_PKD}, {WDP}
        s_mov_b32 s{S_PKNB}, {288*2304}
        s_mov_b32 s{R_PK}, s{P_WD}
        s_and_b32 s{R_PK+1}, s{P_WD+1}, 0xffff
        s_mov_b32 s{R_PK+2}, {4608*1152}
        s_cmp_lt_u32 s{S_T0}, 288
        s_cbranch_scc1 {l1}
        """)
        m = a.skip_begin()
        a(f"""
        s_sub_u32 s{S_T0}, s{S_T0}, 288
        s_mul_i32 s{S_PKD}, s{S_T1}, 72
        s_add_u32 s{S_PKD}, s{S_PKD}, s{S_T0}
        s_mul_i32 s{S_PKD}, s{S_PKD}, 2304
        s_add_u32 s{S_PKD}, s{S_PKD}, {WOP}
        s_mov_b32 s{S_PKNB}, {36*2304}
        s_mov_b32 s{R_PK}, s{P_WO}
        s_and_b32 s{R_PK+1}, s{P_WO+1}, 0xffff
        s_mov_b32 s{R_PK+2}, {576*1152}
        s_mul_i32 s{S_PK}, s{S_T0}, 18
        s_sub_u32 s{S_T2}, s{S_T0}, 32
        s_mul_i32 s{S_T2}, s{S_T2}, 144
        s_add_u32 s{S_T2}, s{S_T2}, 16
        s_cmp_lt_u32 s{S_T0}, 32
        s_cselect_b32 s{S_PK}, s{S_PK}, s{S_T2}
        s_cselect_b32 s{S_PKA}, 4, 36
        s_cselect_b32 s{S_PKB}, 8, 72
        s_cselect_b32 s{S_PKC}, 2, 18
        """)
        a.skip_end(m)
        a.label(l1)
        a(f"""
        s_mul_i32 s{S_PK}, s{S_PK}, 1152
        s_mul_i32 s{S_T1}, s{S_T1}, 288
        s_add_u32 s{S_PK}, s{S_PK}, s{S_T1}
        s_mul_i32 s{S_PKA}, s{S_PKA}, 1152
        s_mul_i32 s{S_PKB}, s{S_PKB}, 1152
        s_mul_i32 s{S_PKC}, s{S_PKC}, 1152
        s_cmp_eq_u32 s{S_PKON}, 0
        s_cselect_b32 s{R_PK+2}, 0, s{R_PK+2}
        s_cselect_b32 s{S_PKD}, 0, s{S_PKD}
        """)
        a(f"""
        v_bfe_u32 v8, v0, 2, 1
        v_mul_u32_u24 v8, 1152, v8
        v_bfe_u32 v9, v0, 3, 1
        v_mul_lo_u32 v9, v9, s{S_PKC}
        v_add_u32 v8, v8, v9
        v_bfe_u32 v9, v0, 4, 1
        v_mul_lo_u32 v9, v9, s{S_PKB}
        v_add_u32 v8, v8, v9
        v_bfe_u32 v9, v0, 5, 1
        v_mul_lo_u32 v9, v9, s{S_PKA}
        v_add_u32 v8, v8, v9
        v_and_b32 v9, 3, v0
        v_lshlrev_b32 v9, 7, v9
        v_min_u32 v9, 284, v9
        v_add_u32 v{V_TPK}, v8, v9
        s_mov_b32 s{R_PK+3}, 0x00020000
        """)
    def pack_touch():
        a(f"s_mov_b32 m0, {SCR}")
        a(f"buffer_load_dword v{V_TPK}, {sr(R_PK,4)}, s{S_PK} offen lds")
    pk_id = {}
    def pack_dma():
        a(f"""
        s_and_b32 s{S_PKL}, s{S_W}, 3
        s_mul_i32 s{S_PKL}, s{S_PKL}, 4608
        s_add_u32 s{S_PKL}, s{S_PKL}, 147456
        v_lshlrev_b32 v8, 4, v0
        v_add_u32 v9, {1152-288}, v8
        v_cmp_gt_u32 vcc, 18, v0
        v_cndmask_b32 v8, v9, v8, vcc
        s_mov_b32 exec_hi, 15
        """)
        for i in range(8):
            a(f"s_mov_b32 s{S_T0}, s{S_PK}")
            if i & 1: a(f"s_add_u32 s{S_T0}, s{S_T0}, s{S_PKC}")
            if i & 2: a(f"s_add_u32 s{S_T0}, s{S_T0}, s{S_PKB}")
            if i & 4: a(f"s_add_u32 s{S_T0}, s{S_T0}, s{S_PKA}")
            a(f"s_add_u32 m0, s{S_PKL}, {i*576}")
            pk_id[a.role] = a.emit(f"buffer_load_dwordx4 v8, {sr(R_PK,4)}, s{S_T0} offen lds")
        a("s_mov_b32 exec_hi, -1")
    def pack_finish(P):
        lg0 = a.lg
        a(f"""
        v_lshrrev_b32 v8, 5, v0
        v_bfe_u32 v9, v0, 2, 2
        v_lshl_add_u32 v8, v8, 2, v9
        v_mul_u32_u24 v8, 288, v8
        v_add_u32 v8, s{S_PKL}, v8
        v_and_b32 v9, 1, v0
        v_lshl_add_u32 v10, v9, 5, v8
        v_bfe_u32 v9, v0, 1, 1
        v_lshl_add_u32 v10, v9, 3, v10
        v_and_b32 v9, 3, v0
        v_lshl_add_u32 v8, v9, 3, v8
        v_bfe_u32 v9, v0, 4, 1
        v_lshl_add_u32 v10, v9, 4, v10
        v_mul_u32_u24 v11, 144, v9
        v_add_u32 v11, v11, v8
        """)
        a.wait_vm(pk_id[a.role])
        regs = P
        offs = [0, 64, 144, 144+64]
        for i in range(4):
            a(f"ds_read_b64_tr_b16 {vr(regs[i],2)}, v10 offset:{offs[i]}")
            a(f"ds_read_b64_tr_b16 {vr(regs[i]+2,2)}, v10 offset:{offs[i]+2304}")
        a(f"ds_read_b64_tr_b16 {vr(regs[4],2)}, v11 offset:128")
        a(f"ds_read_b64_tr_b16 {vr(regs[4]+2,2)}, v11 offset:{128+2304}")
        a(f"""
        v_mul_lo_u32 v9, v9, s{S_PKNB}
        v_lshrrev_b32 v8, 5, v0
        v_lshl_add_u32 v9, v8, 7, v9
        v_and_b32 v8, 15, v0
        v_lshl_add_u32 v9, v8, 4, v9
        v_cmp_gt_u32 vcc, 8, v8
        v_mov_b32 v8, {OOB}
        v_cndmask_b32 v9, v8, v9, vcc
        v_lshlrev_b32 v8, 4, v0
        s_cmp_eq_u32 s{S_PKON}, 0
        s_cselect_b32 s{S_T0}, {OOB}, 0
        v_or_b32 v8, s{S_T0}, v8
        v_or_b32 v9, s{S_T0}, v9
        s_add_u32 s{S_T0}, s{S_PKD}, s{S_PKNB}
        s_waitcnt lgkmcnt(0)
        """)
        a.lg = lg0
        for i in range(4):
            so = S_PKD if i < 2 else S_T0
            a(f"buffer_store_dwordx4 {vr(regs[i],4)}, v8, {sr(R_WS,4)}, s{so} offen offset:{(i&1)*1024}")
        a(f"buffer_store_dwordx4 {vr(regs[4],4)}, v9, {sr(R_WS,4)}, s{S_PKD} offen offset:2048")

    TSCHED = opts.get('tsched', {0: (2, 0x11), 1: (2, 0x26), 2: (3, 0x03), 3: (3, 0x0c), 4: (3, 0x30), 5: ('p', 0x11), 6: ('p', 0x22), 7: ('p', 0x44)})
    def side(s, role):
        dma(s + (2 if role == 'A' else 3))
        if TOUCH and s in TSCHED:
            kind, mask = TSCHED[s]
            rm = mask & (0x0f if role == 'A' else 0xf0)
            if rm:
                srd, vr_, so, sv = (R_PK, V_TPK, f"s{S_PK}", 18) if kind == 'p' else (R_TK[kind], V_TK[kind], "0", 14 + kind)
                a(f"s_bitcmp1_b32 {rm}, s{S_W}")
                a(f"s_cselect_b32 s{srd+2}, s{sv}, 0")
                a(f"s_mov_b32 m0, {SCR}")
                a(f"buffer_load_dword v{vr_}, {sr(srd,4)}, {so} offen lds")
        if s == 9:
            a(f"s_mov_b32 s{R_PK+2}, s18")
            if role == 'A': pack_dma()
            emit_all(epair(0, 3, True))
        if s == 10:
            if role == 'A': pack_finish([96, 100, 104, 108, 12])
            else: pack_dma()
            qkv_addr_setup()
        if s == 12: g_compute()

    stages = []
    fb = 0
    for s in range(NST):
        st = Stage(s, fb); stages.append(st); fb += len(st.frags)
    PRE = 9
    def prime(st):
        n = PRE + (4 if st.grp == 0 else 0)
        while st.rp < n: st.issue_read()
    dma1_piece()
    pre_stage(0)
    dma1_piece()
    pack_setup()
    dma1_piece()
    touch_setup(2)
    dma1_piece()
    g2_dma_setup()
    dma1_piece()
    a(f"s_mov_b32 s18, s{R_PK+2}")
    a(f"""
    s_lshl_b32 s{S_T0}, s2, 3
    s_add_u32 s{S_T0}, s{S_T0}, s{S_W}
    s_lshl_b32 s{S_T0}, s{S_T0}, 4
    s_lshl_b32 s{S_T1}, s2, 2
    s_and_b32 s{S_T2}, s{S_W}, 3
    s_add_u32 s{S_T1}, s{S_T1}, s{S_T2}
    s_lshl_b32 s{S_T1}, s{S_T1}, 4
    s_add_u32 s{S_T1}, s{S_T1}, 32768
    v_mov_b32 v8, {OOB}
    v_writelane_b32 v8, s{S_T0}, 0
    v_writelane_b32 v8, s{S_T1}, 1
    v_mov_b32 v12, 0
    v_mov_b32 v13, 0
    v_mov_b32 v14, 0
    v_mov_b32 v15, 0
    s_mov_b32 s{S_T0}, {OFL}
    buffer_store_dwordx4 v[12:15], v8, {sr(R_WS,4)}, s{S_T0} offen
    """)
    with only('A'):
        qkv_scalar_setup(); touch_setup(3)
    stamp('issued')
    a.wait_vm(dma_id[0])
    a("s_barrier")
    stamp('bar0')
    with only('B'):
        dma(2)
        qkv_scalar_setup(); touch_setup(3)
    prime(stages[0])
    TB = opts.get('tailb', 4)
    O2 = 136
    for s in range(NST):
        st = stages[s]
        n = len(st.mf)
        hard = s in (8, 11, 14)
        blocks = {}
        fill = []
        rate = opts.get('rate', 1.6)
        if s == 9:
            blocks[st.tile_done_at(1) + 1] = epair(0, 1, True)
            blocks[st.tile_done_at(3) + 1] = epair(0, 2, False)
        if s == 11:
            fill = [(st.tile_done_at(1), x) for x in epi_g2_h()]
            rate = 1.8
        if s == 14:
            fill = [(st.tile_done_at(7), x) for x in epair(1, 3, False, O2)] + \
                   [(st.tile_done_at(1), x) for x in epair(1, 0, False)] + \
                   [(st.tile_done_at(3), x) for x in epair(1, 1, True)]
        credit = 0.0
        i = 0
        while i < n:
            if not hard and st.rp == len(st.rq): break
            if hard and i == n - TB and s < NST - 1:
                with only('B'): do_barrier(s + 1)
            st.mfma(i); i += 1
            if st.can_read(i): st.issue_read()
            if i in blocks: emit_all(blocks.pop(i))
            if fill and fill[0][0] + 3 < i:
                credit += rate
                while credit >= 1 and fill and fill[0][0] + 3 < i:
                    a(fill.pop(0)[1]); credit -= 1
        assert not blocks
        emit_all([x for _, x in fill])
        if hard:
            stamp(f'M{s}')
            if s < NST - 1:
                with only('B'): dma(s + 3)
                with only('A'): dma(s + 2)
            if s == 11: g_load()
            if s == 8:
                emit_all(epair(0, 0, False))
            elif s == 11:
                emit_all(epi_g2_qkv())
                with only('B'): pack_finish([40, 44, 48, 52, 56])
            else:
                emit_all(epair(1, 2, True, O2))
            if s < NST - 1:
                pre_stage(s + 1)
                with only('A'): do_barrier(s + 1)
                stamp(f'S{s}')
                prime(stages[s + 1])
        else:
            nx = stages[s + 1]
            lB, lJ = newlab(), newlab()
            a(f"s_cmp_ge_u32 s{S_W}, 4")
            a(f"s_cbranch_scc1 {lB}")
            snap = a.snapshot(); lg0 = a.lg; st0 = st.state()
            a.role = 'A'
            im = stamp(f'M{s}')
            side(s, 'A')
            pre_stage(s + 1)
            do_barrier(s + 1)
            isx = stamp(f'S{s}')
            st.waited = a.lg
            npre = PRE + (4 if nx.grp == 0 else 0)
            while nx.rp < npre and nx.rp < 5 and nx.can_read(0, st, i): nx.issue_read()
            for k in range(i, n):
                st.mfma(k)
                for _ in range(2):
                    if nx.rp < npre and nx.can_read(0, st, k + 1): nx.issue_read()
            prime(nx)
            a(f"s_branch {lJ}")
            snapA = a.snapshot(); lgA = a.lg; nxA = nx.state()
            a.label(lB)
            a.restore(snap); a.lg = lg0; st.set_state(st0); nx.reset()
            a.role = 'B'
            for k in range(i, n):
                if k == n - TB:
                    do_barrier(s + 1); st.waited = a.lg
                st.mfma(k)
            stamp('', im)
            side(s, 'B')
            pre_stage(s + 1)
            stamp('', isx)
            prime(nx)
            assert a.lg == lgA and nx.state() == nxA, (a.lg, lgA)
            a.role = None
            a.merge(snapA)
            a.label(lJ)
    if stamp.on:
        a("s_waitcnt vmcnt(0)")
        stamp('end')
        stamp.out(8)
    a.label(f"{name}_end")
    a("s_endpgm")
    return a, kdesc(name), dict(grid=256, block=512, lds=163840)
```

```python
from common import *

KVB = 64*KVREC
QST = KVB
FLAG = KVB + 12288

def gen_k2(name="k2_kernel", opts=None):
    opts = opts or {}
    a = Asm()
    R_WS = 28
    S_W, S_XCD, S_LOC, S_H, S_QB, S_T0, S_T1, S_T2, S_T3 = 32, 33, 34, 35, 36, 37, 38, 39, 40
    S_KVO, S_IT, S_HO, S_WO, S_M0 = 41, 42, 43, 44, 45
    V_STAMP = 255
    stamp = Stamper(a, opts.get('stamp', False), V_STAMP, S_W, R_WS, WS_USED + (1 << 20))
    FUSE3 = opts.get('fuse3', False)
    R_OUT = 48
    S_KH, S_SP, S_OA, S_OB, S_MSK = 52, 53, 54, 55, 56
    NFIRST = 3
    NC2 = 10
    NC3 = 21
    a.raw(f".globl {name}\n.p2align 8\n.type {name},@function\n{name}:")
    a("s_cmp_ge_u32 s2, 256")
    a(f"s_cbranch_scc1 {name}_end")
    stamp('start')
    a("s_load_dwordx2 s[24:25], s[0:1], 80")
    a("s_load_dwordx2 s[20:21], s[0:1], 64")
    a(f"""
    v_lshrrev_b32 v1, 6, v0
    v_and_b32 v0, 63, v0
    s_and_b32 s{S_XCD}, s2, 7
    v_readfirstlane_b32 s{S_W}, v1
    s_lshr_b32 s{S_LOC}, s2, 3
    s_and_b32 s{S_T0}, s{S_LOC}, 3
    s_lshl_b32 s{S_H}, s{S_XCD}, 2
    s_add_u32 s{S_H}, s{S_H}, s{S_T0}
    s_lshr_b32 s{S_QB}, s{S_LOC}, 2
    s_mul_i32 s{S_KVO}, s{S_H}, {KVB}
    s_add_u32 s{S_KVO}, s{S_KVO}, {KV}
    v_lshlrev_b32 v1, 4, v0
    s_lshl_b32 s{S_M0}, s{S_W}, 10
    s_add_u32 s{S_T0}, s{S_KVO}, s{S_M0}
    s_cmp_ge_u32 s{S_W}, 4
    s_cbranch_scc1 {name}_gemm
    """)
    snap0 = a.snapshot()
    def first_chunk():
        for i in range(NFIRST):
            a(f"s_add_u32 m0, s{S_M0}, {i*8192}")
            a(f"s_add_u32 s{S_T1}, s{S_T0}, {i*8192}")
            idd = a.emit(f"buffer_load_dwordx4 v1, {sr(R_WS,4)}, s{S_T1} offen lds")
        return idd
    def signal(fl, t0, t1):
        a(f"""
        v_mov_b32 v{t0}, {FLAG + 4*fl}
        v_mov_b32 v{t1}, 1
        s_mov_b64 exec, 1
        ds_add_u32 v{t0}, v{t1}
        s_mov_b64 exec, -1
        """)
    def poll(fl, t0, t1, tag, sleep):
        a(f"v_mov_b32 v{t0}, {FLAG + 4*fl}")
        a.label(f"{name}_{tag}")
        a(f"""
        ds_read_b32 v{t1}, v{t0}
        s_waitcnt lgkmcnt(0)
        v_readfirstlane_b32 s{S_T0}, v{t1}
        s_cmp_ge_u32 s{S_T0}, 4
        s_cbranch_scc1 {name}_{tag}d
        s_sleep {sleep}
        s_branch {name}_{tag}
        """)
        a.label(f"{name}_{tag}d")

    SA, SB, PA, PB, OA, OB = 16, 32, 48, 56, 64, 80
    QA0, QA1, QB0, QB1 = 96, 100, 104, 108
    K0 = [112, 116]; KX = [120, 124]; V0 = [128, 136]
    A_K, A_X, A_V0, A_V1 = 2, 3, 4, 14
    GA, GBr = 5, 6
    V_ST, V_STX = 7, 8
    a("s_setprio 1")
    a(f"""
    s_lshl_b32 s{S_T2}, s{S_QB}, 3
    s_lshl_b32 s{S_T1}, s{S_W}, 1
    s_add_u32 s{S_IT}, s{S_T2}, s{S_T1}
    s_lshl_b32 s{S_T1}, s{S_H}, 6
    s_add_u32 s{S_T1}, s{S_T1}, s{S_IT}
    s_mul_i32 s{S_T2}, s{S_T1}, {QREC}
    s_add_u32 s{S_T2}, s{S_T2}, {QF}
    s_mul_i32 s{S_T3}, s{S_W}, 3072
    s_add_u32 s{S_T3}, s{S_T3}, {QST}
    s_waitcnt lgkmcnt(0)
    """)
    make_srd(a, R_WS, P_WS, WS_USED)
    a(f"s_mov_b32 m0, s{S_T3}")
    for i in range(3):
        q_id = a.emit(f"buffer_load_dwordx4 v1, {sr(R_WS,4)}, s{S_T2} offen offset:{i*1024} lds")
    first_id = first_chunk()
    a(f"""
    v_lshrrev_b32 v9, 5, v0
    v_bfe_u32 v10, v0, 4, 1
    v_and_b32 v11, 1, v0
    v_lshl_add_u32 v10, v10, 1, v11
    v_bfe_u32 v11, v0, 2, 2
    v_bfe_u32 v12, v0, 1, 1
    v_lshlrev_b32 v12, 3, v12
    v_lshl_add_u32 v13, v11, 4, v12
    v_lshl_add_u32 v15, v9, 7, v13
    v_mad_u32_u24 v{A_K}, v10, s{S_KVO-S_KVO+46}, v15
    """.replace(f"v_mad_u32_u24 v{A_K}, v10, s46, v15", f"v_mul_u32_u24 v16, 576, v10\nv_add_u32 v{A_K}, v16, v15"))
    a(f"""
    v_add_u32 v17, v16, v13
    v_add_u32 v17, 256, v17
    v_add_u32 v18, 2320, v12
    v_add_u32 v19, 2304, v12
    v_lshl_add_u32 v20, v9, 2, v11
    v_cmp_eq_u32 vcc, 2, v20
    v_cndmask_b32 v18, v18, v19, vcc
    v_cmp_gt_u32 vcc, 2, v20
    v_cndmask_b32 v{A_X}, v18, v17, vcc
    v_mul_u32_u24 v16, 288, v10
    v_add_u32 v16, s{S_T3}, v16
    v_add_u32 v21, v16, v15
    v_and_b32 v17, 0x1f, v13
    v_add_u32 v22, v16, v17
    """)
    a(f"""
    v_and_b32 v11, 7, v0
    v_bfe_u32 v12, v0, 3, 1
    v_lshl_add_u32 v11, v12, 4, v11
    v_bfe_u32 v12, v0, 4, 1
    v_lshl_add_u32 v11, v12, 3, v11
    v_lshlrev_b32 v12, 2, v11
    s_lshl_b32 s{S_T1}, s{S_IT}, 7
    s_add_u32 s{S_T1}, s{S_T1}, {GB}
    buffer_load_dword v{GA}, v12, {sr(R_WS,4)}, s{S_T1} offen
    buffer_load_dword v{GBr}, v12, {sr(R_WS,4)}, s{S_T1} offen offset:128
    v_cmp_gt_u32 vcc, 32, v0
    v_mov_b32 v13, {OOB}
    v_cndmask_b32 v{V_STX}, v13, v12, vcc
    v_lshlrev_b32 v12, 4, v11
    v_lshl_add_u32 v{V_ST}, v9, 9, v12
    """)
    a(f"""
    v_and_b32 v11, 31, v0
    v_and_b32 v12, 0x13, v11
    v_bfe_u32 v13, v11, 2, 1
    v_lshl_or_b32 v12, v13, 3, v12
    v_bfe_u32 v13, v11, 3, 1
    v_lshl_or_b32 v12, v13, 2, v12
    v_mul_u32_u24 v13, 576, v9
    v_lshl_add_u32 v12, v12, 4, v13
    v_add_u32 v12, 288, v12
    v_add_u32 v13, 1152, v12
    v_mov_b32 v17, 2320
    v_mov_b32 v18, 2304
    v_and_b32 v19, 27, v11
    v_cmp_eq_u32 vcc, 18, v19
    v_cndmask_b32 v17, v17, v18, vcc
    v_cmp_gt_u32 vcc, 18, v11
    v_cndmask_b32 v{A_V0}, v17, v12, vcc
    v_cndmask_b32 v{A_V1}, v17, v13, vcc
    """)
    for r in list(range(PB, PB+8)) + list(range(OA, OA+32)) + list(range(V0[1], V0[1]+8)) + \
             [QA1+2, QA1+3, QB1+2, QB1+3, KX[0]+2, KX[0]+3, KX[1]+2, KX[1]+3]:
        a(f"v_mov_b32 v{r}, 0")
    a(f"v_mov_b32 v11, {FLAG}")
    a(f"ds_write_b128 v11, {vr(OA,4)}")
    a(f"ds_write_b128 v11, {vr(OA,4)} offset:16")
    a.wait_vm(q_id)
    for (q0, q1, o) in ((QA0, QA1, 0), (QB0, QB1, QREC)):
        a(f"ds_read_b64_tr_b16 {vr(q0,2)}, v21 offset:{o}")
        a(f"ds_read_b64_tr_b16 {vr(q0+2,2)}, v21 offset:{o+64}")
        a(f"ds_read_b64_tr_b16 {vr(q1,2)}, v22 offset:{o+256}")
    a.wait_vm(first_id)
    a("s_waitcnt lgkmcnt(0)")
    a("s_barrier")
    stamp('bar1')
    def kreads(p, o):
        return [f"ds_read_b64_tr_b16 {vr(K0[p],2)}, v{A_K} offset:{o}",
                f"ds_read_b64_tr_b16 {vr(K0[p]+2,2)}, v{A_K} offset:{o+64}",
                f"ds_read_b64_tr_b16 {vr(KX[p],2)}, v{A_X} offset:{o}"]
    for x in kreads(0, 0): a(x)
    a("v_cmp_gt_u32 vcc, 32, v0")
    for q1 in (QA1, QB1):
        a(f"v_cndmask_b32 v{q1}, 0, v{q1}, vcc")
        a(f"v_mov_b32 v{q1+1}, 0")
    a("s_waitcnt lgkmcnt(0)")
    def qk(S, q0, q1, kb):
        return [f"v_mfma_f32_32x32x16_bf16 {vr(S,16)}, {vr(K0[kb],4)}, {vr(q0,4)}, 0",
                f"v_mfma_f32_32x32x16_bf16 {vr(S,16)}, {vr(KX[kb],4)}, {vr(q1,4)}, {vr(S,16)}"]
    def pv(O, P, vb):
        return [f"v_mfma_f32_32x32x16_bf16 {vr(O,16)}, {vr(V0[vb],4)}, {vr(P,4)}, {vr(O,16)}",
                f"v_mfma_f32_32x32x16_bf16 {vr(O,16)}, {vr(V0[vb]+4,4)}, {vr(P+4,4)}, {vr(O,16)}"]
    for x in qk(SA, QA0, QA1, 0) + qk(SB, QB0, QB1, 0): a(x)
    for S, Q1, t in ((SA, QA1, 10), (SB, QB1, 12)):
        a(f"v_max3_f32 v{t}, v{S}, v{S+1}, v{S+2}")
        for i in range(3, 15, 2): a(f"v_max3_f32 v{t}, v{t}, v{S+i}, v{S+i+1}")
        a(f"v_max_f32 v{t}, v{t}, v{S+15}")
        a(f"v_mov_b32 v{t+1}, v{t}")
        a(f"v_permlane32_swap_b32 v{t}, v{t+1}")
        a(f"v_max_f32 v{t}, v{t}, v{t+1}")
        a(f"v_cvt_pk_bf16_f32 v{t}, -v{t}, 0")
        a(f"v_cndmask_b32 v{Q1+1}, 0, v{t}, vcc")
        if S == SA:
            for x in qk(SA, QA0, QA1, 0): a(x)
    a(f"s_mov_b32 s{S_IT}, 0")
    a.fence()
    stamp('pre')

    UN = 8
    PAT = opts.get('pat', "Wmeee" "meee" "meee" "mL" "eeeeeee" "cccccccc")
    def half(S, P, mf, reads, wait, extra):
        e = [f"v_exp_f32 v{S+i}, v{S+i}" for i in range(16)]
        c = [f"v_cvt_pk_bf16_f32 v{P+j}, v{S+2*j}, v{S+2*j+1}" for j in range(8)]
        mi = ei = ci = 0
        for ch in PAT:
            if ch == 'm': a(mf[mi]); mi += 1
            elif ch == 'e': a(e[ei]); ei += 1
            elif ch == 'c': a(c[ci]); ci += 1
            elif ch == 'L':
                for r in reads + extra: a(r)
            elif ch == 'W':
                if wait: a("s_waitcnt lgkmcnt(0)")
        assert (mi, ei, ci) == (4, 16, 8)
    a.raw(".p2align 3")
    a.label(f"{name}_aloop")
    a(f"s_bitcmp1_b32 {(1 << 1) | (1 << 3) | (1 << 6)}, s{S_IT}")
    a(f"s_cbranch_scc1 {name}_astub")
    a.label(f"{name}_acont")
    if stamp.on:
        a("s_memtime s[100:101]")
        a(f"s_add_u32 m0, s{S_IT}, 32")
        a("s_waitcnt lgkmcnt(0)")
        a(f"v_writelane_b32 v{V_STAMP}, s100, m0")
    for t in range(UN):
        p = t & 1
        o = t * KVREC
        rd = kreads(p ^ 1, o + KVREC) + [f"ds_read_b128 {vr(V0[p],4)}, v{A_V0} offset:{o}",
                                         f"ds_read_b128 {vr(V0[p]+4,4)}, v{A_V1} offset:{o}"]
        half(SA, PA, qk(SB, QB0, QB1, p) + pv(OB, PB, p ^ 1), rd, False, [])
        ex = []
        if t == UN - 1:
            ex = [f"s_add_u32 s{S_IT}, s{S_IT}, 1", f"s_cmp_lt_u32 s{S_IT}, {64//UN}"] + \
                 [f"v_add_u32 v{r}, {UN*KVREC}, v{r}" for r in (A_K, A_X, A_V0, A_V1)]
        half(SB, PB, qk(SA, QA0, QA1, p ^ 1) + pv(OA, PA, p), [], True, ex)
    a(f"s_cbranch_scc1 {name}_aloop")
    for x in pv(OB, PB, (UN - 1) & 1): a(x)
    stamp('loop')
    a(f"""
    s_lshl_b32 s{S_T0}, s{S_QB}, 2
    s_add_u32 s{S_T0}, s{S_T0}, s{S_W}
    s_lshl_b32 s{S_T0}, s{S_T0}, 5
    s_add_u32 s{S_T0}, s{S_T0}, s{S_H}
    s_mul_i32 s{S_T1}, s{S_T0}, 2304
    s_add_u32 s{S_T1}, s{S_T1}, {OF}
    s_waitcnt vmcnt(0)
    """)
    a(f"s_mov_b32 s{S_T2}, {f2u(2.0**100)}")
    a(f"s_mov_b32 s{S_T3}, {f2u(2.0**-20)}")
    a(f"v_maximum3_f32 v10, |v{OA}|, |v{OA+1}|, |v{OA+2}|")
    for i in (3, 5, 7): a(f"v_maximum3_f32 v10, v10, |v{OA+i}|, |v{OA+i+1}|")
    a(f"v_maximum3_f32 v10, v10, |v{OA+9}|, |v{OB}|")
    for i in (1, 3, 5, 7): a(f"v_maximum3_f32 v10, v10, |v{OB+i}|, |v{OB+i+1}|")
    a(f"""
    v_maximum3_f32 v11, v{OA+10}, v{OB+10}, v{OB+10}
    v_minimum3_f32 v12, v{OA+10}, v{OB+10}, v{OB+10}
    v_maximum3_f32 v10, v10, |v{OB+9}|, |v{OB+9}|
    v_cmp_ge_f32 vcc, s{S_T2}, v11
    v_cmp_le_f32 s[46:47], s{S_T3}, v12
    v_mov_b32 v13, 0x7f000000
    s_and_b64 vcc, vcc, s[46:47]
    v_cmp_gt_f32 s[46:47], v13, v10
    s_and_b64 vcc, vcc, s[46:47]
    s_cmp_eq_u64 vcc, -1
    s_cbranch_scc0 {name}_slow
    """)
    a.label(f"{name}_aepi")
    for tt, (O, G, P) in enumerate(((OA, GA, 144), (OB, GBr, 154))):
        a(f"v_rcp_f32 v{P+8}, v{O+10}")
        a(f"v_mul_f32 v{P+8}, v{P+8}, v{G}")
        for i in range(10): a(f"v_mul_f32 v{O+i}, v{O+i}, v{P+8}")
        for j in range(5): a(f"v_cvt_pk_bf16_f32 v{P+j}, v{O+2*j}, v{O+2*j+1}")
        a(f"buffer_store_dwordx4 {vr(P,4)}, v{V_ST}, {sr(R_WS,4)}, s{S_T1} offen offset:{tt*1152}")
        a(f"buffer_store_dword v{P+4}, v{V_STX}, {sr(R_WS,4)}, s{S_T1} offen offset:{tt*1152+1024}")
    if FUSE3:
        a(f"""
        s_lshr_b32 s{S_T0}, s{S_T0}, 3
        s_lshl_b32 s{S_T0}, s{S_T0}, 7
        s_and_b32 s{S_T2}, s{S_H}, 7
        s_lshl_b32 s{S_T2}, s{S_T2}, 2
        s_add_u32 s{S_T0}, s{S_T0}, s{S_T2}
        s_add_u32 s{S_T0}, s{S_T0}, {OFL}
        v_cmp_eq_u32 vcc, 0, v0
        v_mov_b32 v10, {OOB}
        v_cndmask_b32 v10, v10, v0, vcc
        v_mov_b32 v11, 1
        """)
        signal(6, 12, 13)
        a("s_waitcnt vmcnt(0)")
        stamp('ack')
        a(f"buffer_store_dword v11, v10, {sr(R_WS,4)}, s{S_T0} offen")
    if stamp.on:
        a("s_waitcnt vmcnt(0)")
        stamp('end')
        stamp.out(9)
    a("s_endpgm")
    a.hists = [[]]
    a.label(f"{name}_slow")
    MA, MB = 144, 145
    a(f"""
    s_nop 7
    s_mul_i32 s{S_T3}, s{S_W}, 3072
    s_add_u32 s{S_T3}, s{S_T3}, {QST}
    s_sub_u32 s{S_T2}, s{S_T3}, {KVB}
    v_add_u32 v{A_K}, s{S_T2}, v{A_K}
    v_add_u32 v{A_X}, s{S_T2}, v{A_X}
    v_add_u32 v{A_V0}, s{S_T2}, v{A_V0}
    v_add_u32 v{A_V1}, s{S_T2}, v{A_V1}
    v_mov_b32 v{QA1+1}, 0
    v_mov_b32 v{QB1+1}, 0
    v_mov_b32 v{MA}, 0xff000000
    v_mov_b32 v{MB}, 0xff000000
    s_mov_b32 s{S_IT}, 0
    s_mov_b32 s{S_T2}, s{S_KVO}
    """)
    for r in range(OA, OA+32): a(f"v_mov_b32 v{r}, 0")
    a.fence()
    a.label(f"{name}_sloop")
    a(f"s_mov_b32 m0, s{S_T3}")
    for i in range(3):
        a(f"buffer_load_dwordx4 v1, {sr(R_WS,4)}, s{S_T2} offen offset:{i*1024} sc1 lds")
    a("s_waitcnt vmcnt(0)")
    for x in kreads(0, 0): a(x)
    a(f"ds_read_b128 {vr(V0[0],4)}, v{A_V0}")
    a(f"ds_read_b128 {vr(V0[0]+4,4)}, v{A_V1}")
    a("s_waitcnt lgkmcnt(0)")
    for x in qk(SA, QA0, QA1, 0) + qk(SB, QB0, QB1, 0): a(x)
    for S, P, O, M in ((SA, PA, OA, MA), (SB, PB, OB, MB)):
        a(f"v_max3_f32 v10, v{S}, v{S+1}, v{M}")
        for i in range(2, 16, 2): a(f"v_max3_f32 v10, v10, v{S+i}, v{S+i+1}")
        a("v_mov_b32 v11, v10")
        a("v_permlane32_swap_b32 v10, v11")
        a("v_max_f32 v10, v10, v11")
        a(f"v_sub_f32 v11, v{M}, v10")
        a("v_exp_f32 v11, v11")
        a(f"v_mov_b32 v{M}, v10")
        for i in range(16): a(f"v_sub_f32 v{S+i}, v{S+i}, v10")
        for i in range(16): a(f"v_exp_f32 v{S+i}, v{S+i}")
        for i in range(16): a(f"v_mul_f32 v{O+i}, v{O+i}, v11")
        for j in range(8): a(f"v_cvt_pk_bf16_f32 v{P+j}, v{S+2*j}, v{S+2*j+1}")
        for x in pv(O, P, 0): a(x)
    a(f"""
    s_add_u32 s{S_T2}, s{S_T2}, {KVREC}
    s_add_u32 s{S_IT}, s{S_IT}, 1
    s_cmp_lt_u32 s{S_IT}, 64
    """)
    a.fence()
    a(f"s_cbranch_scc1 {name}_sloop")
    a(f"s_branch {name}_aepi")
    a.hists = [[]]
    a.label(f"{name}_astub")
    a(f"s_cmp_eq_u32 s{S_IT}, 6")
    a(f"s_cbranch_scc1 {name}_astub6")
    a(f"s_cmp_eq_u32 s{S_IT}, 3")
    a(f"s_cbranch_scc1 {name}_astub3")
    poll(2, 10, 11, "ap2", 1)
    a(f"s_branch {name}_acont")
    a.label(f"{name}_astub3")
    poll(3, 10, 11, "ap3", 1)
    a(f"s_branch {name}_acont")
    a.label(f"{name}_astub6")
    signal(0, 10, 11)
    a("s_nop 3")
    a(f"s_branch {name}_acont")

    a.vmr = {'A': 0, 'B': 0}
    a.restore(snap0)
    labels_att = list(stamp.labels)
    del stamp.labels[1:]
    a.label(f"{name}_gemm")
    ACC32 = lambda q, h: 4 + q*36 + h*16
    ACC16 = lambda q: 4 + q*36 + 32
    BUF = lambda b: 148 + (b % 3)*28
    V_W8 = 2; V_H = 232; TM = 236
    a(f"""
    s_sub_u32 s{S_T3}, s{S_W}, 4
    s_and_b32 s{S_IT}, s{S_XCD}, 1
    s_mul_i32 s{S_IT}, s{S_IT}, 144
    s_mul_i32 s{S_T1}, s{S_T3}, 36
    s_add_u32 s{S_IT}, s{S_IT}, s{S_T1}
    s_lshr_b32 s{S_T1}, s{S_XCD}, 1
    s_lshl_b32 s{S_T1}, s{S_T1}, 2
    s_lshr_b32 s{S_T2}, s{S_LOC}, 3
    s_add_u32 s{S_QB}, s{S_T1}, s{S_T2}
    s_and_b32 s{S_H}, s{S_LOC}, 7
    s_mul_i32 s{S_HO}, s{S_QB}, 288
    s_add_u32 s{S_HO}, s{S_HO}, s{S_IT}
    s_lshl_b32 s{S_HO}, s{S_HO}, 12
    s_mul_i32 s{S_WO}, s{S_H}, 288
    s_add_u32 s{S_WO}, s{S_WO}, s{S_IT}
    s_mul_i32 s{S_WO}, s{S_WO}, 2304
    s_add_u32 s{S_WO}, s{S_WO}, {WDP}
    """)
    w8_voffset(a, V_W8, 3)
    for q in range(4):
        a(f"s_add_u32 s{S_T1}, s{S_T3}, {q}")
        a(f"s_and_b32 s{S_T1}, s{S_T1}, 3")
        a(f"s_lshl_b32 s{S_T1}, s{S_T1}, 10")
        a(f"v_add_u32 v{V_H+q}, s{S_T1}, v1")
    a("s_waitcnt lgkmcnt(0)")
    make_srd(a, R_WS, P_WS, WS_USED)
    first_id = first_chunk()
    ld_id = {}
    def ldH(k, q): a(f"buffer_load_dwordx4 {vr(BUF(k)+4*q,4)}, v{V_H+q}, {sr(R_WS,4)}, s{S_HO} offen")
    def ldW(k):
        a(f"buffer_load_dwordx4 {vr(BUF(k)+16,4)}, v1, {sr(R_WS,4)}, s{S_WO} offen")
        a(f"buffer_load_dwordx4 {vr(BUF(k)+20,4)}, v1, {sr(R_WS,4)}, s{S_WO} offen offset:1024")
        ld_id[k] = a.emit(f"buffer_load_dwordx4 {vr(BUF(k)+24,4)}, v{V_W8}, {sr(R_WS,4)}, s{S_WO} offen offset:2048")
        a(f"s_add_u32 s{S_HO}, s{S_HO}, 4096")
        a(f"s_add_u32 s{S_WO}, s{S_WO}, 2304")
    for k in range(2):
        for q in range(4): ldH(k, q)
        ldW(k)
    a(f"s_lshl_b32 s{S_M0}, s{S_T3}, 10")
    a(f"s_add_u32 s{S_KVO}, s{S_KVO}, s{S_M0}")
    a.wait_vm(first_id)
    a("s_barrier")
    stamp('bar1')
    kvn = [0]; kv_id = {}
    def kvdma(n):
        for _ in range(n):
            if kvn[0] >= NC2 + NC3: return
            off = NFIRST*8192 + kvn[0]*4096
            a(f"s_add_u32 m0, s{S_M0}, {off}")
            a(f"s_add_u32 s{S_T1}, s{S_KVO}, {off}")
            kvn[0] += 1
            kv_id[kvn[0]] = a.emit(f"buffer_load_dwordx4 v1, {sr(R_WS,4)}, s{S_T1} offen lds")
    kvdma(NC2)
    for q in range(4): ldH(2, q)
    ldW(2)
    sig = {2: False, 3: False}
    NK = 0 if opts.get('nogemm') else 36
    for k in range(36):
        a.wait_vm(ld_id[k])
        for fl, last in ((2, NC2), (3, NC2 + NC3)):
            if not sig[fl] and last in kv_id and kv_id[last]['A'] <= ld_id[k]['A']:
                signal(fl, TM, TM+1); sig[fl] = True
        if stamp.on and k % 3 == 0: stamp('', 32 + k // 3)
        for q in range(4):
            h = vr(BUF(k)+4*q, 4)
            c = (lambda x: "0") if k == 0 else (lambda x: x)
            if k < NK:
                a(f"v_mfma_f32_32x32x16_bf16 {vr(ACC32(q,0),16)}, {vr(BUF(k)+16,4)}, {h}, {c(vr(ACC32(q,0),16))}")
                a(f"v_mfma_f32_32x32x16_bf16 {vr(ACC32(q,1),16)}, {vr(BUF(k)+20,4)}, {h}, {c(vr(ACC32(q,1),16))}")
                a(f"v_mfma_f32_16x16x32_bf16 {vr(ACC16(q),4)}, {vr(BUF(k)+24,4)}, {h}, {c(vr(ACC16(q),4))}")
            if k + 3 < 36: ldH(k + 3, q)
        kvdma(3)
        if k + 3 < 36: ldW(k + 3)
    assert sig[2] and sig[3]
    stamp('loop')
    a.fence()
    poll(0, TM, TM+1, "gw1", 8)
    a("s_setprio 2")
    stamp('flag1')
    for q in range(1, 4):
        a(f"s_add_u32 s{S_T1}, s{S_T3}, {q}")
        a(f"s_and_b32 s{S_T1}, s{S_T1}, 3")
        a(f"s_mul_i32 s{S_T1}, s{S_T1}, {3*9216}")
        a(f"v_add_u32 v{TM+2+q}, s{S_T1}, v1")
        for i in range(9):
            a(f"ds_write_b128 v{TM+2+q}, {vr(4 + q*36 + 4*i, 4)} offset:{(q-1)*9216 + i*1024}")
    a("s_waitcnt lgkmcnt(0)")
    signal(1, TM, TM+1)
    a(f"""
    s_mul_i32 s{S_T1}, s{S_T3}, {3*9216}
    v_add_u32 v{TM+2}, s{S_T1}, v1
    s_and_b32 s{S_T2}, s{S_XCD}, 1
    s_lshl_b32 s{S_T2}, s{S_T2}, 4
    s_add_u32 s{S_T2}, s{S_T2}, s{S_QB}
    s_lshl_b32 s{S_T2}, s{S_T2}, 3
    s_add_u32 s{S_T2}, s{S_T2}, s{S_H}
    s_lshl_b32 s{S_T2}, s{S_T2}, 2
    s_add_u32 s{S_T2}, s{S_T2}, s{S_T3}
    s_mul_i32 s{S_T2}, s{S_T2}, 9216
    s_add_u32 s{S_T2}, s{S_T2}, {BP}
    """)
    a.fence()
    poll(1, TM, TM+1, "gw2", 1)
    ids = {}
    def rd3(i):
        for sl in range(3):
            ids[i] = a.emit(f"ds_read_b128 {vr(40 + (i*3+sl)*4, 4)}, v{TM+2} offset:{sl*9216 + i*1024}")
    for i in range(4): rd3(i)
    for i in range(9):
        a.wait_lg(ids[i])
        if i + 4 < 9: rd3(i + 4)
        for sl in range(3):
            for j in range(4):
                a(f"v_add_f32 v{4+4*i+j}, v{4+4*i+j}, v{40 + (i*3+sl)*4 + j}")
        if not FUSE3:
            if i % 4 == 0 and i: a(f"s_add_u32 s{S_T2}, s{S_T2}, 4096")
            a(f"buffer_store_dwordx4 {vr(4+4*i,4)}, v1, {sr(R_WS,4)}, s{S_T2} offen offset:{(i%4)*1024}")
    if FUSE3:
        def gpoll(tag, voff, soff, maskreg):
            a(f"s_mov_b32 s{S_SP}, 0")
            a.fence()
            a.label(f"{name}_{tag}")
            a(f"""
            buffer_load_dword v{TM+1}, v{voff}, {sr(R_WS,4)}, s{soff} offen sc1
            s_add_u32 s{S_SP}, s{S_SP}, 1
            s_waitcnt vmcnt(0)
            v_cmp_ne_u32 vcc, 1, v{TM+1}
            s_and_b32 vcc_lo, vcc_lo, s{maskreg}
            s_cbranch_scc0 {name}_{tag}d
            s_cmp_ge_u32 s{S_SP}, 0x8000
            s_cbranch_scc1 {name}_{tag}d
            s_sleep {opts.get('gsleep', 8)}
            s_branch {name}_{tag}
            """)
            a.label(f"{name}_{tag}d")
        a("s_setprio 0")
        stamp('red')
        signal(4, TM, TM+1)
        TM = 248
        WB = lambda k: 76 + k*12
        OBUF = lambda k: 184 + (k % 8)*8
        make_srd(a, R_OUT, P_OUT, 2048*1152)
        a(f"""
        s_and_b32 s{S_KH}, s{S_XCD}, 1
        s_lshl_b32 s{S_T0}, s{S_T3}, 3
        s_mul_i32 s{S_T1}, s{S_H}, 36
        s_add_u32 s{S_WO}, s{S_T1}, s{S_T0}
        s_mul_i32 s{S_WO}, s{S_WO}, 2304
        s_add_u32 s{S_WO}, s{S_WO}, {WOP}
        s_add_u32 s{S_M0}, s{S_T1}, s{S_T3}
        s_mul_i32 s{S_M0}, s{S_M0}, 2304
        s_add_u32 s{S_M0}, s{S_M0}, {WOP + 32*2304}
        s_lshl_b32 s{S_IT}, s{S_QB}, 1
        s_add_u32 s{S_IT}, s{S_IT}, s{S_KH}
        s_lshl_b32 s{S_OA}, s{S_IT}, 5
        s_add_u32 s{S_OA}, s{S_OA}, s{S_T0}
        s_mul_i32 s{S_OA}, s{S_OA}, 2304
        s_add_u32 s{S_OA}, s{S_OA}, {OF}
        s_and_b32 s{S_T1}, s{S_T3}, 1
        s_mul_i32 s{S_T1}, s{S_T1}, 1152
        s_sub_u32 s{S_OB}, s{S_OA}, s{S_T1}
        s_add_u32 s{S_OB}, s{S_OB}, 1152
        s_add_u32 s{S_OA}, s{S_OA}, s{S_T1}
        s_lshr_b32 s{S_T1}, s{S_T3}, 1
        s_cmp_eq_u32 s{S_T1}, s{S_KH}
        s_cbranch_scc1 {name}_mine
        """)
        snapf = a.snapshot()
        for i in range(9):
            if i % 4 == 0 and i: a(f"s_add_u32 s{S_T2}, s{S_T2}, 4096")
            a(f"buffer_store_dwordx4 {vr(4+4*i,4)}, v1, {sr(R_WS,4)}, s{S_T2} offen offset:{(i%4)*1024}")
        a(f"""
        s_lshl_b32 s{S_T0}, s2, 1
        s_and_b32 s{S_T1}, s{S_T3}, 1
        s_add_u32 s{S_T0}, s{S_T0}, s{S_T1}
        s_lshl_b32 s{S_T0}, s{S_T0}, 6
        s_add_u32 s{S_T0}, s{S_T0}, {PFL}
        v_cmp_eq_u32 vcc, 0, v0
        v_mov_b32 v{TM}, {OOB}
        v_cndmask_b32 v{TM}, v{TM}, v0, vcc
        v_mov_b32 v{TM+1}, 1
        s_waitcnt vmcnt(0)
        buffer_store_dword v{TM+1}, v{TM}, {sr(R_WS,4)}, s{S_T0} offen
        """)
        for i in range(36): a(f"v_mov_b32 v{4+i}, 0")
        a(f"s_branch {name}_fin")
        snapn = a.snapshot()
        a.restore(snapf)
        a.label(f"{name}_mine")
        a(f"""
        s_xor_b32 s{S_T0}, s2, 1
        s_lshl_b32 s{S_T0}, s{S_T0}, 1
        s_and_b32 s{S_T1}, s{S_T3}, 1
        s_add_u32 s{S_T0}, s{S_T0}, s{S_T1}
        s_lshl_b32 s{S_T0}, s{S_T0}, 6
        s_add_u32 s{S_T0}, s{S_T0}, {PFL}
        v_mov_b32 v{TM}, 0
        s_mov_b32 s{S_MSK}, 1
        s_lshl_b32 s{S_HO}, s{S_QB}, 2
        s_add_u32 s{S_HO}, s{S_HO}, s{S_T3}
        s_lshl_b32 s{S_HO}, s{S_HO}, 7
        s_add_u32 s{S_HO}, s{S_HO}, {GB}
        v_and_b32 v{TM+2}, 31, v0
        v_lshlrev_b32 v{TM+2}, 2, v{TM+2}
        buffer_load_dword v{TM+4}, v{TM+2}, {sr(R_WS,4)}, s{S_HO} offen sc1
        v_and_b32 v{TM+2}, 15, v0
        v_lshrrev_b32 v{TM+3}, 5, v0
        v_lshl_add_u32 v{TM+2}, v{TM+3}, 4, v{TM+2}
        v_lshlrev_b32 v{TM+2}, 2, v{TM+2}
        buffer_load_dword v{TM+5}, v{TM+2}, {sr(R_WS,4)}, s{S_HO} offen sc1
        s_cmp_eq_u32 s{S_KH}, 0
        s_mov_b32 s{S_T1}, {(-(BP_SZ//2)) & 0xffffffff}
        s_cselect_b32 s{S_T1}, {BP_SZ//2}, s{S_T1}
        s_add_u32 s{S_T2}, s{S_T2}, s{S_T1}
        """)
        gpoll("pp", TM, S_T0, S_MSK)
        for i in range(9):
            if i % 4 == 0 and i: a(f"s_add_u32 s{S_T2}, s{S_T2}, 4096")
            a(f"buffer_load_dwordx4 {vr(40+4*i,4)}, v1, {sr(R_WS,4)}, s{S_T2} offen offset:{(i%4)*1024} sc1")
        a(f"v_sub_f32 v{TM+4}, 1.0, v{TM+4}")
        a(f"v_sub_f32 v{TM+5}, 1.0, v{TM+5}")
        a("s_waitcnt vmcnt(0)")
        for i in range(36):
            a(f"v_add_f32 v{4+i}, v{4+i}, v{40+i}")
        for i in range(36):
            a(f"v_mul_f32 v{4+i}, v{4+i}, v{TM+4 if i < 32 else TM+5}")
        a.merge(snapn)
        a.label(f"{name}_fin")
        stamp('part')
        for k in range(9):
            a(f"buffer_load_dwordx4 {vr(WB(k),4)}, v1, {sr(R_WS,4)}, s{S_WO} offen sc1")
            a(f"buffer_load_dwordx4 {vr(WB(k)+4,4)}, v1, {sr(R_WS,4)}, s{S_WO} offen offset:1024 sc1")
            a(f"buffer_load_dwordx4 {vr(WB(k)+8,4)}, v{V_W8}, {sr(R_WS,4)}, s{S_WO} offen offset:2048 sc1")
            if k < 7: a(f"s_add_u32 s{S_WO}, s{S_WO}, 2304")
            if k == 7: a(f"s_mov_b32 s{S_WO}, s{S_M0}")
        a(f"""
        s_movk_i32 s{S_MSK}, 0xff
        s_lshl_b32 s{S_T2}, s{S_IT}, 2
        s_add_u32 s{S_T2}, s{S_T2}, s{S_T3}
        s_lshl_b32 s{S_T2}, s{S_T2}, 7
        s_add_u32 s{S_T2}, s{S_T2}, {OFL}
        v_and_b32 v{TM}, 31, v0
        v_mul_u32_u24 v{TM+4}, 1152, v{TM}
        v_lshrrev_b32 v{TM+3}, 5, v0
        v_lshl_add_u32 v{TM+4}, v{TM+3}, 5, v{TM+4}
        v_and_b32 v{TM+2}, 15, v0
        v_lshl_add_u32 v{TM+2}, v{TM+3}, 4, v{TM+2}
        v_mul_u32_u24 v{TM+5}, 1152, v{TM+2}
        v_bfe_u32 v{TM+2}, v0, 4, 1
        v_lshl_add_u32 v{TM+5}, v{TM+2}, 3, v{TM+5}
        v_lshlrev_b32 v{TM}, 2, v{TM}
        v_mul_u32_u24 v{TM+6}, {4*2304}, v{TM+3}
        v_add_u32 v{TM+6}, v{TM+6}, v{TM}
        s_mul_i32 s{S_T0}, s{S_T3}, 18432
        s_and_b32 s{S_T1}, s{S_T3}, 1
        s_mul_i32 s{S_T1}, s{S_T1}, 9216
        s_add_u32 s{S_HO}, s{S_T0}, s{S_T1}
        v_add_u32 v{TM+2}, s{S_HO}, v1
        s_sub_u32 s{S_HO}, s{S_T0}, s{S_T1}
        s_add_u32 s{S_HO}, s{S_HO}, 9216
        v_add_u32 v{TM+3}, s{S_HO}, v1
        """)
        poll(4, 3, TM+1, "gw4", 1)
        poll(6, 3, TM+1, "gw6", 4)
        stamp('own')
        gpoll("op", TM, S_T2, S_MSK)
        a("s_setprio 2")
        stamp('oflag')
        oid = {}
        def ldO(k):
            a(f"buffer_load_dwordx4 {vr(OB_(k),4)}, v1, {sr(R_WS,4)}, s{S_OA} offen sc1")
            oid[k] = a.emit(f"buffer_load_dwordx4 {vr(OB_(k)+4,4)}, v1, {sr(R_WS,4)}, s{S_OB} offen sc1")
            if k < 4:
                a(f"buffer_load_dword v{OB_(8)+k}, v{TM+6}, {sr(R_WS,4)}, s{S_OA} offen offset:1024 sc1")
                oid[8] = a.emit(f"buffer_load_dword v{OB_(8)+4+k}, v{TM+6}, {sr(R_WS,4)}, s{S_OB} offen offset:1024 sc1")
            a(f"s_add_u32 s{S_OA}, s{S_OA}, 2304")
            a(f"s_add_u32 s{S_OB}, s{S_OB}, 2304")
        OB_ = lambda k: OBUF(7) if k == 8 else OBUF(k % 7)
        for k in range(7): ldO(k)
        for k in (0, 1, 2, 3, 8, 4, 5, 6, 7):
            a.wait_vm(oid[k])
            for q in range(2):
                o = vr(OB_(k)+4*q, 4)
                c = (lambda x: "0") if (k == 0 and q == 1) else (lambda x: x)
                a(f"v_mfma_f32_32x32x16_bf16 {vr(ACC32(q,0),16)}, {vr(WB(k),4)}, {o}, {c(vr(ACC32(q,0),16))}")
                a(f"v_mfma_f32_32x32x16_bf16 {vr(ACC32(q,1),16)}, {vr(WB(k)+4,4)}, {o}, {c(vr(ACC32(q,1),16))}")
                a(f"v_mfma_f32_16x16x32_bf16 {vr(ACC16(q),4)}, {vr(WB(k)+8,4)}, {o}, {c(vr(ACC16(q),4))}")
            if k == 0: ldO(7)
        stamp('omfma')
        for q in range(2):
            for i in range(9):
                a(f"ds_write_b128 v{TM+2+q}, {vr(4+q*36+4*i,4)} offset:{i*1024}")
        a(f"""
        s_lshr_b32 s{S_T1}, s{S_T3}, 1
        s_and_b32 s{S_KH}, s{S_T3}, 1
        s_lshl_b32 s{S_T0}, s{S_IT}, 1
        s_add_u32 s{S_T0}, s{S_T0}, s{S_T1}
        s_mul_i32 s{S_OB}, s{S_T0}, {32*1152}
        s_mul_i32 s{S_T0}, s{S_H}, 144
        s_add_u32 s{S_OB}, s{S_OB}, s{S_T0}
        s_lshl_b32 s{S_T0}, s{S_KH}, 6
        s_add_u32 s{S_OA}, s{S_OB}, s{S_T0}
        s_mul_i32 s{S_T0}, s{S_T1}, 9216
        v_add_u32 v{TM+2}, s{S_T0}, v1
        s_lshl_b32 s{S_T0}, s{S_KH}, 12
        v_add_u32 v{TM+3}, s{S_T0}, v{TM+2}
        s_waitcnt lgkmcnt(0)
        """)
        signal(5, 3, TM+1)
        a.fence()
        poll(5, 3, TM+1, "gw5", 0)
        stamp('dump')
        R = 76
        for wv in range(4):
            for i in range(4):
                a(f"ds_read_b128 {vr(R + wv*20 + 4*i, 4)}, v{TM+3} offset:{wv*18432 + i*1024}")
            a(f"ds_read_b128 {vr(R + wv*20 + 16, 4)}, v{TM+2} offset:{wv*18432 + 8192}")
            if wv == 1: a("s_waitcnt lgkmcnt(4)")
        a("s_waitcnt lgkmcnt(10)")
        for i in range(20): a(f"v_add_f32 v{R+i}, v{R+i}, v{R+20+i}")
        a("s_waitcnt lgkmcnt(0)")
        for i in range(20): a(f"v_add_f32 v{R+40+i}, v{R+40+i}, v{R+60+i}")
        for i in range(20): a(f"v_add_f32 v{R+i}, v{R+i}, v{R+40+i}")
        for j in range(10): a(f"v_cvt_pk_bf16_f32 v{4+j}, v{R+2*j}, v{R+2*j+1}")
        a(f"buffer_store_dwordx4 v[4:7], v{TM+4}, {sr(R_OUT,4)}, s{S_OA} offen ;plain")
        a(f"buffer_store_dwordx4 v[8:11], v{TM+4}, {sr(R_OUT,4)}, s{S_OA} offen offset:16 ;plain")
        a(f"s_cmp_lg_u32 s{S_KH}, 0")
        a(f"s_cbranch_scc1 {name}_fin2")
        a(f"buffer_store_dwordx2 v[12:13], v{TM+5}, {sr(R_OUT,4)}, s{S_OB} offen offset:128 ;plain")
        a.label(f"{name}_fin2")
    if stamp.on:
        a("s_waitcnt vmcnt(0)")
        stamp('end')
        stamp.out(9)
    a.label(f"{name}_end")
    a("s_endpgm")
    a.stamps = ["/".join(x) for x in zip(labels_att + ["-"]*8, stamp.labels)] if stamp.on else []
    return a, kdesc(name), dict(grid=256, block=512, lds=163840)

def w8_voffset(a, dst, tmp):
    a(f"""
    v_bfe_u32 v{dst}, v0, 3, 1
    v_bfe_u32 v{tmp}, v0, 4, 1
    v_cmp_eq_u32 vcc, v{dst}, v{tmp}
    v_lshrrev_b32 v{tmp}, 5, v0
    v_lshlrev_b32 v{tmp}, 7, v{tmp}
    v_and_b32 v{dst}, 7, v0
    v_lshl_add_u32 v{tmp}, v{dst}, 4, v{tmp}
    v_mov_b32 v{dst}, {OOB}
    v_cndmask_b32 v{dst}, v{dst}, v{tmp}, vcc
    """)

def gen_k3(name="k3_kernel", opts=None):
    opts = opts or {}
    a = Asm()
    R_WS, R_OUT = 28, 48
    S_W, S_XCD, S_LOC, S_NB, S_MB, S_T0, S_T1, S_T2, S_T3, S_OO, S_WO = 32, 33, 34, 35, 36, 37, 38, 39, 40, 41, 42
    V_STAMP = 255
    stamp = Stamper(a, opts.get('stamp', False), V_STAMP, S_W, R_WS, WS_USED + (2 << 20))
    a.stamps = stamp.labels
    a.raw(f".globl {name}\n.p2align 8\n.type {name},@function\n{name}:")
    a("s_cmp_ge_u32 s2, 256")
    a(f"s_cbranch_scc1 {name}_end")
    stamp('start')
    a("s_load_dwordx2 s[24:25], s[0:1], 80")
    a("s_load_dwordx2 s[20:21], s[0:1], 64")
    a(f"""
    v_lshrrev_b32 v1, 6, v0
    v_and_b32 v0, 63, v0
    s_and_b32 s{S_XCD}, s2, 7
    v_readfirstlane_b32 s{S_W}, v1
    s_lshr_b32 s{S_LOC}, s2, 3
    s_and_b32 s{S_NB}, s{S_LOC}, 7
    s_lshr_b32 s{S_T0}, s{S_LOC}, 3
    s_lshl_b32 s{S_MB}, s{S_XCD}, 2
    s_add_u32 s{S_MB}, s{S_MB}, s{S_T0}
    v_lshlrev_b32 v1, 4, v0
    s_mul_i32 s{S_T0}, s{S_W}, 9
    s_mul_i32 s{S_OO}, s{S_MB}, 36
    s_add_u32 s{S_OO}, s{S_OO}, s{S_T0}
    s_lshl_b32 s{S_OO}, s{S_OO}, 11
    s_add_u32 s{S_OO}, s{S_OO}, {OF}
    s_mul_i32 s{S_WO}, s{S_NB}, 36
    s_add_u32 s{S_WO}, s{S_WO}, s{S_T0}
    s_mul_i32 s{S_WO}, s{S_WO}, 2304
    s_add_u32 s{S_WO}, s{S_WO}, {WOP}
    """)
    w8_voffset(a, 2, 3)
    a("s_waitcnt lgkmcnt(0)")
    make_srd(a, R_WS, P_WS, WS_USED)
    make_srd(a, R_OUT, P_OUT, 2048*1152)
    ACC32 = lambda tt, h: 4 + tt*36 + h*16
    ACC16 = lambda tt: 4 + tt*36 + 32
    NB = 6
    BUF = lambda b: 76 + (b % NB)*20
    PB = 196
    ids = {}
    def ld(k):
        b = BUF(k)
        a(f"buffer_load_dwordx4 {vr(b,4)}, v1, {sr(R_WS,4)}, s{S_OO} offen")
        a(f"buffer_load_dwordx4 {vr(b+4,4)}, v1, {sr(R_WS,4)}, s{S_OO} offen offset:1024")
        a(f"buffer_load_dwordx4 {vr(b+8,4)}, v1, {sr(R_WS,4)}, s{S_WO} offen")
        a(f"buffer_load_dwordx4 {vr(b+12,4)}, v1, {sr(R_WS,4)}, s{S_WO} offen offset:1024")
        ids[k] = a.emit(f"buffer_load_dwordx4 {vr(b+16,4)}, v2, {sr(R_WS,4)}, s{S_WO} offen offset:2048")
        a(f"s_add_u32 s{S_OO}, s{S_OO}, 2048")
        a(f"s_add_u32 s{S_WO}, s{S_WO}, 2304")
    for k in range(NB): ld(k)
    a(f"""
    s_lshr_b32 s{S_T0}, s{S_MB}, 1
    s_lshl_b32 s{S_T0}, s{S_T0}, 3
    s_add_u32 s{S_T0}, s{S_T0}, s{S_NB}
    s_lshl_b32 s{S_T0}, s{S_T0}, 2
    s_and_b32 s{S_T1}, s{S_MB}, 1
    s_lshl_b32 s{S_T1}, s{S_T1}, 1
    s_add_u32 s{S_T0}, s{S_T0}, s{S_T1}
    s_lshr_b32 s{S_T1}, s{S_W}, 1
    s_add_u32 s{S_T0}, s{S_T0}, s{S_T1}
    s_mul_i32 s{S_T0}, s{S_T0}, 9216
    s_add_u32 s{S_T0}, s{S_T0}, {BP}
    s_and_b32 s{S_T2}, s{S_W}, 1
    s_lshl_b32 s{S_T3}, s{S_T2}, 12
    s_add_u32 s{S_T3}, s{S_T3}, s{S_T0}
    s_add_u32 s{S_T0}, s{S_T0}, 8192
    """)
    def ldp():
        for kh in range(2):
            for i in range(4):
                a(f"buffer_load_dwordx4 {vr(PB+kh*20+4*i,4)}, v1, {sr(R_WS,4)}, s{S_T3} offen offset:{i*1024}")
            a(f"buffer_load_dwordx4 {vr(PB+kh*20+16,4)}, v1, {sr(R_WS,4)}, s{S_T0} offen")
            if kh == 0:
                a(f"s_add_u32 s{S_T3}, s{S_T3}, {BP_SZ//2}")
                a(f"s_add_u32 s{S_T0}, s{S_T0}, {BP_SZ//2}")
        a(f"""
        s_lshl_b32 s{S_T0}, s{S_MB}, 1
        s_add_u32 s{S_T0}, s{S_T0}, s{S_T1}
        s_lshl_b32 s{S_T3}, s{S_T0}, 7
        s_add_u32 s{S_T3}, s{S_T3}, {GB}
        v_and_b32 v236, 31, v0
        v_lshlrev_b32 v237, 2, v236
        buffer_load_dword v240, v237, {sr(R_WS,4)}, s{S_T3} offen
        v_and_b32 v238, 15, v0
        v_lshrrev_b32 v239, 5, v0
        v_lshl_add_u32 v238, v239, 4, v238
        v_lshlrev_b32 v237, 2, v238
        """)
        return a.emit(f"buffer_load_dword v241, v237, {sr(R_WS,4)}, s{S_T3} offen")
    stamp('issued')
    for k in range(9):
        a.wait_vm(ids[k])
        b = BUF(k)
        for tt in range(2):
            o = vr(b+4*tt, 4)
            c = lambda x: "0" if k == 0 else x
            a(f"v_mfma_f32_32x32x16_bf16 {vr(ACC32(tt,0),16)}, {vr(b+8,4)}, {o}, {c(vr(ACC32(tt,0),16))}")
            a(f"v_mfma_f32_32x32x16_bf16 {vr(ACC32(tt,1),16)}, {vr(b+12,4)}, {o}, {c(vr(ACC32(tt,1),16))}")
            a(f"v_mfma_f32_16x16x32_bf16 {vr(ACC16(tt),4)}, {vr(b+16,4)}, {o}, {c(vr(ACC16(tt),4))}")
        if k + NB < 9: ld(k + NB)
        if k + NB == 9: p_id = ldp()
    stamp('mfma')
    a(f"s_mul_i32 s{S_T3}, s{S_W}, 18432")
    a(f"v_add_u32 v3, s{S_T3}, v1")
    for i in range(18):
        a(f"ds_write_b128 v3, {vr(4+4*i,4)} offset:{i*1024}")
    a(f"""
    s_mul_i32 s{S_T0}, s{S_T0}, {32*1152}
    s_mul_i32 s{S_T3}, s{S_NB}, 144
    s_add_u32 s{S_T0}, s{S_T0}, s{S_T3}
    s_lshl_b32 s{S_T3}, s{S_T2}, 6
    s_add_u32 s{S_OO}, s{S_T0}, s{S_T3}
    v_mul_u32_u24 v242, 1152, v236
    v_lshl_add_u32 v242, v239, 5, v242
    v_mul_u32_u24 v243, 1152, v238
    v_bfe_u32 v237, v0, 4, 1
    v_lshl_add_u32 v243, v237, 3, v243
    s_mul_i32 s{S_T3}, s{S_T1}, 9216
    v_add_u32 v244, s{S_T3}, v1
    s_lshl_b32 s{S_T3}, s{S_T2}, 12
    v_add_u32 v245, s{S_T3}, v244
    s_waitcnt lgkmcnt(0)
    s_barrier
    """)
    R = 76
    for wv in range(4):
        for i in range(4):
            a(f"ds_read_b128 {vr(R + wv*20 + 4*i, 4)}, v245 offset:{wv*18432 + i*1024}")
        a(f"ds_read_b128 {vr(R + wv*20 + 16, 4)}, v244 offset:{wv*18432 + 8192}")
        if wv == 1: a("s_waitcnt lgkmcnt(4)")
    a.wait_vm(p_id)
    a("v_sub_f32 v240, 1.0, v240")
    a("v_sub_f32 v241, 1.0, v241")
    for i in range(20): a(f"v_add_f32 v{PB+i}, v{PB+i}, v{PB+20+i}")
    a("s_waitcnt lgkmcnt(0)")
    for i in range(20):
        a(f"v_add_f32 v{R+i}, v{R+i}, v{R+20+i}")
        a(f"v_add_f32 v{R+40+i}, v{R+40+i}, v{R+60+i}")
    for i in range(20):
        a(f"v_add_f32 v{R+i}, v{R+i}, v{R+40+i}")
    for i in range(20):
        a(f"v_fmac_f32 v{R+i}, v{PB+i}, v{240 if i < 16 else 241}")
    for j in range(10): a(f"v_cvt_pk_bf16_f32 v{4+j}, v{R+2*j}, v{R+2*j+1}")
    a(f"buffer_store_dwordx4 v[4:7], v242, {sr(R_OUT,4)}, s{S_OO} offen")
    a(f"buffer_store_dwordx4 v[8:11], v242, {sr(R_OUT,4)}, s{S_OO} offen offset:16")
    a(f"s_cmp_lg_u32 s{S_T2}, 0")
    a(f"s_cbranch_scc1 {name}_fin")
    a(f"buffer_store_dwordx2 v[12:13], v243, {sr(R_OUT,4)}, s{S_T0} offen offset:128")
    a.label(f"{name}_fin")
    if stamp.on:
        a("s_waitcnt vmcnt(0)")
        stamp('end')
        stamp.out(9)
    a.label(f"{name}_end")
    a("s_endpgm")
    return a, kdesc(name), dict(grid=256, block=256, lds=73728)
```

```python
S, D, F, NH, DH = 2048, 576, 4608, 32, 18
HF   = 0
HF_SZ = 16*288*4*1024
WDP  = HF + HF_SZ
WDP_SZ = 8*288*2304
WOP  = WDP + WDP_SZ
WOP_SZ = 8*36*2304
KV   = WOP + WOP_SZ
KVREC = 2336
KV_SZ = 32*64*KVREC
QF   = KV + KV_SZ
QREC = 1152
QF_SZ = 32*64*QREC
OF   = QF + QF_SZ
OF_SZ = 32*36*2*1024
GB   = OF + OF_SZ
GB_SZ = 2048*4
BP   = GB + GB_SZ
BP_SZ = 2*16*8*36864
OFL  = BP + BP_SZ
OFL_SZ = 128*128
PFL  = OFL + OFL_SZ
PFL_SZ = 256*128
WS_USED = PFL + PFL_SZ
assert all(x % 128 == 0 for x in (WDP, WOP, KV, QF, OF, GB, BP))
import math
QSCALE = (DH ** -0.5) * math.log2(math.e)
GELU_C1 = -2.0 * math.sqrt(2.0/math.pi) * math.log2(math.e)
GELU_C2 = GELU_C1 * 0.044715
GELU_K  = 1.0/0.044715
```

```python
import sys
from k1 import gen_k1
from k2 import gen_k2, gen_k3
HEADER = open('gated_mix__softmax_full_mha__geglu_ffn__prompt.s.ref').read().split('; Override')[0]

def assemble(kernels):
    out = [HEADER.rstrip('\n')]
    for name, a, kd, l in kernels:
        out.append(f"; @launch kernel={name} grid=({l['grid']},1,1) block=({l['block']},1,1) lds={l['lds']}")
    out.append('.amdgcn_target "amdgcn-amd-amdhsa--gfx950"')
    out.append('.text')
    for name, a, kd, l in kernels:
        out.append(a.text())
    out.append('all_code_end:')
    out.append('  s_endpgm')
    out.append('.section .rodata,"a"')
    for name, a, kd, l in kernels:
        out.append('.p2align 6')
        out.append(kd.strip())
    return '\n'.join(out) + '\n'

def build(opts=None, stamp=False):
    opts = dict(opts or {}); opts['stamp'] = stamp
    import common
    common.WSBASE[0] = opts.get('wsbase', 0)
    ks = []
    for nm, g in (("k1_kernel", gen_k1), ("k2_kernel", gen_k2), ("k3_kernel", gen_k3))[:2 if opts.get('fuse3') else 3]:
        a, kd, l = g(nm, opts)
        ks.append((nm, a, kd, l))
    for nm, a, kd, l in ks:
        fl = opts.get('st_' + nm[:2])
        if fl: a.lines = [x + fl if (x.strip().startswith('buffer_store') and ';plain' not in x) else x for x in a.lines]
    txt = assemble(ks)
    if stamp:
        txt = "".join("; stamps " + ",".join(k[1].stamps) + "\n" for k in ks) + txt
    return txt, ks

DEF = dict(st_k1=' sc1', st_k2=' sc1', fuse3=True)
if __name__ == "__main__":
    txt, ks = build(DEF)
    for k in ks: print(k[0], "instrs", k[1].count, "nops", k[1].nops)
    open('full.s', 'w').write(txt)
    open('gated_mix__softmax_full_mha__geglu_ffn__prompt.s', 'w').write(txt)
    keep = ['start', 'bar0', 'M8', 'S8', 'M11', 'S11', 'S13', 'M14', 'end']
    txt, ks = build(dict(DEF, keep1=keep), stamp=True)
    open('fullstamp.s', 'w').write(txt)
```

```python
import sys
from p1 import gen
HEADER = open('gated_mix__softmax_full_mha__geglu_ffn__prompt.s.ref').read().split('; Override')[0]

def assemble(kernels):
    out = [HEADER.rstrip('\n')]
    for name, a, kd, l in kernels:
        out.append(f"; @launch kernel={name} grid=({l['grid']},1,1) block=({l['block']},1,1) lds={l['lds']}")
    out.append('.amdgcn_target "amdgcn-amd-amdhsa--gfx950"')
    out.append('.text')
    for name, a, kd, l in kernels:
        out.append(a.text())
    out.append('all_code_end:')
    out.append('  s_endpgm')
    out.append('.section .rodata,"a"')
    for name, a, kd, l in kernels:
        out.append('.p2align 6')
        out.append(kd.strip())
    return '\n'.join(out) + '\n'

KN = "gated_mix__softmax_full_mha__geglu_ffn__prompt_kernel"
def build(opts=None, stamp=False):
    opts = dict(opts or {}); opts['stamp'] = stamp
    a, kd, l = gen(KN, opts)
    a.lines = [x + ' sc1' if (x.strip().startswith('buffer_store') and ';plain' not in x) else x for x in a.lines]
    txt = assemble([(KN, a, kd, l)])
    if not opts.get('aslist'):
        txt = txt.replace(f"; @launch kernel={KN} grid", "; @launch grid")
    if stamp:
        txt = "; stamps " + ",".join(a.stamps) + "\n" + txt
    return txt, a

if __name__ == "__main__":
    txt, a = build()
    print("instrs", a.count, "nops", a.nops)
    open('gated_mix__softmax_full_mha__geglu_ffn__prompt.s', 'w').write(txt)
    txt, a = build(dict(aslist=True))
    open('full.s', 'w').write(txt)
    keep = ['start', 'bar0', 'S8', 'S11', 'S12', 'S13', 'M14', 'p1end']
    txt, a = build(dict(aslist=True, keep1=keep), stamp=True)
    open('fullstamp.s', 'w').write(txt)
```

```python
from common import *
from p2 import Phase2

def gen_k1(name="k1_kernel", opts=None):
    opts = opts or {}
    a = Asm()
    XF = lambda u, ks: 112 + (ks*2+u)*4
    ACC = lambda t, u: 48 + (t*2+u)*4
    WF = lambda i: 24 + (i % 6)*4
    V_TRB, V_DMA, V_DMAQ, V_HST, V_XD0, V_XD1, V_XR = 1, 2, 3, 4, 5, 6, 7
    V_DMAG = V_XD0
    V_GUB = V_XD1
    V_TR = [20, 21]; V_TS = 22; V_STAMP = 23
    T = 8
    OUT = 12
    V_XA = [18, 19]
    V_GU = V_XR
    QA = 96
    R_X, R_G, R_U, R_Q, R_WS, R_GW = 28, 32, 36, 40, 44, 52
    S_W, S_XCD, S_B, S_MB, S_J, S_L = 56, 57, 58, 59, 60, 61
    S_TOK, S_T0, S_T1, S_T2, S_T3 = 62, 63, 64, 65, 66
    S_GOFF, S_HB, S_G2O, S_QO = 67, 68, 69, 70
    S_K, S_C2G = 76, 77
    S_XB, S_TT, S_GT = 78, 79, 80
    S_WB = 85
    S_PK, S_PKA, S_PKB, S_PKC, S_PKD, S_PKNB, S_PKON = 86, 87, 88, 89, 90, 91, 92
    S_U = 93
    S_PKL = 81
    S_CR, S_H2 = 82, 83
    SLOT = [0, 49152, 98304]
    NST = 15
    def stage_info(s):
        if s < 9: return 0, 2*s, 2
        if s < 12: return 2, 6*(s-9), 6
        return 1, 6*(s-12), 6
    stamp = Stamper(a, opts.get('stamp', False), V_STAMP, S_W, R_WS, WS_USED)
    a.stamps = stamp.labels
    stamp.keep = opts.get('keep1')
    stamp.real = opts.get('real', False)
    if opts.get('nostore'): a.drop = lambda t: t.startswith('buffer_store_dwordx')
    FUSED = opts.get('fused', False)
    p2 = Phase2(a, name, opts, stamp) if FUSED else None
    lab = [0]
    def newlab():
        lab[0] += 1; return f"{name}_l{lab[0]}"

    a.raw(f".globl {name}\n.p2align 8\n.type {name},@function\n{name}:")
    a("s_cmp_ge_u32 s2, 256")
    a(f"s_cbranch_scc1 {name}_end")
    stamp('start')
    load_kernargs(a)
    a(f"""
    v_lshrrev_b32 v1, 6, v0
    v_and_b32 v0, 63, v0
    s_and_b32 s{S_XCD}, s2, 7
    v_readfirstlane_b32 s{S_W}, v1
    s_lshr_b32 s{S_T0}, s2, 3
    s_and_b32 s{S_B}, s{S_T0}, 3
    s_lshr_b32 s{S_MB}, s{S_T0}, 2
    s_lshl_b32 s{S_J}, s{S_XCD}, 2
    s_add_u32 s{S_J}, s{S_J}, s{S_B}
    s_mul_i32 s{S_L}, s{S_XCD}, 9
    s_lshl_b32 s{S_T1}, s{S_B}, 1
    s_add_u32 s{S_L}, s{S_L}, s{S_T1}
    s_lshl_b32 s{S_GOFF}, s{S_L}, 7
    s_lshl_b32 s{S_TT}, s{S_MB}, 3
    s_add_u32 s{S_TT}, s{S_TT}, s{S_W}
    s_mul_i32 s{S_TOK}, s{S_TT}, {32*1152}
    s_lshl_b32 s{S_WB}, s{S_W}, 10
    s_lshl_b32 s{S_XB}, s{S_W}, 12
    s_add_u32 s{S_XB}, s{S_XB}, 16384
    """)
    if opts.get('ctouch', True):
        a("s_getpc_b64 s[26:27]")
        a.label(f"{name}_pc")
        a(f"""
        s_lshr_b32 s{S_T0}, s2, 3
        s_lshl_b32 s{S_T0}, s{S_T0}, 3
        s_add_u32 s{S_T0}, s{S_T0}, s{S_W}
        s_lshl_b32 s{S_T0}, s{S_T0}, 8
        v_and_b32 v8, 1, v0
        v_lshlrev_b32 v8, 7, v8
        v_add_u32 v8, s{S_T0}, v8
        v_min_u32 v8, all_code_end-{name}_pc-4, v8
        s_mov_b32 m0, 163584
        global_load_lds_dword v8, s[26:27]
        """)
    a(f"""
    v_lshrrev_b32 v8, 3, v0
    v_lshrrev_b32 v9, 4, v0
    v_xor_b32 v9, v9, v0
    v_and_b32 v9, 7, v9
    v_mul_u32_u24 v10, 1152, v8
    v_lshl_add_u32 v{V_XD0}, v9, 4, v10
    v_xor_b32 v9, 4, v9
    v_add_u32 v10, {8*1152}, v10
    v_lshl_add_u32 v{V_XD1}, v9, 4, v10
    """)
    a(f"""
    s_and_b32 s{S_T0}, s{S_W}, 1
    s_lshl_b32 s{S_T0}, s{S_T0}, 1
    v_bfe_u32 v13, v0, 4, 1
    v_or_b32 v13, s{S_T0}, v13
    v_bfe_u32 v14, v0, 1, 2
    v_xor_b32 v13, v13, v14
    v_lshlrev_b32 v13, 5, v13
    v_and_b32 v14, 1, v0
    v_lshl_add_u32 v13, v14, 4, v13
    s_lshl_b32 s{S_T0}, s{S_W}, 3
    v_add_u32 v14, s{S_T0}, v8
    v_mul_u32_u24 v15, 9216, v14
    v_add_u32 v{V_DMA}, v13, v15
    """)
    ra, rb, rc = opts.get('rot', (1, 2, 1))
    a(f"""
    s_mul_i32 s84, s{S_MB}, {ra}
    s_mul_i32 s{S_T0}, s{S_B}, {rb}
    s_add_u32 s84, s84, s{S_T0}
    s_mul_i32 s{S_T0}, s{S_XCD}, {rc}
    s_add_u32 s84, s84, s{S_T0}
    s_mul_i32 s{S_T0}, s84, 57
    s_lshr_b32 s{S_T0}, s{S_T0}, 9
    s_mul_i32 s{S_T0}, s{S_T0}, 9
    s_sub_u32 s84, s84, s{S_T0}
    s_mul_i32 s96, s84, {64*9216}
    s_add_u32 s{S_GOFF}, s{S_GOFF}, s96
    s_sub_u32 s96, s{S_GOFF}, {9*64*9216}
    s_lshl_b32 s97, s84, 7
    s_add_u32 s{S_TOK}, s{S_TOK}, s97
    s_sub_u32 s97, s{S_TOK}, {9*128}
    """)
    a("s_waitcnt lgkmcnt(0)")
    stamp('karg')
    make_srd(a, R_X, P_X, 2048*1152)
    make_srd(a, R_G, P_WG, 576*9216)
    make_srd(a, R_U, P_WU, 576*9216)
    if FUSED:
        a(f"s_add_u32 s10, s{P_WS}, {EPO}")
        a(f"s_addc_u32 s11, s{P_WS+1}, 0")
        a(f"s_load_dword s{p2.S_TAG}, s[10:11], 0")

    S_R, S_R2 = 84, 3
    ROT = {'w': (S_GOFF, 96, S_R), 'x': (S_TOK, 97, S_R), 'q': (S_QO, 98, S_R), 'g': (26, 27, S_R2)}
    def rot(dst, kind, m, cmp=True):
        hi, lo, r = ROT[kind]
        if cmp: a(f"s_cmp_ge_u32 s{r}, {9 - m}")
        a(f"s_cselect_b32 s{dst}, s{lo}, s{hi}")
    def rot_base(kind, src, stride):
        hi, lo, r = ROT[kind]
        a(f"s_mul_i32 s{lo}, s{r}, {stride}")
        a(f"s_add_u32 s{hi}, s{src}, s{lo}")
        a(f"s_sub_u32 s{lo}, s{hi}, {9*stride}")
    dma_id = {}
    def note(stage, idd):
        d = dma_id.setdefault(stage, {})
        for r in ('A', 'B'):
            if a.role in (None, r): d[r] = idd[r]
    def dma(stage):
        if stage >= NST: return
        grp, k0, nk = stage_info(stage)
        slot = SLOT[stage % 3]
        if opts.get('nodma') and stage > 2:
            if stage == 9:
                a(f"v_mov_b32 v{V_DMAG}, v{V_G2S}")
                a(f"v_mov_b32 v{V_GUB}, v{V_G2S+1}")
            note(stage, dict(a.vmr)); return
        m0_ = k0 // 2
        if grp == 0:
            rot(S_T0, 'w', m0_); rot(S_T1, 'x', m0_, cmp=False)
            for i in range(2):
                a(f"s_add_u32 m0, s{S_WB}, {slot + i*8192}")
                if i == 0: a(f"s_add_u32 s{S_T0}, s{S_T0}, {m0_*64*9216}")
                a(f"buffer_load_dwordx4 v{V_DMA}, {sr(R_G if i == 0 else R_U,4)}, s{S_T0} offen lds")
            for i in range(4):
                a(f"s_add_u32 m0, s{S_XB}, {slot + i*1024}")
                if i % 2 == 0: a(f"s_add_u32 s{S_T0}, s{S_T1}, {m0_*128 + (i>>1)*16*1152}")
                note(stage, a.emit(f"buffer_load_dwordx4 v{V_XD1 if i & 1 else V_XD0}, {sr(R_X,4)}, s{S_T0} offen lds"))
        elif grp == 1:
            for i in range(3):
                rot(S_T0, 'w', m0_ + i)
                for gu in range(2):
                    a(f"s_add_u32 m0, s{S_WB}, {slot + gu*24576 + i*8192}")
                    if gu == 0: a(f"s_add_u32 s{S_T0}, s{S_T0}, {(m0_ + i)*64*9216 + 128}")
                    note(stage, a.emit(f"buffer_load_dwordx4 v{V_DMA}, {sr(R_U if gu else R_G,4)}, s{S_T0} offen lds"))
        else:
            if stage == 9:
                a(f"v_mov_b32 v{V_DMAG}, v{V_G2S}")
                a(f"v_mov_b32 v{V_GUB}, v{V_G2S+1}")
            rot(S_T0, 'g', m0_)
            for gu in range(2):
                a(f"s_add_u32 m0, s{S_WB}, {slot + gu*8192}")
                if gu == 0: a(f"s_add_u32 s{S_T0}, s{S_T0}, {m0_*64*9216}")
                a(f"buffer_load_dwordx4 v{V_DMAG}, {sr(R_U if gu else R_G,4)}, s{S_T0} offen lds")
            for i in range(3):
                rot(S_T0, 'q', m0_ + i)
                a(f"s_add_u32 m0, s{S_WB}, {slot + 16384 + i*8192}")
                a(f"s_add_u32 s{S_T0}, s{S_T0}, {(m0_ + i)*64*3456}")
                note(stage, a.emit(f"buffer_load_dwordx4 v{V_DMAQ}, {sr(R_Q,4)}, s{S_T0} offen lds"))
    def g2_dma_setup():
        a(f"""
        v_lshrrev_b32 v8, 1, v0
        v_and_b32 v9, 0x13, v8
        v_bfe_u32 v10, v8, 2, 1
        v_lshl_or_b32 v9, v10, 3, v9
        v_bfe_u32 v10, v8, 3, 1
        v_lshl_or_b32 v9, v10, 2, v9
        s_and_b32 s{S_T0}, s{S_W}, 1
        s_lshl_b32 s{S_T0}, s{S_T0}, 5
        v_add_u32 v9, s{S_T0}, v9
        v_mul_u32_u24 v9, 9216, v9
        v_and_b32 v10, 1, v0
        v_lshl_add_u32 v9, v10, 4, v9
        s_lshr_b32 s{S_T0}, s{S_W}, 1
        s_add_u32 s{S_R2}, s{S_R}, s{S_T0}
        s_sub_u32 s{S_T0}, s{S_R2}, 9
        s_cmp_ge_u32 s{S_R2}, 9
        s_cselect_b32 s{S_R2}, s{S_T0}, s{S_R2}
        s_cmp_lt_u32 s{S_W}, 6
        s_cselect_b32 s{S_T0}, 0, {OOB}
        v_or_b32 v250, s{S_T0}, v9
        v_bfe_u32 v8, v0, 2, 2
        v_lshrrev_b32 v9, 5, v0
        v_lshl_add_u32 v9, v9, 4, v8
        v_bfe_u32 v10, v0, 4, 1
        v_lshl_add_u32 v9, v10, 2, v9
        v_lshlrev_b32 v9, 5, v9
        v_and_b32 v10, 3, v0
        v_lshl_add_u32 v251, v10, 3, v9
        """)
        rot_base('g', S_G2O, 64*9216)
        rot_base('q', S_QO, 64*3456)

    class only:
        def __init__(self, role): self.role = role
        def __enter__(self):
            self.l = newlab()
            a(f"s_cmp_ge_u32 s{S_W}, 4")
            a(f"s_cbranch_scc{'1' if self.role=='A' else '0'} {self.l}")
            self.m = a.skip_begin(); a.role = self.role
        def __exit__(self, *e):
            a.skip_end(self.m); a.role = None
            a.label(self.l)


    SCR = 163840 - 256
    R_TK = [48, 4, 8, 12]
    V_TK = [9, 252, 253, 254]; V_TPK = 255; V_G2S = 250
    TOUCH = opts.get('touch', True)
    def touch(kind):
        if not TOUCH: return
        a(f"s_mov_b32 m0, {SCR}")
        a(f"buffer_load_dword v{V_TK[kind]}, {sr(R_TK[kind],4)}, 0 offen lds")
    def touch_setup(kind):
        R_T = R_TK[kind]
        if not TOUCH: return
        a(f"s_lshr_b32 s{S_T3}, s2, 3")
        if kind in (0, 1):
            x0, nx, kb, nw = ((2, 3, 0, 8), (5, 4, 2, 6))[kind]
            a(f"""
            v_mul_u32_u24 v9, 1152, v0
            v_lshrrev_b32 v10, 2, v0
            v_mul_u32_u24 v10, 9216, v10
            v_and_b32 v11, 3, v0
            v_lshl_add_u32 v10, v11, 8, v10
            v_cmp_gt_u32 vcc, 24, v0
            v_mov_b32 v11, {OOB}
            v_cndmask_b32 v10, v11, v10, vcc
            s_mul_i32 s{S_T0}, s{S_T3}, {64*1152}
            s_lshl_b32 s{S_T1}, s{S_W}, 7
            s_add_u32 s{S_T0}, s{S_T0}, s{S_T1}
            s_add_u32 s{S_T0}, s{S_T0}, {x0*128}
            s_bfe_u32 s{S_T1}, s{S_W}, 0x10001
            s_mul_i32 s{S_T1}, s{S_T1}, 192
            s_mul_i32 s{S_T2}, s{S_T3}, 6
            s_add_u32 s{S_T1}, s{S_T1}, s{S_T2}
            s_add_u32 s{S_T1}, s{S_T1}, {kb*192}
            s_mul_i32 s{S_T1}, s{S_T1}, 9216
            s_mul_i32 s{S_T2}, s{S_XCD}, 1152
            s_add_u32 s{S_T1}, s{S_T1}, s{S_T2}
            s_bitcmp1_b32 s{S_W}, 0
            s_cselect_b32 s{R_T}, s{R_U}, s{R_G}
            s_cselect_b32 s{R_T+1}, s{R_U+1}, s{R_G+1}
            s_cmp_lt_u32 s{S_W}, 4
            s_cselect_b32 s{R_T}, s{R_X}, s{R_T}
            s_cselect_b32 s{R_T+1}, s{R_X+1}, s{R_T+1}
            s_cselect_b32 s{R_T+2}, s{R_X+2}, s{R_G+2}
            s_cselect_b32 s{S_T0}, s{S_T0}, s{S_T1}
            s_cselect_b64 vcc, -1, 0
            v_cndmask_b32 v9, v10, v9, vcc
            s_bitcmp1_b32 {((1 << nx) - 1) | (((1 << nw) - 1) & 0xf0)}, s{S_W}
            """)
        elif kind == 2:
            a(f"""
            v_lshrrev_b32 v9, 3, v0
            s_lshl_b32 s{S_T1}, s{S_W}, 3
            v_add_u32 v9, s{S_T1}, v9
            v_and_b32 v10, 7, v0
            v_min_u32 v10, 4, v10
            v_cmp_gt_u32 vcc, 18, v9
            v_mul_u32_u24 v9, 3456, v9
            v_lshlrev_b32 v10, 7, v10
            v_min_u32 v10, 428, v10
            v_add_u32 v9, v9, v10
            v_mov_b32 v11, {OOB}
            v_cndmask_b32 v9, v11, v9, vcc
            v_mul_u32_u24 v10, 9216, v0
            v_cmp_gt_u32 vcc, 18, v0
            v_cndmask_b32 v10, v11, v10, vcc
            s_mul_i32 s{S_T0}, s{S_T3}, {18*3456}
            s_mul_i32 s{S_T1}, s{S_XCD}, 432
            s_add_u32 s{S_T0}, s{S_T0}, s{S_T1}
            s_mul_i32 s{S_T1}, s{S_T3}, {18*9216}
            s_add_u32 s{S_T1}, s{S_T1}, s{S_G2O}
            s_bitcmp1_b32 s{S_W}, 0
            s_cselect_b32 s{R_T}, s{R_U}, s{R_G}
            s_cselect_b32 s{R_T+1}, s{R_U+1}, s{R_G+1}
            s_cmp_lt_u32 s{S_W}, 4
            s_cselect_b32 s{R_T}, s{R_Q}, s{R_T}
            s_cselect_b32 s{R_T+1}, s{R_Q+1}, s{R_T+1}
            s_cselect_b32 s{R_T+2}, s{R_Q+2}, s{R_G+2}
            s_cselect_b32 s{S_T0}, s{S_T0}, s{S_T1}
            s_cselect_b64 vcc, -1, 0
            v_cndmask_b32 v9, v10, v9, vcc
            s_bitcmp1_b32 0x37, s{S_W}
            """)
        else:
            a(f"""
            v_lshrrev_b32 v9, 2, v0
            v_mul_u32_u24 v9, 9216, v9
            v_and_b32 v11, 3, v0
            v_lshl_add_u32 v9, v11, 8, v9
            v_cmp_gt_u32 vcc, 24, v0
            v_mov_b32 v11, {OOB}
            v_cndmask_b32 v9, v11, v9, vcc
            s_lshr_b32 s{S_T1}, s{S_W}, 1
            s_mul_i32 s{S_T1}, s{S_T1}, 192
            s_mul_i32 s{S_T2}, s{S_T3}, 6
            s_add_u32 s{S_T1}, s{S_T1}, s{S_T2}
            s_mul_i32 s{S_T1}, s{S_T1}, 9216
            s_mul_i32 s{S_T2}, s{S_XCD}, 1152
            s_add_u32 s{S_T0}, s{S_T1}, s{S_T2}
            s_add_u32 s{S_T0}, s{S_T0}, 128
            s_bitcmp1_b32 s{S_W}, 0
            s_cselect_b32 s{R_T}, s{R_U}, s{R_G}
            s_cselect_b32 s{R_T+1}, s{R_U+1}, s{R_G+1}
            s_mov_b32 s{R_T+2}, s{R_G+2}
            s_bitcmp1_b32 0x3f, s{S_W}
            """)
        a(f"""
        s_cselect_b32 s{R_T+2}, s{R_T+2}, 0
        s_mov_b32 s{R_T+3}, 0x00020000
        s_mov_b32 s{14+kind}, s{R_T+2}
        v_add_u32 v{V_TK[kind]}, s{S_T0}, v9
        """)

    dma(0)
    d1 = [0]
    def dma1_piece():
        i = d1[0]; d1[0] += 1
        slot = SLOT[1]
        if i < 2:
            rot(71, 'w', 1)
            a(f"s_add_u32 s71, s71, {64*9216}")
            a(f"s_add_u32 m0, s{S_WB}, {slot + i*8192}")
            a(f"buffer_load_dwordx4 v{V_DMA}, {sr(R_G if i == 0 else R_U,4)}, s71 offen lds")
        elif i < 6:
            i -= 2
            rot(71, 'x', 1)
            a(f"s_add_u32 s71, s71, {128 + (i>>1)*16*1152}")
            a(f"s_add_u32 m0, s{S_XB}, {slot + i*1024}")
            note(1, a.emit(f"buffer_load_dwordx4 v{V_XD1 if i & 1 else V_XD0}, {sr(R_X,4)}, s71 offen lds"))
    a(f"""
    v_mul_u32_u24 v15, 3456, v14
    v_add_u32 v15, v13, v15
    v_cmp_eq_u32 vcc, 112, v13
    v_mov_b32 v16, {OOB}
    v_cndmask_b32 v{V_DMAQ}, v15, v16, vcc
    """)
    make_srd(a, R_Q, P_QKV, 576*3456)
    make_srd(a, R_WS, P_WS, WS_USED)
    a(f"""
    s_lshr_b32 s{S_HB}, s{S_TT}, 2
    s_mul_i32 s{S_HB}, s{S_HB}, {288*4096}
    s_and_b32 s{S_T0}, s{S_TT}, 3
    s_lshl_b32 s{S_T0}, s{S_T0}, 10
    s_add_u32 s{S_HB}, s{S_HB}, s{S_T0}
    s_mov_b32 s{S_K}, {f2u(GELU_K)}
    s_mov_b32 s{S_C2G}, {f2u(GELU_C2)}
    s_mul_i32 s{S_G2O}, s{S_XCD}, {9*128}
    s_add_u32 s{S_G2O}, s{S_G2O}, {8*128}
    s_lshl_b32 s{S_T0}, s{S_B}, 5
    s_add_u32 s{S_G2O}, s{S_G2O}, s{S_T0}
    s_mul_i32 s{S_QO}, s{S_J}, 108
    s_lshl_b32 s{S_T0}, s{S_MB}, 8
    s_lshl_b32 s{S_T1}, s{S_J}, 3
    s_add_u32 s{S_T0}, s{S_T0}, s{S_T1}
    s_add_u32 s{S_GT}, s{S_T0}, s{S_W}
    """)
    make_srd(a, R_GW, P_GW, 1152)
    dma1_piece()
    a(f"""
    v_lshrrev_b32 v12, 4, v0
    v_bfe_u32 v13, v0, 2, 2
    v_lshl_add_u32 v14, v12, 3, v13
    v_lshlrev_b32 v14, 7, v14
    v_bfe_u32 v15, v0, 3, 2
    v_lshl_add_u32 v14, v15, 5, v14
    v_and_b32 v15, 3, v0
    v_lshl_add_u32 v{V_TRB}, v15, 3, v14
    v_lshrrev_b32 v14, 5, v0
    v_lshlrev_b32 v14, 12, v14
    v_bfe_u32 v15, v0, 4, 1
    v_lshl_add_u32 v14, v15, 9, v14
    v_and_b32 v15, 15, v0
    v_lshl_add_u32 v{V_HST}, v15, 4, v14
    v_bfe_u32 v14, v0, 1, 3
    v_xor_b32 v14, v14, v12
    v_lshlrev_b32 v14, 4, v14
    v_lshl_add_u32 v14, v15, 7, v14
    v_add_u32 v{V_XR}, s{S_XB}, v14
    """)
    g_id = {}
    def g_load():
        a(f"""
        v_lshlrev_b32 v8, 4, v0
        v_lshlrev_b32 v9, 2, v0
        v_cmp_gt_u32 vcc, 32, v0
        v_mov_b32 v10, {OOB}
        v_cndmask_b32 v9, v10, v9, vcc
        s_mul_i32 s{S_T1}, s{S_GT}, 1152
        buffer_load_dwordx4 v[12:15], v8, {sr(R_X,4)}, s{S_T1} offen
        buffer_load_dword v3, v9, {sr(R_X,4)}, s{S_T1} offen offset:1024
        buffer_load_dwordx4 v[16:19], v8, {sr(R_GW,4)}, 0 offen
        """)
        g_id[0] = a.emit(f"buffer_load_dword v5, v9, {sr(R_GW,4)}, 0 offen offset:1024")
    def g_compute():
        a.wait_vm(g_id[0])
        a("v_mov_b32 v8, 0")
        a("v_dot2_f32_bf16 v8, v3, v5, v8")
        for i in range(4):
            a(f"v_dot2_f32_bf16 v8, v{12+i}, v{16+i}, v8")
        a("s_nop 3")
        a(f"""
        v_add_f32_dpp v8, v8, v8 quad_perm:[1,0,3,2] row_mask:0xf bank_mask:0xf
        v_add_f32_dpp v8, v8, v8 quad_perm:[2,3,0,1] row_mask:0xf bank_mask:0xf
        v_add_f32_dpp v8, v8, v8 row_half_mirror row_mask:0xf bank_mask:0xf
        v_add_f32_dpp v8, v8, v8 row_mirror row_mask:0xf bank_mask:0xf
        v_readlane_b32 s{S_T0}, v8, 16
        v_readlane_b32 s{S_T2}, v8, 32
        v_readlane_b32 s{S_T1}, v8, 48
        v_add_f32 v8, s{S_T0}, v8
        v_add_f32 v8, s{S_T2}, v8
        v_add_f32 v8, s{S_T1}, v8
        v_mul_f32 v8, {f2u(-1.4426950408889634)}, v8
        v_exp_f32 v8, v8
        v_cmp_eq_u32 vcc, 0, v0
        v_add_f32 v8, 1.0, v8
        v_rcp_f32 v8, v8
        v_mov_b32 v9, {OOB}
        v_cndmask_b32 v9, v9, v0, vcc
        s_lshl_b32 s{S_T0}, s{S_GT}, 2
        s_add_u32 s{S_T0}, s{S_T0}, {GB}
        buffer_store_dword v8, v9, {sr(R_WS,4)}, s{S_T0} offen
        """)

    pub = {}
    def do_barrier(stage):
        if FUSED and stage == 13:
            a.wait_vm({r: max(dma_id[stage][r], pub[r]) for r in dma_id[stage]})
        else:
            a.wait_vm(dma_id[stage])
        a("s_waitcnt lgkmcnt(0)")
        a("s_barrier")

    PORD = {0: (0, 1, 2, 3), 1: (3, 0, 1, 2)}
    def tiles_of(grp):
        if grp < 2:
            up = 8192 if grp == 0 else 24576
            out = []
            for p in PORD[grp]:
                out.append((2*p, ('x', p), 0, 4096, 512, False))
                out.append((2*p+1, ('x', p), up, 4096, 512, False))
            return out
        return [(0, ('r', V_GU), 0, 1024, 256, False), (1, ('r', V_GU), 8192, 1024, 256, False)] + \
               [(2+t, ('x', t), 16384, 4096, 512, True) for t in range(4)]

    V_TS2 = V_GU
    def pre_stage(stage):
        grp, k0, nk = stage_info(stage)
        slot = SLOT[stage % 3]
        if stage == 14:
            a(f"v_add_u32 v{V_TS2}, {slot}, v{V_TRB}")
            return
        a(f"v_add_u32 v{V_TS}, {slot}, v{V_TRB}")
        if grp == 0:
            a(f"v_add_u32 v{V_XA[0]}, {slot}, v{V_XR}")
            a(f"v_xor_b32 v{V_XA[1]}, 64, v{V_XA[0]}")
        if grp == 2:
            a(f"v_add_u32 v{V_GU}, {slot}, v{V_GUB}")

    class Stage:
        def __init__(self, s, fbase):
            self.s = s; self.fbase = fbase
            self.grp, self.k0, self.nk = stage_info(s)
            self.tl = tiles_of(self.grp)
            nt = len(self.tl)
            if s == 13: segs = [(0, 13), (1, 13)]
            elif s == 14:
                segs = [(0, 14), (1, 14)]
                for ti in range(2, nt): segs += [(ti, 13), (ti, 14)]
            else: segs = [(ti, s) for ti in range(nt)]
            self.frags, self.mf = [], []
            ch = 2 if self.nk == 2 else 3
            for ti, ds in segs:
                for h in range(self.nk // ch):
                    base = len(self.frags)
                    for f in range(ch): self.frags.append((ti, h*ch + f, ds))
                    for u in ((0, 1) if h == 0 else (1, 0)):
                        for f in range(ch): self.mf.append((base + f, u))
            self.last_use = {}
            for i, (f, u) in enumerate(self.mf): self.last_use[f] = i
            rq = [('w', f, sec) for f in range(len(self.frags)) for sec in range(2)]
            if self.grp == 0:
                xr = [('x', u, kk) for u in range(2) for kk in range(2)]
                rq = rq[:2] + xr[:1] + rq[2:4] + xr[1:] + rq[4:]
            self.rq = rq
            self.reset()
        def reset(self):
            self.rp = 0; self.rid = {}; self.xid = {}; self.cur = None; self.naddr = 0; self.waited = 0
        def state(self): return (self.rp, dict(self.rid), dict(self.xid), self.cur, self.naddr, self.waited)
        def set_state(self, st): self.rp, self.rid, self.xid, self.cur, self.naddr, self.waited = st[0], dict(st[1]), dict(st[2]), st[3], st[4], st[5]
        def slot_free(self, f, done, prev, prev_done):
            g = f - 6
            if g >= 0: return self.last_use[g] < done
            if prev is None: return True
            return prev.last_use[len(prev.frags) + g] < prev_done
        def can_read(self, done, prev=None, prev_done=10**9):
            if self.rp >= len(self.rq): return False
            r = self.rq[self.rp]
            return r[0] == 'x' or self.slot_free(r[1], done, prev, prev_done)
        def issue_read(self):
            r = self.rq[self.rp]; self.rp += 1
            if r[0] == 'x':
                _, u, kk = r
                self.xid[(u, kk)] = a.emit(f"ds_read_b128 {vr(XF(u,self.k0+kk),4)}, v{V_XA[kk]} offset:{u*2048}")
                return
            _, f, sec = r
            ti, ks, ds = self.frags[f]
            t, ak, base, kst, sst, sw = self.tl[ti]
            if ak[0] == 'x':
                if self.cur != (ak, ds):
                    self.naddr += 1
                    a(f"v_xor_b32 v{V_TR[self.naddr & 1]}, {ak[1] << 5}, v{V_TS2 if ds == 14 else V_TS}")
                    self.cur = (ak, ds)
                reg = V_TR[self.naddr & 1]
            else:
                reg = ak[1]
            self.rid[f] = a.emit(f"ds_read_b64_tr_b16 {vr(WF(self.fbase+f)+2*sec,2)}, v{reg} offset:{base + ks*kst + sec*sst}")
        def mfma(self, i):
            f, u = self.mf[i]
            ti, ks, ds = self.frags[f]
            t, ak, base, kst, sst, sw = self.tl[ti]
            need = self.rid[f]
            if self.grp == 0: need = max(need, self.xid[(u, ks)])
            if need > self.waited:
                a.wait_lg(need); self.waited = need
            kk = stage_info(ds)[1] + ks
            acc = vr(ACC(t, u), 4)
            c = "0" if kk == 0 else acc
            wv, xv = vr(WF(self.fbase+f), 4), vr(XF(u, kk), 4)
            A_, B_ = (xv, wv) if sw else (wv, xv)
            if not opts.get('nomfma'): a(f"v_mfma_f32_16x16x32_bf16 {acc}, {A_}, {B_}, {c}")
        def tile_done_at(self, t):
            return max(i for i, (f, u) in enumerate(self.mf) if self.tl[self.frags[f][0]][0] == t)

    def gelu4(g, up, out2):
        t = T
        L = []
        for j in range(4): L.append(f"v_mul_f32 v{up+j}, v{g+j}, v{up+j}")
        for j in range(4): L.append(f"v_fma_f32 v{t+j}, v{g+j}, v{g+j}, s{S_K}")
        for j in range(4): L.append(f"v_mul_f32 v{g+j}, s{S_C2G}, v{g+j}")
        for j in range(4): L.append(f"v_mul_f32 v{t+j}, v{t+j}, v{g+j}")
        for j in range(4): L.append(f"v_exp_f32 v{t+j}, v{t+j}")
        for j in range(4): L.append(f"v_add_f32 v{t+j}, 1.0, v{t+j}")
        for j in range(4): L.append(f"v_rcp_f32 v{t+j}, v{t+j}")
        for j in range(4): L.append(f"v_mul_f32 v{t+j}, v{t+j}, v{up+j}")
        for j in range(2): L.append(f"v_cvt_pk_bf16_f32 v{out2+j}, v{t+2*j}, v{t+2*j+1}")
        return L
    def epair(grp, p, store, outbase=OUT):
        L = []
        for u in range(2):
            L += gelu4(ACC(2*p, u), ACC(2*p+1, u), outbase + 4*u + 2*(p & 1))
            if store:
                if u == 0:
                    L.append(f"s_add_u32 s{S_T3}, s{S_HB}, {HF + (grp*4 + (p & 2))*4096}")
                L.append(f"buffer_store_dwordx4 {vr(outbase+4*u,4)}, v{V_HST}, {sr(R_WS,4)}, s{S_T3} offen offset:{u*256}")
        return L
    def emit_all(L):
        for x in L: a(x)

    def qkv_scalar_setup():
        a(f"s_mul_i32 s{S_T0}, s{S_J}, 3")
        for i in range(3):
            a(f"s_cmp_lt_u32 s{S_T0}, {32 - i}")
            a(f"s_cselect_b32 s{S_U+i}, {f2u(QSCALE)}, 1.0")
        a(f"""
        s_lshl_b32 s{S_CR}, s{S_J}, 6
        s_add_u32 s{S_CR}, s{S_CR}, s{S_TT}
        s_lshl_b32 s{S_CR}, s{S_CR}, 12
        s_add_u32 s{S_CR}, s{S_CR}, {QN}
        s_mul_i32 s{S_H2}, s{S_XCD}, 36
        s_add_u32 s{S_H2}, s{S_H2}, 32
        s_add_u32 s{S_H2}, s{S_H2}, s{S_B}
        s_lshl_b32 s{S_H2}, s{S_H2}, 12
        s_add_u32 s{S_H2}, s{S_H2}, s{S_HB}
        s_lshl_b32 s{S_T3}, s{S_L}, 14
        s_add_u32 s{S_HB}, s{S_HB}, s{S_T3}
        """)
    def qkv_addr_setup():
        a(f"""
        v_and_b32 v8, 15, v0
        v_lshrrev_b32 v9, 4, v0
        v_lshlrev_b32 v9, 10, v9
        v_lshl_add_u32 v{QA}, v8, 4, v9
        v_cmp_gt_u32 vcc, 8, v8
        v_mov_b32 v10, {OOB}
        v_cndmask_b32 v{QA+1}, v10, v{QA}, vcc
        v_mov_b32 v9, s{S_U}
        v_mov_b32 v10, s{S_U+1}
        v_mov_b32 v11, s{S_U+2}
        v_cmp_le_u32 vcc, 2, v8
        v_cndmask_b32 v{QA+2}, v9, v10, vcc
        v_cmp_le_u32 vcc, 4, v8
        v_cndmask_b32 v{QA+3}, v10, v11, vcc
        """)
    def epi_g2_qkv():
        L = []
        sc = [f"s{S_U}", f"v{QA+2}", f"v{QA+3}", f"s{S_U+2}"]
        for t in range(4):
            o = 24 + 4*t
            for u in range(2):
                r = ACC(2+t, u)
                for i in range(4): L.append(f"v_mul_f32 v{r+i}, {sc[t]}, v{r+i}")
                L.append(f"v_cvt_pk_bf16_f32 v{o+2*u}, v{r}, v{r+1}")
                L.append(f"v_cvt_pk_bf16_f32 v{o+2*u+1}, v{r+2}, v{r+3}")
            L.append(f"buffer_store_dwordx4 {vr(o,4)}, v{QA + (t == 3)}, {sr(R_WS,4)}, s{S_CR} offen offset:{t*256}")
        return L
    def epi_g2_h():
        L = []
        for u in range(2):
            L += gelu4(ACC(0, u), ACC(1, u), OUT + 2*u)
        L.append(f"v_lshlrev_b32 v{T}, 4, v0")
        L.append(f"v_permlane16_swap_b32 v{OUT}, v{OUT+2}")
        L.append(f"v_permlane16_swap_b32 v{OUT+1}, v{OUT+3}")
        L.append(f"buffer_store_dwordx4 {vr(OUT,4)}, v{T}, {sr(R_WS,4)}, s{S_H2} offen")
        return L

    R_PK = 72
    def pack_setup():
        l1 = newlab()
        a(f"""
        s_lshr_b32 s{S_T0}, s{S_W}, 2
        s_sub_u32 s{S_T3}, s{S_W}, s{S_T0}
        s_mul_i32 s{S_T1}, s{S_XCD}, 36
        s_lshl_b32 s{S_T0}, s{S_MB}, 2
        s_add_u32 s{S_T0}, s{S_T0}, s{S_T3}
        s_add_u32 s{S_T0}, s{S_T0}, s{S_T1}
        s_add_u32 s{S_T1}, s{S_T1}, s{S_MB}
        s_add_u32 s{S_T1}, s{S_T1}, 32
        s_lshl_b32 s{S_T2}, s{S_XCD}, 2
        s_add_u32 s{S_T2}, s{S_T2}, s{S_MB}
        s_add_u32 s{S_T2}, s{S_T2}, 284
        s_cmp_lt_u32 s{S_MB}, 4
        s_cselect_b32 s{S_T1}, s{S_T1}, s{S_T2}
        s_cmp_eq_u32 s{S_T3}, 4
        s_cselect_b32 s{S_T0}, s{S_T1}, s{S_T0}
        s_add_u32 s{S_T1}, s{S_XCD}, 320
        s_cmp_eq_u32 s{S_T3}, 5
        s_cselect_b32 s{S_T0}, s{S_T1}, s{S_T0}
        s_lshl_b32 s{S_T1}, s{S_MB}, 3
        s_add_u32 s{S_T1}, s{S_T1}, s{S_XCD}
        s_cmp_lt_u32 s{S_T1}, 4
        s_cselect_b32 s{S_T1}, 0x77, 0x37
        s_bitcmp1_b32 s{S_T1}, s{S_W}
        s_cselect_b32 s{S_PKON}, 1, 0
        s_mov_b32 s{S_T1}, s{S_B}
        s_lshr_b32 s{S_T2}, s{S_T0}, 2
        s_mul_i32 s{S_T3}, s{S_T2}, 57
        s_lshr_b32 s{S_T3}, s{S_T3}, 9
        s_mul_i32 s{S_T3}, s{S_T3}, 9
        s_sub_u32 s{S_T3}, s{S_T2}, s{S_T3}
        s_lshr_b32 s{S_PK}, s{S_T0}, 1
        s_lshl_b32 s{S_PK}, s{S_PK}, 5
        s_and_b32 s{S_T2}, s{S_T0}, 1
        s_lshl_b32 s{S_T2}, s{S_T2}, 3
        s_add_u32 s{S_PK}, s{S_PK}, s{S_T2}
        s_lshl_b32 s{S_T2}, s{S_T0}, 4
        s_cmp_eq_u32 s{S_T3}, 8
        s_cselect_b32 s{S_PK}, s{S_T2}, s{S_PK}
        s_cselect_b32 s{S_PKA}, 4, 16
        s_cselect_b32 s{S_PKB}, 8, 4
        s_mov_b32 s{S_PKC}, 2
        s_mul_i32 s{S_PKD}, s{S_T1}, 576
        s_add_u32 s{S_PKD}, s{S_PKD}, s{S_T0}
        s_mul_i32 s{S_PKD}, s{S_PKD}, 2304
        s_add_u32 s{S_PKD}, s{S_PKD}, {WDP}
        s_mov_b32 s{S_PKNB}, {288*2304}
        s_mov_b32 s{R_PK}, s{P_WD}
        s_and_b32 s{R_PK+1}, s{P_WD+1}, 0xffff
        s_mov_b32 s{R_PK+2}, {4608*1152}
        s_cmp_lt_u32 s{S_T0}, 288
        s_cbranch_scc1 {l1}
        """)
        m = a.skip_begin()
        a(f"""
        s_sub_u32 s{S_T0}, s{S_T0}, 288
        s_mul_i32 s{S_PKD}, s{S_T1}, 72
        s_add_u32 s{S_PKD}, s{S_PKD}, s{S_T0}
        s_mul_i32 s{S_PKD}, s{S_PKD}, 2304
        s_add_u32 s{S_PKD}, s{S_PKD}, {WOP}
        s_mov_b32 s{S_PKNB}, {36*2304}
        s_mov_b32 s{R_PK}, s{P_WO}
        s_and_b32 s{R_PK+1}, s{P_WO+1}, 0xffff
        s_mov_b32 s{R_PK+2}, {576*1152}
        s_mul_i32 s{S_PK}, s{S_T0}, 18
        s_sub_u32 s{S_T2}, s{S_T0}, 32
        s_mul_i32 s{S_T2}, s{S_T2}, 144
        s_add_u32 s{S_T2}, s{S_T2}, 16
        s_cmp_lt_u32 s{S_T0}, 32
        s_cselect_b32 s{S_PK}, s{S_PK}, s{S_T2}
        s_cselect_b32 s{S_PKA}, 4, 36
        s_cselect_b32 s{S_PKB}, 8, 72
        s_cselect_b32 s{S_PKC}, 2, 18
        """)
        a.skip_end(m)
        a.label(l1)
        a(f"""
        s_mul_i32 s{S_PK}, s{S_PK}, 1152
        s_mul_i32 s{S_T1}, s{S_T1}, 288
        s_add_u32 s{S_PK}, s{S_PK}, s{S_T1}
        s_mul_i32 s{S_PKA}, s{S_PKA}, 1152
        s_mul_i32 s{S_PKB}, s{S_PKB}, 1152
        s_mul_i32 s{S_PKC}, s{S_PKC}, 1152
        s_cmp_eq_u32 s{S_PKON}, 0
        s_cselect_b32 s{R_PK+2}, 0, s{R_PK+2}
        s_cselect_b32 s{S_PKD}, 0, s{S_PKD}
        """)
        a(f"""
        v_bfe_u32 v8, v0, 2, 1
        v_mul_u32_u24 v8, 1152, v8
        v_bfe_u32 v9, v0, 3, 1
        v_mul_lo_u32 v9, v9, s{S_PKC}
        v_add_u32 v8, v8, v9
        v_bfe_u32 v9, v0, 4, 1
        v_mul_lo_u32 v9, v9, s{S_PKB}
        v_add_u32 v8, v8, v9
        v_bfe_u32 v9, v0, 5, 1
        v_mul_lo_u32 v9, v9, s{S_PKA}
        v_add_u32 v8, v8, v9
        v_and_b32 v9, 3, v0
        v_lshlrev_b32 v9, 7, v9
        v_min_u32 v9, 284, v9
        v_add_u32 v{V_TPK}, v8, v9
        s_mov_b32 s{R_PK+3}, 0x00020000
        """)
    def pack_touch():
        a(f"s_mov_b32 m0, {SCR}")
        a(f"buffer_load_dword v{V_TPK}, {sr(R_PK,4)}, s{S_PK} offen lds")
    pk_id = {}
    def pack_dma():
        a(f"""
        s_and_b32 s{S_PKL}, s{S_W}, 3
        s_mul_i32 s{S_PKL}, s{S_PKL}, 4608
        s_add_u32 s{S_PKL}, s{S_PKL}, 147456
        v_lshlrev_b32 v8, 4, v0
        v_add_u32 v9, {1152-288}, v8
        v_cmp_gt_u32 vcc, 18, v0
        v_cndmask_b32 v8, v9, v8, vcc
        s_mov_b32 exec_hi, 15
        """)
        for i in range(8):
            a(f"s_mov_b32 s{S_T0}, s{S_PK}")
            if i & 1: a(f"s_add_u32 s{S_T0}, s{S_T0}, s{S_PKC}")
            if i & 2: a(f"s_add_u32 s{S_T0}, s{S_T0}, s{S_PKB}")
            if i & 4: a(f"s_add_u32 s{S_T0}, s{S_T0}, s{S_PKA}")
            a(f"s_add_u32 m0, s{S_PKL}, {i*576}")
            pk_id[a.role] = a.emit(f"buffer_load_dwordx4 v8, {sr(R_PK,4)}, s{S_T0} offen lds")
        a("s_mov_b32 exec_hi, -1")
    def pack_finish(P):
        lg0 = a.lg
        a(f"""
        v_lshrrev_b32 v8, 5, v0
        v_bfe_u32 v9, v0, 2, 2
        v_lshl_add_u32 v8, v8, 2, v9
        v_mul_u32_u24 v8, 288, v8
        v_add_u32 v8, s{S_PKL}, v8
        v_and_b32 v9, 1, v0
        v_lshl_add_u32 v10, v9, 5, v8
        v_bfe_u32 v9, v0, 1, 1
        v_lshl_add_u32 v10, v9, 3, v10
        v_and_b32 v9, 3, v0
        v_lshl_add_u32 v8, v9, 3, v8
        v_bfe_u32 v9, v0, 4, 1
        v_lshl_add_u32 v10, v9, 4, v10
        v_mul_u32_u24 v11, 144, v9
        v_add_u32 v11, v11, v8
        """)
        a.wait_vm(pk_id[a.role])
        regs = P
        offs = [0, 64, 144, 144+64]
        for i in range(4):
            a(f"ds_read_b64_tr_b16 {vr(regs[i],2)}, v10 offset:{offs[i]}")
            a(f"ds_read_b64_tr_b16 {vr(regs[i]+2,2)}, v10 offset:{offs[i]+2304}")
        a(f"ds_read_b64_tr_b16 {vr(regs[4],2)}, v11 offset:128")
        a(f"ds_read_b64_tr_b16 {vr(regs[4]+2,2)}, v11 offset:{128+2304}")
        a(f"""
        v_mul_lo_u32 v9, v9, s{S_PKNB}
        v_lshrrev_b32 v8, 5, v0
        v_lshl_add_u32 v9, v8, 7, v9
        v_and_b32 v8, 15, v0
        v_lshl_add_u32 v9, v8, 4, v9
        v_cmp_gt_u32 vcc, 8, v8
        v_mov_b32 v8, {OOB}
        v_cndmask_b32 v9, v8, v9, vcc
        v_lshlrev_b32 v8, 4, v0
        s_cmp_eq_u32 s{S_PKON}, 0
        s_cselect_b32 s{S_T0}, {OOB}, 0
        v_or_b32 v8, s{S_T0}, v8
        v_or_b32 v9, s{S_T0}, v9
        s_add_u32 s{S_T0}, s{S_PKD}, s{S_PKNB}
        s_waitcnt lgkmcnt(0)
        """)
        a.lg = lg0
        for i in range(4):
            so = S_PKD if i < 2 else S_T0
            a(f"buffer_store_dwordx4 {vr(regs[i],4)}, v8, {sr(R_WS,4)}, s{so} offen offset:{(i&1)*1024}")
        a(f"buffer_store_dwordx4 {vr(regs[4],4)}, v9, {sr(R_WS,4)}, s{S_PKD} offen offset:2048")

    TSCHED = opts.get('tsched', {0: (2, 0x11), 1: (2, 0x26), 2: (3, 0x03), 3: (3, 0x0c), 4: (3, 0x30), 5: ('p', 0x11), 6: ('p', 0x22), 7: ('p', 0x44)})
    def side(s, role):
        if FUSED and role == 'B' and s == 12:
            for wv, fn in ((7, p2.mail), (6, p2.mail2)):
                l = newlab()
                a(f"s_cmp_lg_u32 s{S_W}, {wv}")
                a(f"s_cbranch_scc1 {l}")
                m = a.skip_begin(); vm0 = dict(a.vmr)
                fn(S_J, S_MB, S_B)
                a.vmr = vm0
                a.skip_end(m)
                a.label(l)
        dma(s + (2 if role == 'A' else 3))
        if TOUCH and s in TSCHED:
            kind, mask = TSCHED[s]
            rm = mask & (0x0f if role == 'A' else 0xf0)
            if rm:
                srd, vr_, so, sv = (R_PK, V_TPK, f"s{S_PK}", 18) if kind == 'p' else (R_TK[kind], V_TK[kind], "0", 14 + kind)
                a(f"s_bitcmp1_b32 {rm}, s{S_W}")
                a(f"s_cselect_b32 s{srd+2}, s{sv}, 0")
                a(f"s_mov_b32 m0, {SCR}")
                a(f"buffer_load_dword v{vr_}, {sr(srd,4)}, {so} offen lds")
        if s == 9:
            a(f"s_mov_b32 s{R_PK+2}, s18")
            if role == 'A': pack_dma()
            emit_all(epair(0, 3, True))
        if s == 10:
            if role == 'A': pack_finish([96, 100, 104, 108, 12])
            else: pack_dma()
            qkv_addr_setup()
        if s == 12:
            g_compute()
            if FUSED:
                p2.setup(role)
                if role == 'A':
                    p2.reset_flags(); a.lg -= 1

    stages = []
    fb = 0
    for s in range(NST):
        st = Stage(s, fb); stages.append(st); fb += len(st.frags)
    PRE = 9
    def prime(st):
        n = PRE + (4 if st.grp == 0 else 0)
        while st.rp < n: st.issue_read()
    dma1_piece()
    pre_stage(0)
    dma1_piece()
    pack_setup()
    dma1_piece()
    touch_setup(2)
    dma1_piece()
    g2_dma_setup()
    dma1_piece()
    a(f"s_mov_b32 s18, s{R_PK+2}")
    if FUSED: p2.early()
    with only('A'):
        qkv_scalar_setup(); touch_setup(3)
    stamp('issued')
    a.wait_vm(dma_id[0])
    if FUSED:
        a("s_waitcnt lgkmcnt(0)")
        a(f"s_add_u32 s{p2.S_TAG}, s{p2.S_TAG}, 1")
    a("s_barrier")
    stamp('bar0')
    with only('B'):
        dma(2)
        qkv_scalar_setup(); touch_setup(3)
    prime(stages[0])
    TB = opts.get('tailb', 4)
    O2 = 136
    for s in range(NST):
        st = stages[s]
        n = len(st.mf)
        hard = s in (8, 11, 14)
        blocks = {}
        fill = []
        rate = opts.get('rate', 1.6)
        if s == 9:
            blocks[st.tile_done_at(1) + 1] = epair(0, 1, True)
            blocks[st.tile_done_at(3) + 1] = epair(0, 2, False)
        if s == 11:
            fill = [(st.tile_done_at(1), x) for x in epi_g2_h()]
            rate = 1.8
        if s == 14:
            fill = [(st.tile_done_at(7), x) for x in epair(1, 3, False, O2)] + \
                   [(st.tile_done_at(1), x) for x in epair(1, 0, False)] + \
                   [(st.tile_done_at(3), x) for x in epair(1, 1, True)]
        credit = 0.0
        i = 0
        while i < n:
            if not hard and st.rp == len(st.rq): break
            if hard and i == n - TB and s < NST - 1:
                with only('B'): do_barrier(s + 1)
            st.mfma(i); i += 1
            if st.can_read(i): st.issue_read()
            if i in blocks: emit_all(blocks.pop(i))
            if FUSED and s == 14:
                tries = opts.get('ekv', (90, 130, 166))
                if i in tries:
                    with only('A'): p2.kv_try(f"kt{i}", 112, 113)
                if i + 30 in tries:
                    with only('A'): p2.kv_probe(112, 113)
                if i == n - 12:
                    with only('B'): p2.g_probe(112, 113)
            if fill and fill[0][0] + 3 < i:
                credit += rate
                while credit >= 1 and fill and fill[0][0] + 3 < i:
                    a(fill.pop(0)[1]); credit -= 1
        assert not blocks
        emit_all([x for _, x in fill])
        if hard:
            stamp(f'M{s}')
            if s < NST - 1:
                with only('B'): dma(s + 3)
                with only('A'): dma(s + 2)
            if s == 11:
                g_load()
            if s == 8:
                emit_all(epair(0, 0, False))
            elif s == 11:
                emit_all(epi_g2_qkv())
                with only('B'): pack_finish([40, 44, 48, 52, 56])
                pub.update(a.vmr)
            else:
                emit_all(epair(1, 2, True, O2))
            if s < NST - 1:
                pre_stage(s + 1)
                with only('A'): do_barrier(s + 1)
                stamp(f'S{s}')
                prime(stages[s + 1])
        else:
            nx = stages[s + 1]
            lB, lJ = newlab(), newlab()
            a(f"s_cmp_ge_u32 s{S_W}, 4")
            a(f"s_cbranch_scc1 {lB}")
            snap = a.snapshot(); lg0 = a.lg; st0 = st.state()
            if s == 12: assert all(not (st.mf[k][1] == 0 and st.frags[st.mf[k][0]][1] < 3) for k in range(i, n))
            a.role = 'A'
            im = stamp(f'M{s}')
            side(s, 'A')
            pre_stage(s + 1)
            do_barrier(s + 1)
            isx = stamp(f'S{s}')
            st.waited = a.lg
            npre = PRE + (4 if nx.grp == 0 else 0)
            while nx.rp < npre and nx.rp < 5 and nx.can_read(0, st, i): nx.issue_read()
            for k in range(i, n):
                st.mfma(k)
                for _ in range(2):
                    if nx.rp < npre and nx.can_read(0, st, k + 1): nx.issue_read()
            prime(nx)
            a(f"s_branch {lJ}")
            snapA = a.snapshot(); lgA = a.lg; nxA = nx.state()
            a.label(lB)
            a.restore(snap); a.lg = lg0; st.set_state(st0); nx.reset()
            a.role = 'B'
            for k in range(i, n):
                if k == n - TB:
                    do_barrier(s + 1); st.waited = a.lg
                st.mfma(k)
            stamp('', im)
            side(s, 'B')
            pre_stage(s + 1)
            stamp('', isx)
            prime(nx)
            assert a.lg == lgA and nx.state() == nxA, (a.lg, lgA)
            a.role = None
            a.merge(snapA)
            a.label(lJ)
    if FUSED:
        stamp('p1end')
        stamp.keep = None
        a(f"s_cmp_ge_u32 s{S_W}, 4")
        a(f"s_cbranch_scc1 {name}_gemm")
        snap = a.snapshot()
        n0 = len(stamp.labels)
        a.role = 'A'
        p2.attention()
        la = list(stamp.labels); del stamp.labels[n0:]
        a.restore(snap)
        a.role = 'B'
        a.label(f"{name}_gemm")
        p2.gemm()
        lb = list(stamp.labels)
        a.stamps = la[:n0] + ["/".join(x) for x in zip(la[n0:] + ["-"]*12, lb[n0:])]
    elif stamp.on:
        a("s_waitcnt vmcnt(0)")
        stamp('end')
        stamp.out(8)
    a.label(f"{name}_end")
    a("s_endpgm")
    return a, kdesc(name), dict(grid=256, block=512, lds=163840)
```

```python
S, D, F, NH, DH = 2048, 576, 4608, 32, 18
HF   = 0
HF_SZ = 16*288*4*1024
WDP  = HF + HF_SZ
WDP_SZ = 8*288*2304
WOP  = WDP + WDP_SZ
WOP_SZ = 8*36*2304
QN   = WOP + WOP_SZ
QN_SZ = 32*64*4096
KVREC = 2336
QREC = 1152
QF = QN; QF_SZ = QN_SZ
OF   = QF + QF_SZ
OF_SZ = 32*36*2*1024
GB   = OF + OF_SZ
GB_SZ = 2048*4
BP   = GB + GB_SZ
BP_SZ = 2*16*8*36864
OFL  = BP + BP_SZ
OFL_SZ = 128*128
PFL  = OFL + OFL_SZ
PFL_SZ = 256*128
GOF  = PFL + PFL_SZ
GOF_SZ = 256*512
EPO  = GOF + GOF_SZ
WS_USED = EPO + 128
assert all(x % 128 == 0 for x in (WDP, WOP, QN, OF, GB, BP))
import math
QSCALE = (DH ** -0.5) * math.log2(math.e)
GELU_C1 = -2.0 * math.sqrt(2.0/math.pi) * math.log2(math.e)
GELU_C2 = GELU_C1 * 0.044715
GELU_K  = 1.0/0.044715
```

```python
from common import *

KVB = 64*KVREC
QST = KVB
FLAG = KVB + 12288
F_REL, F_RED, F_C2, F_C3, F_RD1, F_DUMP, F_ATT, F_C1, F_WDONE, F_ST, F_SEEN2 = range(11)

MBOX = 0x01ffff00

class Phase2:
    def __init__(self, a, name, opts, stamp):
        self.a, self.name, self.opts, self.stamp = a, name, opts, stamp
        self.probe_id = {}
    R_WS, R_OUT, R_DBG = 44, 40, 48
    S_W, S_XCD, S_T0, S_T1, S_T2 = 56, 57, 63, 64, 65
    S_LOC, S_H, S_QB, S_T3, S_KVO, S_IT, S_HO, S_WO, S_M0, S_KH, S_SP, S_OA, S_OB, S_MSK, S_QT = range(4, 19)
    S_P = 86
    S_HB0, S_WB0 = 88, 89
    NFIRST = 5

    def signal(self, fl, t0, t1):
        self.a(f"""
        v_mov_b32 v{t0}, {FLAG + 4*fl}
        v_mov_b32 v{t1}, 1
        s_mov_b64 exec, 1
        ds_add_u32 v{t0}, v{t1}
        s_mov_b64 exec, -1
        """)
    def poll(self, fl, t0, t1, tag, sleep, n=4):
        a, name = self.a, self.name
        a(f"v_mov_b32 v{t0}, {FLAG + 4*fl}")
        a.label(f"{name}_{tag}")
        a(f"""
        ds_read_b32 v{t1}, v{t0}
        s_waitcnt lgkmcnt(0)
        v_readfirstlane_b32 s{self.S_T0}, v{t1}
        s_cmp_ge_u32 s{self.S_T0}, {n}
        s_cbranch_scc1 {name}_{tag}d
        s_sleep {sleep}
        s_branch {name}_{tag}
        """)
        a.label(f"{name}_{tag}d")
    def gpoll(self, tag, srd, voff, soff, val, mask, t1, imm=0, sleep=None):
        a, name = self.a, self.name
        a(f"s_mov_b32 s{self.S_SP}, 0")
        a.label(f"{name}_{tag}")
        a(f"""
        buffer_load_dword v{t1}, v{voff}, {sr(srd,4)}, {soff} offen offset:{imm} sc1
        s_add_u32 s{self.S_SP}, s{self.S_SP}, 1
        s_waitcnt vmcnt(0)
        v_cmp_ne_u32 vcc, s{self.S_TAG}, v{t1}
        s_and_b32 vcc_lo, vcc_lo, {mask}
        s_cbranch_scc0 {name}_{tag}d
        s_cmp_ge_u32 s{self.S_SP}, 0x8000
        s_cbranch_scc1 {name}_{tag}d
        s_sleep {sleep or self.opts.get('gsleep', 8)}
        s_branch {name}_{tag}
        """)
        a.label(f"{name}_{tag}d")
    def arrive(self, which, t0, t1):
        self.a(f"""
        v_mov_b32 v{t0}, {(0, 128, 64)[which]}
        v_mov_b32 v{t1}, 1
        s_mov_b64 exec, 1
        buffer_atomic_add v{t1}, v{t0}, {sr(self.R_DBG,4)}, 0 offen sc0 sc1
        s_mov_b64 exec, -1
        """)
    def broadcast_if_last(self, which, t0, t1, skip, wait=True):
        a = self.a
        if wait: a("s_waitcnt vmcnt(0)")
        a(f"""
        v_readfirstlane_b32 s{self.S_T0}, v{t1}
        s_cmp_lg_u32 s{self.S_T0}, 255
        s_cbranch_scc1 {skip}
        """)
        m = a.snapshot()
        a(f"""
        v_lshlrev_b32 v{t0}, 9, v0
        v_mov_b32 v{t1}, s{self.S_TAG}
        """)
        for i in range(4):
            a(f"s_mov_b32 s{self.S_T0}, {GOF + 4*which + i*32768}")
            a(f"buffer_store_dword v{t1}, v{t0}, {sr(self.R_WS,4)}, s{self.S_T0} offen")
        a(f"s_mov_b32 s{self.S_T0}, {EPO}")
        a("s_mov_b64 exec, 1")
        a(f"buffer_store_dword v{t1}, v{t0}, {sr(self.R_WS,4)}, s{self.S_T0} offen")
        a("s_mov_b64 exec, -1")
        a.merge(m)
    def early(self):
        a, s = self.a, self
        make_srd(a, s.R_DBG, P_DBG, 256)
        a(f"s_lshl_b32 s{s.S_GOA}, s2, 9")
        a(f"s_add_u32 s{s.S_GOA}, s{s.S_GOA}, {GOF}")
    def mail(self, S_J, S_MB, S_B):
        a, s = self.a, self
        a(f"""
        v_lshrrev_b32 v8, 3, v0
        s_mul_i32 s{s.S_T0}, s{S_J}, 3
        v_add_u32 v8, s{s.S_T0}, v8
        v_and_b32 v9, 7, v0
        v_and_b32 v10, 3, v8
        v_lshl_add_u32 v10, v9, 2, v10
        v_bfe_u32 v11, v8, 2, 3
        v_lshl_add_u32 v10, v10, 3, v11
        v_lshlrev_b32 v10, 9, v10
        v_lshrrev_b32 v8, 5, v8
        v_lshlrev_b32 v11, 5, v8
        s_lshl_b32 s{s.S_T0}, s{S_MB}, 2
        v_add_u32 v11, s{s.S_T0}, v11
        v_cmp_eq_u32 vcc, 0, v8
        v_mov_b32 v8, 96
        v_cndmask_b32 v11, v11, v8, vcc
        v_add_u32 v10, v10, v11
        v_cmp_ne_u32 {sr(s.S_P,2)}, s{S_MB}, v9
        s_and_b64 vcc, vcc, {sr(s.S_P,2)}
        s_or_b32 vcc_lo, vcc_lo, 0xff000000
        s_mov_b32 vcc_hi, -1
        v_mov_b32 v8, {OOB}
        v_cndmask_b32 v10, v10, v8, vcc
        v_mov_b32 v11, s{s.S_TAG}
        s_mov_b32 s{s.S_T0}, {GOF}
        buffer_store_dword v11, v10, {sr(s.R_WS,4)}, s{s.S_T0} offen
        """)
    def mail2(self, S_J, S_MB, S_B):
        a, s = self.a, self
        a(f"""
        v_lshrrev_b32 v8, 1, v0
        v_and_b32 v9, 1, v0
        s_lshl_b32 s{s.S_T0}, s{S_B}, 1
        v_add_u32 v9, s{s.S_T0}, v9
        v_bfe_u32 v10, v0, 3, 1
        s_lshl_b32 s{s.S_T0}, s{S_MB}, 1
        v_add_u32 v10, s{s.S_T0}, v10
        v_and_b32 v11, 7, v0
        v_cmp_gt_u32 vcc, 32, v0
        v_cndmask_b32 v8, v10, v8, vcc
        v_cndmask_b32 v9, v11, v9, vcc
        s_add_u32 s{s.S_T0}, s{S_B}, 8
        v_mov_b32 v10, s{s.S_T0}
        v_mov_b32 v11, s{S_MB}
        v_cndmask_b32 v10, v10, v11, vcc
        v_and_b32 v11, 3, v8
        v_lshl_add_u32 v9, v11, 3, v9
        v_lshrrev_b32 v8, 2, v8
        v_lshlrev_b32 v8, 1, v8
        v_lshl_add_u32 v8, v9, 3, v8
        v_lshlrev_b32 v8, 9, v8
        v_lshl_add_u32 v8, v10, 2, v8
        s_lshr_b32 s{s.S_T0}, s{s.S_XCD}, 2
        s_lshl_b32 s{s.S_T0}, s{s.S_T0}, 9
        s_and_b32 s{s.S_T1}, s{s.S_XCD}, 3
        s_lshl_b32 s{s.S_T1}, s{s.S_T1}, 6
        s_add_u32 s{s.S_T0}, s{s.S_T0}, s{s.S_T1}
        s_add_u32 s{s.S_T0}, s{s.S_T0}, {GOF + 128}
        v_mov_b32 v11, s{s.S_TAG}
        s_mov_b32 exec_hi, 0xffff
        buffer_store_dword v11, v8, {sr(s.R_WS,4)}, s{s.S_T0} offen
        s_mov_b32 exec_hi, -1
        """)
    def g_probe(self, t0, t1):
        a, s = self.a, self
        a(f"v_and_b32 v{t0}, 15, v0")
        a(f"s_lshl_b32 s{s.S_T0}, s{s.S_T3}, 6")
        a(f"v_lshl_add_u32 v{t0}, v{t0}, 2, s{s.S_T0}")
        s.probe_id[a.role] = a.emit(f"buffer_load_dword v{t1}, v{t0}, {sr(s.R_WS,4)}, s{s.S_GOA} offen offset:128 sc1")
    V_P = 120
    def unit_base(self, dst, add):
        s = self
        self.a(f"""
        s_add_u32 s{s.S_T0}, s{s.S_H}, {add}
        s_mul_i32 s{s.S_T1}, s{s.S_T0}, 171
        s_lshr_b32 s{s.S_T1}, s{s.S_T1}, 9
        s_mul_i32 s{s.S_T2}, s{s.S_T1}, 3
        s_sub_u32 s{s.S_T0}, s{s.S_T0}, s{s.S_T2}
        s_mul_i32 s{s.S_T0}, s{s.S_T0}, 288
        s_lshl_b32 s{s.S_T1}, s{s.S_T1}, 18
        s_add_u32 s{dst}, s{s.S_T0}, s{s.S_T1}
        s_add_u32 s{dst}, s{dst}, {QN}
        """)
    def setup(self, role):
        a, s = self.a, self
        make_srd(a, s.R_OUT, P_OUT, 2048*1152)
        a(f"""
        s_lshr_b32 s{s.S_LOC}, s2, 3
        s_and_b32 s{s.S_T0}, s{s.S_LOC}, 3
        s_lshl_b32 s{s.S_H}, s{s.S_XCD}, 2
        s_add_u32 s{s.S_H}, s{s.S_H}, s{s.S_T0}
        s_lshr_b32 s{s.S_QB}, s{s.S_LOC}, 2
        s_and_b32 s{s.S_T3}, s{s.S_W}, 3
        s_mul_i32 s{s.S_M0}, s{s.S_T3}, {KVREC}
        s_lshl_b32 s{s.S_T2}, s{s.S_QB}, 3
        s_lshl_b32 s{s.S_T1}, s{s.S_T3}, 1
        s_add_u32 s{s.S_QT}, s{s.S_T2}, s{s.S_T1}
        s_mul_i32 s{s.S_OA}, s{s.S_T3}, 3072
        s_add_u32 s{s.S_OA}, s{s.S_OA}, {QST}
        s_mov_b32 s{s.S_GO}, 0
        """)
        s.unit_base(s.S_KVO, 32)
        s.unit_base(s.S_IT, 64)
        a(f"s_sub_u32 s{s.S_IT}, s{s.S_IT}, s{s.S_KVO}")
        if role == 'A':
            s.unit_base(s.S_OB, 0)
            a(f"s_lshl_b32 s{s.S_T0}, s{s.S_QT}, 12")
            a(f"s_add_u32 s{s.S_OB}, s{s.S_OB}, s{s.S_T0}")
        for part in range(3):
            a(f"""
            v_add_u32 v8, {48*part}, v0
            v_mul_u32_u24 v9, 57, v8
            v_lshrrev_b32 v9, 10, v9
            v_mul_u32_u24 v10, 18, v9
            v_sub_u32 v8, v8, v10
            v_lshlrev_b32 v8, 4, v8
            v_lshrrev_b32 v10, 1, v9
            v_lshl_add_u32 v10, v10, 10, v8
            v_and_b32 v11, 1, v9
            v_mul_lo_u32 v11, v11, s{s.S_IT}
            v_add_u32 v{s.V_P+part}, v10, v11
            """)
            if role == 'A': a(f"v_lshl_add_u32 v{s.V_P+8+part}, v9, 10, v8")
    def consts(self, t0, first, n):
        self.a(f"""
        v_mul_u32_u24 v{t0}, {KVREC}, v0
        v_add_u32 v{t0}, {first*KVREC + 2304}, v{t0}
        v_mov_b32 v{t0+1}, 0x3f803f80
        v_mov_b32 v{t0+2}, 0x3f803f80
        v_mov_b32 v{t0+3}, 0
        v_mov_b32 v{t0+4}, 0
        s_mov_b64 exec, {(1 << n) - 1 if n <= 32 else -1}
        """)
        if n > 32: self.a(f"s_mov_b32 exec_hi, {(1 << (n - 32)) - 1}")
        self.a(f"""
        ds_write2_b64 v{t0}, {vr(t0+1,2)}, {vr(t0+1,2)} offset0:0 offset1:1
        ds_write2_b64 v{t0}, {vr(t0+3,2)}, {vr(t0+3,2)} offset0:2 offset1:3
        s_mov_b64 exec, -1
        """)
    def kv_tile(self, vp, base, m0base, t):
        a, s = self.a, self
        a(f"s_add_u32 s{s.S_T1}, s{base}, {t*4096}")
        for part in range(3):
            a(f"s_add_u32 m0, s{m0base}, {t*KVREC + part*768}")
            idd = a.emit(f"buffer_load_dwordx4 v{vp+part}, {sr(s.R_WS,4)}, s{s.S_T1} offen sc1 lds")
        return idd
    def reset_flags(self):
        self.a(f"""
        v_lshlrev_b32 v8, 2, v0
        v_and_b32 v8, 63, v8
        v_mov_b32 v9, 0
        ds_write_b32 v8, v9 offset:{FLAG - 131072}
        """.replace(f"ds_write_b32 v8, v9 offset:{FLAG - 131072}", f"v_add_u32 v8, {FLAG}, v8\nds_write_b32 v8, v9"))
    S_GO = 19
    S_GOA = 99
    S_TAG = 0
    def kv_probe(self, t0, t1):
        a, s = self.a, self
        a(f"v_and_b32 v{t0}, 31, v0")
        a(f"v_lshlrev_b32 v{t0}, 2, v{t0}")
        s.probe_id[a.role] = a.emit(f"buffer_load_dword v{t1}, v{t0}, {sr(s.R_WS,4)}, s{s.S_GOA} offen sc1")
    def kv_issue(self, t0):
        a, s = self.a, self
        a(f"""
        s_mov_b32 s{s.S_GO}, 1
        s_mov_b32 exec_hi, 0xffff
        """)
        for part in range(3):
            a(f"s_add_u32 m0, s{s.S_OA}, {part*768}")
            a(f"buffer_load_dwordx4 v{s.V_P+8+part}, {sr(s.R_WS,4)}, s{s.S_OB} offen sc1 lds")
        a(f"s_lshl_b32 s{s.S_T0}, s{s.S_T3}, 12")
        a(f"s_add_u32 s{s.S_T0}, s{s.S_T0}, s{s.S_KVO}")
        for i in range(s.NFIRST): s.kv_tile(s.V_P, s.S_T0, s.S_M0, 4*i)
        a("s_mov_b32 exec_hi, -1")
    def kv_try(self, tag, t0, t1):
        a, s, name = self.a, self, self.name
        a(f"s_cmp_lg_u32 s{s.S_GO}, 0")
        a(f"s_cbranch_scc1 {name}_{tag}")
        m = a.skip_begin()
        a.wait_vm(s.probe_id['A'])
        a(f"v_cmp_ne_u32 vcc, s{s.S_TAG}, v{t1}")
        a(f"s_and_b32 vcc_lo, vcc_lo, {MBOX}")
        a(f"s_cbranch_scc1 {name}_{tag}")
        m2 = a.skip_begin(); vm0 = dict(a.vmr)
        s.kv_issue(t0)
        a.vmr = vm0
        s.first_id = dict(a.vmr)
        a.skip_end(m); a.skip_end(m2)
        a.label(f"{name}_{tag}")

    def attention(self):
        a, s, name, opts, stamp = self.a, self, self.name, self.opts, self.stamp
        R_WS, S_W, S_H, S_QB, S_T0, S_T1, S_T2, S_T3, S_IT, S_KVO = s.R_WS, s.S_W, s.S_H, s.S_QB, s.S_T0, s.S_T1, s.S_T2, s.S_T3, s.S_IT, s.S_KVO
        SP = sr(s.S_P, 2)
        SA, SB, PA, PB, OA, OB = 160, 32, 48, 56, 64, 80
        QA0, QA1, QB0, QB1 = 96, 100, 104, 108
        K0 = [112, 116]; KX = [120, 124]; V0 = [128, 176]
        A_K, A_X, A_V0, A_V1 = 2, 3, 4, 14
        GA, GBr = 5, 6
        V_ST, V_STX, V_G = 7, 8, 15
        a("s_setprio 1")
        s.signal(F_WDONE, 9, 10)
        s.consts(17, 0, 20)
        a(f"""
        v_lshlrev_b32 v1, 4, v0
        v_lshrrev_b32 v9, 5, v0
        v_bfe_u32 v10, v0, 4, 1
        v_and_b32 v11, 1, v0
        v_lshl_add_u32 v10, v10, 1, v11
        v_bfe_u32 v11, v0, 2, 2
        v_bfe_u32 v12, v0, 1, 1
        v_lshlrev_b32 v12, 3, v12
        v_lshl_add_u32 v13, v11, 4, v12
        v_lshl_add_u32 v15, v9, 7, v13
        v_mul_u32_u24 v16, 288, v10
        v_add_u32 v17, s{s.S_OA}, v16
        v_add_u32 v21, v17, v15
        v_and_b32 v18, 0x1f, v13
        v_add_u32 v22, v17, v18
        """)
        a(f"s_cmp_lg_u32 s{s.S_GO}, 0")
        a(f"s_cbranch_scc1 {name}_kvgo")
        m = a.skip_begin(); vm0 = dict(a.vmr)
        s.gpoll("c1a", s.R_WS, 112, f"s{s.S_GOA}", 1, MBOX, 20, sleep=4)
        s.kv_issue(19)
        a("s_waitcnt vmcnt(0)")
        a.vmr = vm0
        a.skip_end(m)
        a.label(f"{name}_kvgo")
        for i in range(3): a(f"v_mov_b32 v{196+i}, v{s.V_P+i}")
        a.wait_vm(s.first_id)
        for (q0, q1, o) in ((QA0, QA1, 0), (QB0, QB1, QREC)):
            a(f"ds_read_b64_tr_b16 {vr(q0,2)}, v21 offset:{o}")
            a(f"ds_read_b64_tr_b16 {vr(q0+2,2)}, v21 offset:{o+64}")
            a(f"ds_read_b64_tr_b16 {vr(q1,2)}, v22 offset:{o+256}")
        s.signal(F_C1, 17, 18)
        a(f"""
        v_lshlrev_b32 v16, 1, v16
        v_add_u32 v{A_K}, v16, v15
        v_add_u32 v17, v16, v13
        v_add_u32 v17, 256, v17
        v_add_u32 v18, 2320, v12
        v_add_u32 v19, 2304, v12
        v_lshl_add_u32 v20, v9, 2, v11
        v_cmp_eq_u32 vcc, 2, v20
        v_cndmask_b32 v18, v18, v19, vcc
        v_cmp_gt_u32 vcc, 2, v20
        v_cndmask_b32 v{A_X}, v18, v17, vcc
        """)
        for r in [QA1+2, QA1+3, QB1+2, QB1+3, KX[0]+2, KX[0]+3, KX[1]+2, KX[1]+3]:
            a(f"v_mov_b32 v{r}, 0")
        s.poll(F_C1, 17, 18, "ac1", 0)
        stamp('kv1')
        def kreads(p, o):
            return [f"ds_read_b64_tr_b16 {vr(K0[p],2)}, v{A_K} offset:{o}",
                    f"ds_read_b64_tr_b16 {vr(K0[p]+2,2)}, v{A_K} offset:{o+64}",
                    f"ds_read_b64_tr_b16 {vr(KX[p],2)}, v{A_X} offset:{o}"]
        for x in kreads(0, 0): a(x)
        a(f"""
        v_and_b32 v11, 31, v0
        v_and_b32 v12, 0x13, v11
        v_bfe_u32 v13, v11, 2, 1
        v_lshl_or_b32 v12, v13, 3, v12
        v_bfe_u32 v13, v11, 3, 1
        v_lshl_or_b32 v12, v13, 2, v12
        v_mul_u32_u24 v13, 576, v9
        v_lshl_add_u32 v12, v12, 4, v13
        v_add_u32 v12, 288, v12
        v_add_u32 v13, 1152, v12
        v_mov_b32 v17, 2320
        v_mov_b32 v18, 2304
        v_and_b32 v19, 27, v11
        v_cmp_eq_u32 vcc, 18, v19
        v_cndmask_b32 v17, v17, v18, vcc
        v_cmp_gt_u32 vcc, 18, v11
        v_cndmask_b32 v{A_V0}, v17, v12, vcc
        v_cndmask_b32 v{A_V1}, v17, v13, vcc
        v_cmp_gt_u32 vcc, 32, v0
        """)
        for q1 in (QA1, QB1):
            a(f"v_cndmask_b32 v{q1}, 0, v{q1}, vcc")
            a(f"v_mov_b32 v{q1+1}, 0")
        a("s_waitcnt lgkmcnt(0)")
        def qk(S, q0, q1, kb):
            return [f"v_mfma_f32_32x32x16_bf16 {vr(S,16)}, {vr(K0[kb],4)}, {vr(q0,4)}, 0",
                    f"v_mfma_f32_32x32x16_bf16 {vr(S,16)}, {vr(KX[kb],4)}, {vr(q1,4)}, {vr(S,16)}"]
        def pv(O, P, vb):
            return [f"v_mfma_f32_32x32x16_bf16 {vr(O,16)}, {vr(V0[vb],4)}, {vr(P,4)}, {vr(O,16)}",
                    f"v_mfma_f32_32x32x16_bf16 {vr(O,16)}, {vr(V0[vb]+4,4)}, {vr(P+4,4)}, {vr(O,16)}"]
        zer = [f"v_mov_b32 v{r}, 0" for r in list(range(PB, PB+8)) + list(range(OA, OA+32)) + list(range(V0[1], V0[1]+8))]
        for i, x in enumerate(qk(SA, QA0, QA1, 0) + qk(SB, QB0, QB1, 0)):
            a(x)
            for z in zer[i*6:(i+1)*6]: a(z)
        zer = zer[24:]
        for S, Q1, t in ((SA, QA1, 10), (SB, QB1, 12)):
            a(f"v_max3_f32 v{t}, v{S}, v{S+1}, v{S+2}")
            for i in range(3, 15, 2): a(f"v_max3_f32 v{t}, v{t}, v{S+i}, v{S+i+1}")
            a(f"v_max_f32 v{t}, v{t}, v{S+15}")
            a(f"v_mov_b32 v{t+1}, v{t}")
            a(zer.pop()); a(zer.pop())
            a(f"v_permlane32_swap_b32 v{t}, v{t+1}")
            a(f"v_max_f32 v{t}, v{t}, v{t+1}")
            a(f"v_cvt_pk_bf16_f32 v{t}, -v{t}, 0")
            a(f"v_cndmask_b32 v{Q1+1}, 0, v{t}, vcc")
            if S == SA:
                a(zer.pop()); a(zer.pop())
                for x in qk(SA, QA0, QA1, 0): a(x)
        for z in zer: a(z)
        a(f"s_mov_b32 s{S_IT}, 0")
        a.fence()
        stamp('pre')
        UN = 8
        PAT = opts.get('pat', "Wmeee" "meee" "meee" "mL" "eeeeeee" "cccccccc")
        def half(S, P, mf, reads, wait, extra):
            e = [f"v_exp_f32 v{S+i}, v{S+i}" for i in range(16)]
            c = [f"v_cvt_pk_bf16_f32 v{P+j}, v{S+2*j}, v{S+2*j+1}" for j in range(8)]
            mi = ei = ci = 0
            for ch in PAT:
                if ch == 'm': a(mf[mi]); mi += 1
                elif ch == 'e': a(e[ei]); ei += 1
                elif ch == 'c': a(c[ci]); ci += 1
                elif ch == 'L':
                    for r in reads + extra: a(r)
                elif ch == 'W':
                    if wait: a("s_waitcnt lgkmcnt(0)")
            assert (mi, ei, ci) == (4, 16, 8)
        a.raw(".p2align 3")
        a.label(f"{name}_aloop")
        a(f"s_bitcmp1_b32 {(1 << 1) | (1 << 2) | (1 << 4) | (1 << 6) | (1 << 7)}, s{S_IT}")
        a(f"s_cbranch_scc1 {name}_astub")
        a.label(f"{name}_acont")
        if stamp.on and opts.get('itstamp', True):
            a("s_memtime s[100:101]")
            a(f"s_add_u32 m0, s{S_IT}, 40")
            a("s_waitcnt lgkmcnt(0)")
            a(f"v_writelane_b32 v{stamp.v}, s100, m0")
        for t in range(UN):
            p = t & 1
            o = t * KVREC
            rd = kreads(p ^ 1, o + KVREC) + [f"ds_read_b128 {vr(V0[p],4)}, v{A_V0} offset:{o}",
                                             f"ds_read_b128 {vr(V0[p]+4,4)}, v{A_V1} offset:{o}"]
            half(SA, PA, qk(SB, QB0, QB1, p) + pv(OB, PB, p ^ 1), rd, False, [])
            ex = []
            if t == UN - 1:
                ex = [f"s_add_u32 s{S_IT}, s{S_IT}, 1", f"s_cmp_lt_u32 s{S_IT}, {64//UN}"] + \
                     [f"v_add_u32 v{r}, {UN*KVREC}, v{r}" for r in (A_K, A_X, A_V0, A_V1)]
            half(SB, PB, qk(SA, QA0, QA1, p ^ 1) + pv(OA, PA, p), [], True, ex)
        a(f"s_cbranch_scc1 {name}_aloop")
        for x in pv(OB, PB, (UN - 1) & 1): a(x)
        stamp('loop')
        a(f"s_mov_b32 s{S_T2}, {f2u(2.0**100)}")
        a(f"s_mov_b32 s{S_T1}, {f2u(2.0**-20)}")
        a(f"v_maximum3_f32 v10, |v{OA}|, |v{OA+1}|, |v{OA+2}|")
        for i in (3, 5, 7): a(f"v_maximum3_f32 v10, v10, |v{OA+i}|, |v{OA+i+1}|")
        a(f"v_mov_b32 v13, 0x7f000000")
        a("s_waitcnt vmcnt(0)")
        a(f"v_maximum3_f32 v10, v10, |v{OA+9}|, |v{OB}|")
        for i in (1, 3, 5, 7): a(f"v_maximum3_f32 v10, v10, |v{OB+i}|, |v{OB+i+1}|")
        a(f"""
        v_maximum3_f32 v11, v{OA+10}, v{OB+10}, v{OB+10}
        v_minimum3_f32 v12, v{OA+10}, v{OB+10}, v{OB+10}
        v_maximum3_f32 v10, v10, |v{OB+9}|, |v{OB+9}|
        v_cmp_ge_f32 vcc, s{S_T2}, v11
        v_cmp_le_f32 {SP}, s{S_T1}, v12
        s_and_b64 vcc, vcc, {SP}
        v_cmp_gt_f32 {SP}, v13, v10
        s_and_b64 vcc, vcc, {SP}
        s_cmp_eq_u64 vcc, -1
        s_cbranch_scc0 {name}_slow
        """)
        a.label(f"{name}_aepi")
        for tt, (O, G, P) in enumerate(((OA, GA, 144), (OB, GBr, 184))):
            a(f"v_rcp_f32 v{P+8}, v{O+10}")
            a(f"v_mul_f32 v{P+8}, v{P+8}, v{G}")
            for i in range(10): a(f"v_mul_f32 v{O+i}, v{O+i}, v{P+8}")
            for j in range(5): a(f"v_cvt_pk_bf16_f32 v{P+j}, v{O+2*j}, v{O+2*j+1}")
            a(f"buffer_store_dwordx4 {vr(P,4)}, v{V_ST}, {sr(R_WS,4)}, s{s.S_OB} offen offset:{tt*1152}")
            a(f"buffer_store_dword v{P+4}, v{V_STX}, {sr(R_WS,4)}, s{s.S_OB} offen offset:{tt*1152+1024}")
        s.signal(F_ATT, 12, 13)
        a(f"""
        v_mov_b32 v10, 0
        v_mov_b32 v11, s{s.S_TAG}
        s_waitcnt vmcnt(0)
        """)
        stamp('ack')
        a("s_mov_b64 exec, 1")
        a(f"buffer_store_dword v11, v10, {sr(R_WS,4)}, s{s.S_MSK} offen")
        a("s_mov_b64 exec, -1")
        if stamp.on:
            a("s_waitcnt vmcnt(0)")
            stamp('end')
            stamp.out(9)
        a("s_endpgm")
        a.hists = [[]]
        a.label(f"{name}_slow")
        MA, MB = 144, 145
        a(f"""
        s_nop 7
        s_sub_u32 s{S_T2}, s{s.S_OA}, {KVB}
        v_add_u32 v{A_K}, s{S_T2}, v{A_K}
        v_add_u32 v{A_X}, s{S_T2}, v{A_X}
        v_add_u32 v{A_V0}, s{S_T2}, v{A_V0}
        v_add_u32 v{A_V1}, s{S_T2}, v{A_V1}
        v_mov_b32 v{QA1+1}, 0
        v_mov_b32 v{QB1+1}, 0
        v_mov_b32 v{MA}, 0xff000000
        v_mov_b32 v{MB}, 0xff000000
        s_mov_b32 s{S_IT}, 0
        s_mov_b32 s{S_T2}, s{S_KVO}
        """)
        for r in range(OA, OA+32): a(f"v_mov_b32 v{r}, 0")
        a(f"""
        v_mov_b32 v17, s{s.S_OA}
        v_add_u32 v17, 2304, v17
        v_mov_b32 v18, 0x3f803f80
        v_mov_b32 v19, 0x3f803f80
        ds_write2_b64 v17, v[18:19], v[18:19] offset0:0 offset1:1
        ds_write2_b64 v17, {vr(OA,2)}, {vr(OA,2)} offset0:2 offset1:3
        """)
        a.fence()
        a.label(f"{name}_sloop")
        a("s_mov_b32 exec_hi, 0xffff")
        s.kv_tile(196, S_T2, s.S_OA, 0)
        a("s_mov_b32 exec_hi, -1")
        a("s_waitcnt vmcnt(0)")
        for x in kreads(0, 0): a(x)
        a(f"ds_read_b128 {vr(V0[0],4)}, v{A_V0}")
        a(f"ds_read_b128 {vr(V0[0]+4,4)}, v{A_V1}")
        a("s_waitcnt lgkmcnt(0)")
        for x in qk(SA, QA0, QA1, 0) + qk(SB, QB0, QB1, 0): a(x)
        for S, P, O, M in ((SA, PA, OA, MA), (SB, PB, OB, MB)):
            a(f"v_max3_f32 v10, v{S}, v{S+1}, v{M}")
            for i in range(2, 16, 2): a(f"v_max3_f32 v10, v10, v{S+i}, v{S+i+1}")
            a("v_mov_b32 v11, v10")
            a("v_permlane32_swap_b32 v10, v11")
            a("v_max_f32 v10, v10, v11")
            a(f"v_sub_f32 v11, v{M}, v10")
            a("v_exp_f32 v11, v11")
            a(f"v_mov_b32 v{M}, v10")
            for i in range(16): a(f"v_sub_f32 v{S+i}, v{S+i}, v10")
            for i in range(16): a(f"v_exp_f32 v{S+i}, v{S+i}")
            for i in range(16): a(f"v_mul_f32 v{O+i}, v{O+i}, v11")
            for j in range(8): a(f"v_cvt_pk_bf16_f32 v{P+j}, v{S+2*j}, v{S+2*j+1}")
            for x in pv(O, P, 0): a(x)
        a(f"""
        s_add_u32 s{S_T2}, s{S_T2}, 4096
        s_add_u32 s{S_IT}, s{S_IT}, 1
        s_cmp_lt_u32 s{S_IT}, 64
        """)
        a.fence()
        a(f"s_cbranch_scc1 {name}_sloop")
        a(f"s_branch {name}_aepi")
        a.hists = [[]]
        a.label(f"{name}_astub")
        for it in (2, 4, 6, 7):
            a(f"s_cmp_eq_u32 s{S_IT}, {it}")
            a(f"s_cbranch_scc1 {name}_astub{it}")
        a("s_waitcnt vmcnt(0)")
        s.signal(F_ST, 10, 11)
        a("s_nop 3")
        a(f"s_branch {name}_acont")
        a.label(f"{name}_astub2")
        s.poll(F_C2, 10, 11, "ap2", 1)
        a(f"s_branch {name}_acont")
        a.label(f"{name}_astub4")
        s.poll(F_C3, 10, 11, "ap3", 1)
        a(f"s_branch {name}_acont")
        a.label(f"{name}_astub6")
        s.signal(F_REL, 10, 11)
        a("s_nop 3")
        a(f"s_branch {name}_acont")
        a.label(f"{name}_astub7")
        s.poll(F_SEEN2, 10, 11, "ap7", 1, n=1)
        a(f"""
        v_and_b32 v11, 7, v0
        v_bfe_u32 v12, v0, 3, 1
        v_lshl_add_u32 v11, v12, 4, v11
        v_bfe_u32 v12, v0, 4, 1
        v_lshl_add_u32 v11, v12, 3, v11
        v_lshlrev_b32 v12, 2, v11
        s_lshl_b32 s{S_T1}, s{s.S_QT}, 7
        s_add_u32 s{S_T1}, s{S_T1}, {GB}
        buffer_load_dword v{GA}, v12, {sr(R_WS,4)}, s{S_T1} offen sc1
        buffer_load_dword v{GBr}, v12, {sr(R_WS,4)}, s{S_T1} offen offset:128 sc1
        v_cmp_gt_u32 vcc, 32, v0
        v_mov_b32 v13, {OOB}
        v_cndmask_b32 v{V_STX}, v13, v12, vcc
        v_lshlrev_b32 v12, 4, v11
        v_lshl_add_u32 v{V_ST}, v9, 9, v12
        s_lshl_b32 s{S_T0}, s{s.S_QT}, 4
        s_add_u32 s{S_T0}, s{S_T0}, s{S_H}
        s_mul_i32 s{s.S_OB}, s{S_T0}, 2304
        s_add_u32 s{s.S_OB}, s{s.S_OB}, {OF}
        s_lshr_b32 s{S_T0}, s{S_T0}, 3
        s_lshl_b32 s{S_T0}, s{S_T0}, 7
        s_and_b32 s{S_T2}, s{S_H}, 7
        s_lshl_b32 s{S_T2}, s{S_T2}, 2
        s_add_u32 s{S_T0}, s{S_T0}, s{S_T2}
        s_add_u32 s{s.S_MSK}, s{S_T0}, {OFL}
        s_branch {name}_acont
        """)
        a.hists = [[]]

    def gemm(self):
        a, s, name, opts, stamp = self.a, self, self.name, self.opts, self.stamp
        R_WS, R_OUT, S_W, S_XCD, S_LOC, S_H, S_QB = s.R_WS, s.R_OUT, s.S_W, s.S_XCD, s.S_LOC, s.S_H, s.S_QB
        S_T0, S_T1, S_T2, S_T3, S_IT, S_KVO, S_HO, S_WO, S_M0 = s.S_T0, s.S_T1, s.S_T2, s.S_T3, s.S_IT, s.S_KVO, s.S_HO, s.S_WO, s.S_M0
        S_KH, S_OA, S_OB, S_MSK, S_HB0, S_WB0 = s.S_KH, s.S_OA, s.S_OB, s.S_MSK, s.S_HB0, s.S_WB0
        ACC32 = lambda q, h: 4 + q*36 + h*16
        ACC16 = lambda q: 4 + q*36 + 32
        BUF = lambda b: 148 + (b % 3)*28
        V_W8 = 2; V_H = 232; TM = 244
        if stamp.on:
            a(f"v_mov_b32 v255, v{stamp.v}")
            stamp.v = 255
        s.signal(F_WDONE, TM, TM+1)
        a(f"""
        v_lshlrev_b32 v1, 4, v0
        s_and_b32 s{S_KH}, s{S_XCD}, 1
        s_mul_i32 s{S_IT}, s{S_KH}, 144
        s_mul_i32 s{S_T1}, s{S_T3}, 36
        s_add_u32 s{S_IT}, s{S_IT}, s{S_T1}
        s_lshr_b32 s{S_T1}, s{S_XCD}, 1
        s_lshl_b32 s{S_T1}, s{S_T1}, 2
        s_lshr_b32 s{S_T2}, s{S_LOC}, 3
        s_add_u32 s{S_QB}, s{S_T1}, s{S_T2}
        s_and_b32 s{S_H}, s{S_LOC}, 7
        s_mul_i32 s{S_HB0}, s{S_QB}, 288
        s_add_u32 s{S_HB0}, s{S_HB0}, s{S_IT}
        s_lshl_b32 s{S_HB0}, s{S_HB0}, 12
        s_mul_i32 s{S_WB0}, s{S_H}, 288
        s_add_u32 s{S_WB0}, s{S_WB0}, s{S_IT}
        s_mul_i32 s{S_WB0}, s{S_WB0}, 2304
        s_add_u32 s{S_WB0}, s{S_WB0}, {WDP}
        s_lshl_b32 s{S_T1}, s{S_T3}, 12
        s_add_u32 s{S_KVO}, s{S_KVO}, s{S_T1}
        v_mov_b32 v236, v{s.V_P}
        v_mov_b32 v237, v{s.V_P+1}
        v_mov_b32 v238, v{s.V_P+2}
        v_bfe_u32 v{V_W8}, v0, 3, 1
        v_bfe_u32 v3, v0, 4, 1
        v_cmp_eq_u32 vcc, v{V_W8}, v3
        v_lshrrev_b32 v3, 5, v0
        v_lshlrev_b32 v3, 7, v3
        v_and_b32 v{V_W8}, 7, v0
        v_lshl_add_u32 v3, v{V_W8}, 4, v3
        v_mov_b32 v{V_W8}, {OOB}
        v_cndmask_b32 v{V_W8}, v{V_W8}, v3, vcc
        v_mov_b32 v{TM+2}, 0
        """)
        for q in range(4):
            a(f"s_add_u32 s{S_T1}, s{S_T3}, {q}")
            a(f"s_and_b32 s{S_T1}, s{S_T1}, 3")
            a(f"s_lshl_b32 s{S_T1}, s{S_T1}, 10")
            a(f"v_add_u32 v{V_H+q}, s{S_T1}, v1")
        a.wait_vm(s.probe_id['B'])
        a(f"v_cmp_ne_u32 vcc, s{s.S_TAG}, v113")
        a("s_and_b32 vcc_lo, vcc_lo, 0xfff")
        a(f"s_cbranch_scc0 {name}_gc1ok")
        m = a.skip_begin(); vm0 = dict(a.vmr)
        s.gpoll("gc1", R_WS, 112, f"s{s.S_GOA}", 1, 0xfff, TM+1, imm=128, sleep=4)
        a.vmr = vm0
        a.skip_end(m)
        a.label(f"{name}_gc1ok")
        order = [4*l + i for l in (0, 2, 4, 6, 8, 1, 3, 5, 7) for i in range(4)]
        ld_id = {}
        def pre(k):
            a(f"s_add_u32 s{S_HO}, s{S_HB0}, {order[k]*4096}")
            a(f"s_add_u32 s{S_WO}, s{S_WB0}, {order[k]*2304}")
        def ldH(k, q): a(f"buffer_load_dwordx4 {vr(BUF(k)+4*q,4)}, v{V_H+q}, {sr(R_WS,4)}, s{S_HO} offen sc1")
        def ldW(k):
            a(f"buffer_load_dwordx4 {vr(BUF(k)+16,4)}, v1, {sr(R_WS,4)}, s{S_WO} offen sc1")
            a(f"buffer_load_dwordx4 {vr(BUF(k)+20,4)}, v1, {sr(R_WS,4)}, s{S_WO} offen offset:1024 sc1")
            ld_id[k] = a.emit(f"buffer_load_dwordx4 {vr(BUF(k)+24,4)}, v{V_W8}, {sr(R_WS,4)}, s{S_WO} offen offset:2048 sc1")
        for k in range(3):
            pre(k)
            for q in range(4): ldH(k, q)
            ldW(k)
        stamp('g0')
        NC2, NC3 = 4, 7
        kvn = [0]; kv_id = {}
        def kvdma(n):
            if kvn[0] >= NC2 + NC3: return
            a("s_mov_b32 exec_hi, 0xffff")
            for _ in range(n):
                if kvn[0] >= NC2 + NC3: break
                t = 4*(s.NFIRST + kvn[0])
                kvn[0] += 1
                kv_id[kvn[0]] = s.kv_tile(236, S_KVO, S_M0, t)
            a("s_mov_b32 exec_hi, -1")
        sig = {F_C2: False, F_C3: False}
        KA = opts.get('ka', 5)
        WB = lambda k: 148 + k*12 if k < 8 else 136
        def ldWo(k):
            a(f"buffer_load_dwordx4 {vr(WB(k),4)}, v1, {sr(R_WS,4)}, s{S_WO} offen sc1")
            a(f"buffer_load_dwordx4 {vr(WB(k)+4,4)}, v1, {sr(R_WS,4)}, s{S_WO} offen offset:1024 sc1")
            a(f"buffer_load_dwordx4 {vr(WB(k)+8,4)}, v{V_W8}, {sr(R_WS,4)}, s{S_WO} offen offset:2048 sc1")
        for k in range(36):
            a.wait_vm(ld_id[k])
            if k == 0:
                s.signal(F_ST, TM, TM+1)
            if k == 1:
                s.poll(F_WDONE, TM, TM+1, "gwd", 1, n=8)
                s.consts(239, 20, 44)
            hp = opts.get('gprio', '0')
            if hp[k % len(hp)] != hp[(k - 1) % len(hp)] or k == 0: a(f"s_setprio {2 if hp[k % len(hp)] == '1' else 0}")
            for fl, last in ((F_C2, NC2), (F_C3, NC2 + NC3)):
                if not sig[fl] and last in kv_id and kv_id[last]['B'] <= ld_id[k]['B']:
                    s.signal(fl, TM, TM+1); sig[fl] = True
            if k == KA or k == KA + 3:
                a(f"s_cmp_lg_u32 s{S_W}, 4")
                a(f"s_cbranch_scc1 {name}_c2s{k}")
                m = a.skip_begin(); vm0 = dict(a.vmr)
                if k == KA:
                    s.poll(F_ST, TM, TM+1, "gst", 2, n=8)
                    s.arrive(1, TM, TM+10)
                else:
                    s.broadcast_if_last(1, TM, TM+10, f"{name}_c2s{k}", wait=False)
                a.vmr = vm0
                a.skip_end(m)
                a.label(f"{name}_c2s{k}")
            if k + 3 == 20:
                s.gpoll("c2", s.R_WS, TM+2, f"s{s.S_GOA}", 1, 1, TM+1, imm=4)
                s.signal(F_SEEN2, TM, TM+1)
            if stamp.on and k % 3 == 0: stamp('', 40 + k // 3)
            if k + 3 < 36: pre(k + 3)
            for q in range(4):
                h = vr(BUF(k)+4*q, 4)
                c = (lambda x: "0") if k == 0 else (lambda x: x)
                a(f"v_mfma_f32_32x32x16_bf16 {vr(ACC32(q,0),16)}, {vr(BUF(k)+16,4)}, {h}, {c(vr(ACC32(q,0),16))}")
                a(f"v_mfma_f32_32x32x16_bf16 {vr(ACC32(q,1),16)}, {vr(BUF(k)+20,4)}, {h}, {c(vr(ACC32(q,1),16))}")
                a(f"v_mfma_f32_16x16x32_bf16 {vr(ACC16(q),4)}, {vr(BUF(k)+24,4)}, {h}, {c(vr(ACC16(q),4))}")
                if k + 3 < 36: ldH(k + 3, q)
            if k >= 1: kvdma(2 if k < 3 else 1)
            if k + 3 < 36: ldW(k + 3)
        assert sig[F_C2] and sig[F_C3]
        a("s_setprio 0")
        stamp('loop')
        a(f"""
        s_lshl_b32 s{S_T0}, s{S_T3}, 3
        s_mul_i32 s{S_T1}, s{S_H}, 36
        s_add_u32 s{S_WO}, s{S_T1}, s{S_T0}
        s_mul_i32 s{S_WO}, s{S_WO}, 2304
        s_add_u32 s{S_WO}, s{S_WO}, {WOP}
        s_add_u32 s{S_M0}, s{S_T1}, s{S_T3}
        s_mul_i32 s{S_M0}, s{S_M0}, 2304
        s_add_u32 s{S_M0}, s{S_M0}, {WOP + 32*2304}
        s_lshl_b32 s{S_IT}, s{S_QB}, 1
        s_add_u32 s{S_IT}, s{S_IT}, s{S_KH}
        s_lshl_b32 s{S_OA}, s{S_IT}, 5
        s_add_u32 s{S_OA}, s{S_OA}, s{S_T0}
        s_mul_i32 s{S_OA}, s{S_OA}, 2304
        s_add_u32 s{S_OA}, s{S_OA}, {OF}
        s_and_b32 s{S_T1}, s{S_T3}, 1
        s_mul_i32 s{S_T1}, s{S_T1}, 1152
        s_sub_u32 s{S_OB}, s{S_OA}, s{S_T1}
        s_add_u32 s{S_OB}, s{S_OB}, 1152
        s_add_u32 s{S_OA}, s{S_OA}, s{S_T1}
        """)
        for k in range(8):
            ldWo(k)
            a(f"s_add_u32 s{S_WO}, s{S_WO}, 2304")
        a(f"""
        s_lshl_b32 s{S_HO}, s{S_QB}, 2
        s_add_u32 s{S_HO}, s{S_HO}, s{S_T3}
        s_lshl_b32 s{S_HO}, s{S_HO}, 7
        s_add_u32 s{S_HO}, s{S_HO}, {GB}
        s_lshl_b32 s{S_T0}, s{S_IT}, 1
        s_lshr_b32 s{S_T1}, s{S_T3}, 1
        s_add_u32 s{S_HB0}, s{S_T0}, s{S_T1}
        s_lshl_b32 s{S_T0}, s{S_HB0}, 7
        s_add_u32 s{S_T0}, s{S_T0}, {GB}
        v_and_b32 v{TM+2}, 31, v0
        v_lshlrev_b32 v{TM+2}, 2, v{TM+2}
        v_and_b32 v{TM+3}, 15, v0
        v_lshrrev_b32 v{TM+4}, 5, v0
        v_lshl_add_u32 v{TM+3}, v{TM+4}, 4, v{TM+3}
        v_lshlrev_b32 v{TM+3}, 2, v{TM+3}
        buffer_load_dword v{TM+6}, v{TM+2}, {sr(R_WS,4)}, s{S_HO} offen sc1
        buffer_load_dword v{TM+7}, v{TM+3}, {sr(R_WS,4)}, s{S_HO} offen sc1
        buffer_load_dword v{TM+8}, v{TM+2}, {sr(R_WS,4)}, s{S_T0} offen sc1
        buffer_load_dword v{TM+9}, v{TM+3}, {sr(R_WS,4)}, s{S_T0} offen sc1
        """)
        s.poll(F_REL, TM, TM+1, "gw1", 8)
        stamp('flag1')
        for q in range(1, 4):
            a(f"s_add_u32 s{S_T1}, s{S_T3}, {q}")
            a(f"s_and_b32 s{S_T1}, s{S_T1}, 3")
            a(f"s_mul_i32 s{S_T1}, s{S_T1}, {3*9216}")
            a(f"v_add_u32 v{TM+1+q}, s{S_T1}, v1")
            for i in range(9):
                a(f"ds_write_b128 v{TM+1+q}, {vr(4 + q*36 + 4*i, 4)} offset:{(q-1)*9216 + i*1024}")
        a("s_waitcnt lgkmcnt(0)")
        s.signal(F_RED, TM, TM+1)
        a(f"""
        s_mul_i32 s{S_T1}, s{S_T3}, {3*9216}
        v_add_u32 v{TM+2}, s{S_T1}, v1
        s_lshl_b32 s{S_T2}, s{S_KH}, 4
        s_add_u32 s{S_T2}, s{S_T2}, s{S_QB}
        s_lshl_b32 s{S_T2}, s{S_T2}, 3
        s_add_u32 s{S_T2}, s{S_T2}, s{S_H}
        s_lshl_b32 s{S_T2}, s{S_T2}, 2
        s_xor_b32 s{S_WB0}, s{S_T2}, 512
        s_add_u32 s{S_T2}, s{S_T2}, s{S_T3}
        s_mul_i32 s{S_T2}, s{S_T2}, 9216
        s_add_u32 s{S_T2}, s{S_T2}, {BP}
        s_and_b32 s{S_T1}, s{S_HB0}, 3
        s_add_u32 s{S_WB0}, s{S_WB0}, s{S_T1}
        s_mul_i32 s{S_WB0}, s{S_WB0}, 9216
        s_add_u32 s{S_WB0}, s{S_WB0}, {BP}
        """)
        s.poll(F_RED, TM, TM+1, "gw2", 1)
        a(f"s_setprio {opts.get('redprio', 2)}")
        ids = {}
        def rd3(i):
            for sl in range(3):
                ids[i] = a.emit(f"ds_read_b128 {vr(40 + (i*3+sl)*4, 4)}, v{TM+2} offset:{sl*9216 + i*1024}")
        for i in range(4): rd3(i)
        for i in range(9):
            a.wait_lg(ids[i])
            if i + 4 < 9: rd3(i + 4)
            for sl in range(3):
                for j in range(4):
                    a(f"v_add_f32 v{4+4*i+j}, v{4+4*i+j}, v{40 + (i*3+sl)*4 + j}")
        stamp('red')
        s.signal(F_RD1, TM, TM+1)
        a(f"s_mov_b32 s{S_WO}, s{S_M0}")
        ldWo(8)
        a(f"""
        s_lshr_b32 s{S_T1}, s{S_T3}, 1
        s_cmp_eq_u32 s{S_T1}, s{S_KH}
        s_cbranch_scc1 {name}_mine
        """)
        snapf = a.snapshot()
        for i in range(9):
            if i % 4 == 0 and i: a(f"s_add_u32 s{S_T2}, s{S_T2}, 4096")
            a(f"buffer_store_dwordx4 {vr(4+4*i,4)}, v1, {sr(R_WS,4)}, s{S_T2} offen offset:{(i%4)*1024}")
        a(f"""
        s_lshl_b32 s{S_T0}, s2, 1
        s_and_b32 s{S_T1}, s{S_T3}, 1
        s_add_u32 s{S_T0}, s{S_T0}, s{S_T1}
        s_lshl_b32 s{S_T0}, s{S_T0}, 6
        s_add_u32 s{S_T0}, s{S_T0}, {PFL}
        v_mov_b32 v{TM}, 0
        v_mov_b32 v{TM+1}, s{s.S_TAG}
        """)
        for i in range(36): a(f"v_mov_b32 v{4+i}, 0")
        a(f"""
        s_waitcnt vmcnt(0)
        s_mov_b64 exec, 1
        buffer_store_dword v{TM+1}, v{TM}, {sr(R_WS,4)}, s{S_T0} offen
        s_mov_b64 exec, -1
        s_branch {name}_fin
        """)
        snapn = a.snapshot()
        a.restore(snapf)
        a.label(f"{name}_mine")
        a("s_waitcnt vmcnt(3)")
        a(f"v_sub_f32 v{TM+6}, 1.0, v{TM+6}")
        a(f"v_sub_f32 v{TM+7}, 1.0, v{TM+7}")
        for i in range(36):
            a(f"v_mul_f32 v{4+i}, v{4+i}, v{TM+6 if i < 32 else TM+7}")
        a.merge(snapn)
        a.label(f"{name}_fin")
        a("s_setprio 0")
        stamp('part')
        OB_ = lambda k: 76 + 48 if k == 8 else 76 + (k % 6)*8
        a(f"""
        s_lshl_b32 s{S_T2}, s{S_IT}, 2
        s_add_u32 s{S_T2}, s{S_T2}, s{S_T3}
        s_lshl_b32 s{S_T2}, s{S_T2}, 7
        s_add_u32 s{S_T2}, s{S_T2}, {OFL}
        v_and_b32 v{TM}, 31, v0
        v_mul_u32_u24 v{TM+4}, 1152, v{TM}
        v_lshrrev_b32 v{TM+3}, 5, v0
        v_lshl_add_u32 v{TM+4}, v{TM+3}, 5, v{TM+4}
        v_and_b32 v{TM+2}, 15, v0
        v_lshl_add_u32 v{TM+2}, v{TM+3}, 4, v{TM+2}
        v_mul_u32_u24 v{TM+5}, 1152, v{TM+2}
        v_bfe_u32 v{TM+2}, v0, 4, 1
        v_lshl_add_u32 v{TM+5}, v{TM+2}, 3, v{TM+5}
        v_lshlrev_b32 v{TM}, 2, v{TM}
        v_mul_u32_u24 v{TM+6}, {4*2304}, v{TM+3}
        v_add_u32 v{TM+6}, v{TM+6}, v{TM}
        s_mul_i32 s{S_T0}, s{S_T3}, 18432
        s_and_b32 s{S_T1}, s{S_T3}, 1
        s_mul_i32 s{S_T1}, s{S_T1}, 9216
        s_add_u32 s{S_HO}, s{S_T0}, s{S_T1}
        v_add_u32 v{TM+2}, s{S_HO}, v1
        s_sub_u32 s{S_HO}, s{S_T0}, s{S_T1}
        s_add_u32 s{S_HO}, s{S_HO}, 9216
        v_add_u32 v{TM+3}, s{S_HO}, v1
        s_xor_b32 s{S_T0}, s2, 1
        s_lshl_b32 s{S_T0}, s{S_T0}, 1
        s_lshr_b32 s{S_T1}, s{S_T3}, 1
        s_add_u32 s{S_T0}, s{S_T0}, s{S_T1}
        s_lshl_b32 s{S_T0}, s{S_T0}, 6
        s_add_u32 s{S_MSK}, s{S_T0}, {PFL}
        s_and_b32 s{S_KH}, s{S_T3}, 1
        s_lshl_b32 s{S_T0}, s{S_KH}, 12
        s_add_u32 s{S_HO}, s{S_WB0}, s{S_T0}
        s_add_u32 s{S_WB0}, s{S_WB0}, 8192
        """)
        s.poll(F_RD1, 3, TM+1, "gw4", 1)
        s.poll(F_ATT, 3, TM+1, "gw6", 4)
        stamp('own')
        s.gpoll("op", R_WS, TM, f"s{S_T2}", 1, 0xff, TM+1)
        a("s_setprio 2")
        stamp('oflag')
        oid = {}
        def ldO(k):
            a(f"buffer_load_dwordx4 {vr(OB_(k),4)}, v1, {sr(R_WS,4)}, s{S_OA} offen sc1")
            oid[k] = a.emit(f"buffer_load_dwordx4 {vr(OB_(k)+4,4)}, v1, {sr(R_WS,4)}, s{S_OB} offen sc1")
            if k < 4:
                a(f"buffer_load_dword v{OB_(8)+k}, v{TM+6}, {sr(R_WS,4)}, s{S_OA} offen offset:1024 sc1")
                oid[8] = a.emit(f"buffer_load_dword v{OB_(8)+4+k}, v{TM+6}, {sr(R_WS,4)}, s{S_OB} offen offset:1024 sc1")
            a(f"s_add_u32 s{S_OA}, s{S_OA}, 2304")
            a(f"s_add_u32 s{S_OB}, s{S_OB}, 2304")
        for k in range(6): ldO(k)
        pf_id = a.emit(f"buffer_load_dword v{TM+1}, v{TM}, {sr(R_WS,4)}, s{S_MSK} offen sc1")
        PB = 148
        for k in (0, 1, 2, 3, 8, 4, 5, 6, 7):
            a.wait_vm(oid[k])
            for q in range(2):
                o = vr(OB_(k)+4*q, 4)
                c = (lambda x: "0") if (k == 0 and q == 1) else (lambda x: x)
                a(f"v_mfma_f32_32x32x16_bf16 {vr(ACC32(q,0),16)}, {vr(WB(k),4)}, {o}, {c(vr(ACC32(q,0),16))}")
                a(f"v_mfma_f32_32x32x16_bf16 {vr(ACC32(q,1),16)}, {vr(WB(k)+4,4)}, {o}, {c(vr(ACC32(q,1),16))}")
                a(f"v_mfma_f32_16x16x32_bf16 {vr(ACC16(q),4)}, {vr(WB(k)+8,4)}, {o}, {c(vr(ACC16(q),4))}")
            if k < 2: ldO(6 + k)
            if k == 5:
                a.wait_vm(pf_id)
                a(f"""
                v_cmp_ne_u32 vcc, s{s.S_TAG}, v{TM+1}
                s_and_b32 vcc_lo, vcc_lo, 1
                s_cbranch_scc0 {name}_ppok
                """)
                m = a.skip_begin(); vm0 = dict(a.vmr)
                s.gpoll("pp", R_WS, TM, f"s{S_MSK}", 1, 1, TM+1)
                a.vmr = vm0
                a.skip_end(m)
                a.label(f"{name}_ppok")
                for i in range(4):
                    a(f"buffer_load_dwordx4 {vr(PB+4*i,4)}, v1, {sr(R_WS,4)}, s{S_HO} offen offset:{i*1024} sc1")
                a(f"buffer_load_dwordx4 {vr(PB+16,4)}, v1, {sr(R_WS,4)}, s{S_WB0} offen sc1")
        stamp('omfma')
        for q in range(2):
            for i in range(9):
                a(f"ds_write_b128 v{TM+2+q}, {vr(4+q*36+4*i,4)} offset:{i*1024}")
        a(f"""
        s_mul_i32 s{S_OB}, s{S_HB0}, {32*1152}
        s_mul_i32 s{S_T0}, s{S_H}, 144
        s_add_u32 s{S_OB}, s{S_OB}, s{S_T0}
        s_lshl_b32 s{S_T0}, s{S_KH}, 6
        s_add_u32 s{S_OA}, s{S_OB}, s{S_T0}
        s_lshr_b32 s{S_T1}, s{S_T3}, 1
        s_mul_i32 s{S_T0}, s{S_T1}, 9216
        v_add_u32 v{TM+6}, s{S_T0}, v1
        s_lshl_b32 s{S_T0}, s{S_KH}, 12
        v_add_u32 v{TM+7}, s{S_T0}, v{TM+6}
        v_sub_f32 v{TM+8}, 1.0, v{TM+8}
        v_sub_f32 v{TM+9}, 1.0, v{TM+9}
        s_waitcnt lgkmcnt(0)
        """)
        s.signal(F_DUMP, 3, TM+1)
        s.poll(F_DUMP, 3, TM+1, "gw5", 0)
        stamp('dump')
        R = 4
        for wv in range(4):
            for i in range(4):
                a(f"ds_read_b128 {vr(R + wv*20 + 4*i, 4)}, v{TM+7} offset:{wv*18432 + i*1024}")
            a(f"ds_read_b128 {vr(R + wv*20 + 16, 4)}, v{TM+6} offset:{wv*18432 + 8192}")
            if wv == 1: a("s_waitcnt lgkmcnt(4)")
        a("s_waitcnt lgkmcnt(10)")
        for i in range(20): a(f"v_add_f32 v{R+i}, v{R+i}, v{R+20+i}")
        a("s_waitcnt lgkmcnt(0)")
        for i in range(20): a(f"v_add_f32 v{R+40+i}, v{R+40+i}, v{R+60+i}")
        for i in range(20): a(f"v_add_f32 v{R+i}, v{R+i}, v{R+40+i}")
        a("s_waitcnt vmcnt(0)")
        for i in range(20): a(f"v_fmac_f32 v{R+i}, v{PB+i}, v{TM+8 if i < 16 else TM+9}")
        for j in range(10): a(f"v_cvt_pk_bf16_f32 v{88+j}, v{R+2*j}, v{R+2*j+1}")
        a(f"buffer_store_dwordx4 v[88:91], v{TM+4}, {sr(R_OUT,4)}, s{S_OA} offen ;plain")
        a(f"buffer_store_dwordx4 v[92:95], v{TM+4}, {sr(R_OUT,4)}, s{S_OA} offen offset:16 ;plain")
        a(f"s_cmp_lg_u32 s{S_KH}, 0")
        a(f"s_cbranch_scc1 {name}_fin2")
        a(f"buffer_store_dwordx2 v[96:97], v{TM+5}, {sr(R_OUT,4)}, s{S_OB} offen offset:128 ;plain")
        a.label(f"{name}_fin2")
        if stamp.on:
            a("s_waitcnt vmcnt(0)")
            stamp('end')
            stamp.out(9)
```

```python
import sys
from build import *
keep = ['start', 'bar0', 'S8', 'S11', 'S12', 'S13', 'M14', 'p1end']
V = eval(sys.argv[1])
for nm, o in V.items():
    txt, a = build(dict(aslist=True, keep1=keep, itstamp=False, **o), stamp=True)
    open(f'gen/{nm}.s', 'w').write(txt)
```

```python
import re

_REG = re.compile(r'\b([vsa])(\d+)\b|\b([vsa])\[(\d+):(\d+)\]')

def regs_of(op):
    out = []
    for m in _REG.finditer(op):
        if m.group(1):
            out.append((m.group(1), int(m.group(2))))
        else:
            for i in range(int(m.group(4)), int(m.group(5)) + 1):
                out.append((m.group(3), i))
    if re.search(r'\bvcc\b', op): out.append(('s', 'vcc'))
    if re.search(r'\bm0\b', op): out.append(('s', 'm0'))
    if re.search(r'\bexec\b', op): out.append(('s', 'exec'))
    return out

TRANS = ('v_exp_f32', 'v_rcp_f32', 'v_log_f32', 'v_rsq_f32', 'v_sqrt_f32', 'v_sin_f32', 'v_cos_f32')

def split_ops(s):
    ops, depth, cur = [], 0, ''
    for ch in s:
        if ch == '[': depth += 1
        if ch == ']': depth -= 1
        if ch == ',' and depth == 0:
            ops.append(cur.strip()); cur = ''
        else:
            cur += ch
    if cur.strip(): ops.append(cur.strip())
    return ops

class Ins:
    __slots__ = ('text', 'op', 'kind', 'wr', 'rd', 'srcc', 'passes', 'states', 'stdata', 'sdwa', 'ab')
    def __init__(self, text):
        self.text = text
        t = text.split(';')[0].strip()
        parts = t.split(None, 1)
        op = parts[0]
        self.op = op
        ops = split_ops(parts[1]) if len(parts) > 1 else []
        self.wr, self.rd, self.srcc, self.stdata, self.ab = set(), set(), set(), set(), set()
        self.passes = 0
        self.states = 1
        self.sdwa = ('dst_sel' in t) or ('op_sel' in t and not op.startswith('v_pk') )
        if op == 's_nop':
            self.kind = 'nop'; self.states = int(ops[0]) + 1
        elif op.startswith('v_mfma'):
            self.kind = 'mfma'
            self.passes = 16 if '_2b_' in op else (8 if '32x32' in op else 4)
            self.wr = set(regs_of(ops[0]))
            self.ab = set(regs_of(ops[1])) | set(regs_of(ops[2]))
            self.srcc = set(regs_of(ops[3].split()[0]))
            self.rd = self.ab | self.srcc
        elif op.startswith('v_'):
            self.kind = 'trans' if op.replace('_e32', '').replace('_e64', '') in TRANS else 'valu'
            if op.startswith('v_cmp'):
                self.wr = set(regs_of(ops[0]))
                if op.startswith('v_cmpx'): self.wr.add(('s', 'exec'))
                for o in ops[1:]: self.rd |= set(regs_of(o))
            elif op.startswith('v_permlane') and 'swap' in op:
                self.wr = set(regs_of(ops[0])) | set(regs_of(ops[1]))
                self.rd = set(self.wr)
            else:
                self.wr = set(regs_of(ops[0]))
                rest = ops[1:]
                if op.startswith(('v_add_co', 'v_addc_co', 'v_sub_co', 'v_subb_co', 'v_mad_u64', 'v_div_scale')):
                    self.wr |= set(regs_of(ops[1])); rest = ops[2:]
                for o in rest: self.rd |= set(regs_of(o))
                if op.startswith(('v_fmac', 'v_dot2c', 'v_mac')) or 'UNUSED_PRESERVE' in t:
                    self.rd |= set(regs_of(ops[0]))
        elif op.startswith('ds_'):
            self.kind = 'ds'
            if op.startswith(('ds_read', 'ds_bpermute', 'ds_permute', 'ds_swizzle')) or '_rtn' in op:
                self.wr = set(regs_of(ops[0]))
                for o in ops[1:]: self.rd |= set(regs_of(o))
            else:
                for o in ops: self.rd |= set(regs_of(o))
        elif op.startswith(('buffer_', 'global_', 'flat_')):
            self.kind = 'vmem'
            lds = bool(re.search(r'\blds\b', t)) or '_lds_' in op
            if 'load' in op and not lds:
                self.wr = set(regs_of(ops[0]))
                for o in ops[1:]: self.rd |= set(regs_of(o))
            else:
                for o in ops: self.rd |= set(regs_of(o))
                if lds: self.rd.add(('s', 'm0'))
                if 'store' in op and ('x4' in op or 'x3' in op):
                    d = ops[0] if op.startswith('buffer_') else ops[1]
                    self.stdata = set(regs_of(d))
                if 'atomic' in op and 'sc0' in t:
                    self.wr = set(regs_of(ops[0]))
        elif op.startswith('s_'):
            self.kind = 'salu'
            if op.startswith(('s_cmp', 's_cbranch', 's_branch', 's_waitcnt', 's_barrier', 's_endpgm', 's_setprio', 's_sleep', 's_bitcmp')):
                for o in ops: self.rd |= set(regs_of(o))
            else:
                if ops: self.wr = set(regs_of(ops[0]))
                for o in ops[1:]: self.rd |= set(regs_of(o))
                if 'saveexec' in op: self.wr.add(('s', 'exec'))
        else:
            raise ValueError('unknown op ' + text)

def need_states(p, c):
    n = 0
    pv = p.kind in ('valu', 'trans')
    cv = c.kind in ('valu', 'trans')
    vw = {r for r in p.wr if r[0] in 'va'}
    sw = {r for r in p.wr if r[0] == 's'}
    if pv:
        if c.kind == 'mfma' and vw & c.rd: n = max(n, 2)
        if c.kind == 'mfma' and ('s', 'exec') in p.wr: n = max(n, 4)
        if c.kind == 'vmem' and sw & c.rd: n = max(n, 5)
        if cv and sw & c.rd:
            n = max(n, 4 if c.op.startswith(('v_readlane', 'v_writelane')) else 2)
        if c.op.startswith(('v_readfirstlane', 'v_readlane')) and vw & c.rd: n = max(n, 1)
        if c.op.startswith('v_permlane') and vw & c.rd: n = max(n, 2)
        if cv and 'dpp' in c.text.lower() and vw & c.rd: n = max(n, 2)
        if cv and ('row_' in c.text or 'quad_perm' in c.text) and vw & c.rd: n = max(n, 2)
        if p.kind == 'trans' and c.kind == 'valu' and vw & c.rd: n = max(n, 1)
        if p.kind == 'trans' and c.kind in ('vmem', 'ds') and vw & c.rd: n = max(n, 1)
        if p.sdwa and cv and vw & (c.rd | c.wr): n = max(n, 1)
        if ('s', 'exec') in p.wr and c.op.startswith(('v_readlane', 'v_readfirstlane', 'v_writelane', 'v_permlane')): n = max(n, 4)
        if c.kind == 'salu' and sw & c.rd: n = max(n, 1)
    if p.kind == 'salu':
        if ('s', 'm0') in p.wr and ('s', 'm0') in c.rd and c.kind in ('vmem', 'ds'): n = max(n, 1)
        if ('s', 'exec') in p.wr and c.kind == 'mfma': n = max(n, 1)
    if p.kind == 'vmem' and p.stdata and (p.stdata & c.wr): n = max(n, 2)
    if p.kind == 'mfma':
        big = {4: 8, 8: 12, 16: 20}[p.passes]
        war = {4: 3, 8: 7, 16: 15}[p.passes]
        if c.kind == 'mfma':
            if p.wr & c.ab: n = max(n, big)
            if p.wr & c.srcc:
                if not (p.wr == c.srcc and p.passes == c.passes): n = max(n, big - 2)
            elif p.wr & c.wr: n = max(n, big)
        elif c.kind in ('valu', 'trans', 'vmem', 'ds'):
            if p.wr & (c.rd | c.wr): n = max(n, big)
        if cv and p.srcc & c.wr: n = max(n, war)
        if c.kind in ('vmem', 'ds') and p.srcc & c.wr: n = max(n, war)
    return n

class Asm:
    def __init__(self):
        self.lines = []
        self.hists = [[]]
        self.vmr = {'A': 0, 'B': 0}
        self.role = None
        self.lg = 0
        self.nops = 0
        self.count = 0
    def raw(self, s):
        self.lines.append(s)
    def comment(self, s):
        self.lines.append('  ; ' + s)
    def label(self, name):
        self.lines.append(name + ':')
    def fence(self):
        need = 0
        for h in self.hists:
            dist = 0
            for p, st in reversed(h):
                if dist >= 24: break
                if p.kind == 'mfma': w = {4: 8, 8: 12, 16: 20}[p.passes]
                elif p.kind in ('valu', 'trans'): w = 5 if any(r[0] == 's' for r in p.wr) else 2
                elif p.kind == 'vmem' and p.stdata: w = 2
                elif p.kind == 'salu' and ('s', 'm0') in p.wr: w = 1
                else: w = 0
                need = max(need, w - dist)
                dist += st
        if need > 0: self._nop(need)
        self.hists = [[]]
    def _push(self, i):
        ent = (i, i.states)
        for h in self.hists:
            h.append(ent)
            if len(h) > 200: del h[:100]
        if len(self.hists) > 1:
            uniq = []
            for h in self.hists:
                if not any(len(h) >= 28 and len(u) >= 28 and all(x is y for x, y in zip(h[-28:], u[-28:])) for u in uniq):
                    uniq.append(h)
            self.hists = uniq
    def _nop(self, n):
        while n > 0:
            k = min(n, 16)
            self.lines.append(f'  s_nop {k-1}')
            self._push(Ins(f's_nop {k-1}'))
            self.nops += 1
            n -= k
    def __call__(self, text):
        for t in text.strip().split('\n'):
            t = t.strip()
            if not t or t.startswith(';'):
                continue
            self.emit(t)
    def need_for(self, c):
        need = 0
        for h in self.hists:
            dist = 0
            for p, st in reversed(h):
                need = max(need, need_states(p, c) - dist)
                dist += st
                if dist >= 24: break
        return need
    def emit(self, text):
        if getattr(self, 'drop', None) and self.drop(text): return dict(self.vmr)
        c = Ins(text)
        need = self.need_for(c)
        if need > 0: self._nop(need)
        self.lines.append('  ' + text)
        ent = (c, c.states)
        for h in self.hists:
            h.append(ent)
            if len(h) > 200: del h[:100]
        if len(self.hists) > 1:
            uniq = []
            for h in self.hists:
                if not any(len(h) >= 28 and len(u) >= 28 and all(x is y for x, y in zip(h[-28:], u[-28:])) for u in uniq):
                    uniq.append(h)
            self.hists = uniq
        self.count += 1
        if c.kind == 'vmem':
            for r in ('A', 'B'):
                if self.role in (None, r): self.vmr[r] += 1
            return dict(self.vmr)
        if c.kind == 'ds':
            self.lg += 1
            return self.lg
        return None
    def snapshot(self):
        return [list(h) for h in self.hists]
    def restore(self, snap):
        self.hists = [list(h) for h in snap]
    def merge(self, snap):
        self.hists = self.hists + [list(h) for h in snap]
    def skip_begin(self):
        return self.snapshot()
    def skip_end(self, mark):
        self.merge(mark)
    def wait_vm(self, idx, extra=0):
        roles = ('A', 'B') if self.role is None else (self.role,)
        n = min(self.vmr[r] - idx[r] for r in roles) + extra
        self.emit(f's_waitcnt vmcnt({max(0,min(n, 63))})')
    def wait_lg(self, idx):
        n = self.lg - idx
        self.emit(f's_waitcnt lgkmcnt({max(0,min(n, 15))})')
    def text(self):
        return '\n'.join(self.lines) + '\n'

def vr(a, n=1):
    return f'v{a}' if n == 1 else f'v[{a}:{a+n-1}]'
def sr(a, n=1):
    return f's{a}' if n == 1 else f's[{a}:{a+n-1}]'
```

```python
import struct
from asmdsl import *
from layout import *

def f2u(x): return struct.unpack('<I', struct.pack('<f', x))[0]
OOB = 0x80000000

def load_kernargs(a):
    a("""
    s_load_dwordx16 s[4:19], s[0:1], 0
    s_load_dwordx4 s[20:23], s[0:1], 64
    s_load_dwordx2 s[24:25], s[0:1], 80
    """)
P_X, P_QKV, P_WO, P_WG, P_WU, P_WD, P_GW, P_OUT, P_DBG, P_WS = 4, 6, 8, 12, 14, 16, 18, 20, 22, 24

WSBASE = [0]
STFLAG = [""]
def make_srd(a, d, p, nbytes):
    if p == P_WS and WSBASE[0]:
        a(f"s_add_u32 s{d}, s{p}, {WSBASE[0]}")
        a(f"s_addc_u32 s{d+1}, s{p+1}, 0")
        a(f"s_and_b32 s{d+1}, s{d+1}, 0xffff")
    else:
        a(f"s_mov_b32 s{d}, s{p}")
        a(f"s_and_b32 s{d+1}, s{p+1}, 0xffff")
    a(f"s_mov_b32 s{d+2}, {nbytes}")
    a(f"s_mov_b32 s{d+3}, 0x00020000")

def kdesc(name, vgpr=256):
    return f"""
.amdhsa_kernel {name}
  .amdhsa_next_free_vgpr {vgpr}
  .amdhsa_next_free_sgpr 102
  .amdhsa_accum_offset {(vgpr+3)//4*4}
  .amdhsa_group_segment_fixed_size 0
  .amdhsa_kernarg_size 88
  .amdhsa_user_sgpr_count 2
  .amdhsa_user_sgpr_kernarg_segment_ptr 1
  .amdhsa_system_sgpr_workgroup_id_x 1
.end_amdhsa_kernel
"""

class Stamper:
    def __init__(self, a, on, vreg, s_w, r_ws, base):
        self.a, self.on, self.v, self.s_w, self.r_ws, self.base = a, on, vreg, s_w, r_ws, base
        self.labels = []
    def __call__(self, label, idx=None):
        if not self.on: return
        if idx == -1: return
        if idx is None and getattr(self, 'keep', None) is not None and label not in self.keep: return -1
        a = self.a
        if idx is None:
            i = len(self.labels); self.labels.append(label)
        else: i = idx
        if i == 0:
            a("s_memrealtime s[100:101]")
            a("s_waitcnt lgkmcnt(0)")
            a(f"v_writelane_b32 v{self.v}, s100, 62")
        a("s_memrealtime s[100:101]" if getattr(self, 'real', False) else "s_memtime s[100:101]")
        a("s_waitcnt lgkmcnt(0)")
        a(f"v_writelane_b32 v{self.v}, s100, {i}")
        return i
    def out(self, tmp):
        if not self.on: return
        a = self.a
        if getattr(self, 'dbg', None):
            a(f"v_readlane_b32 s100, v{self.v}, 0")
            a("s_not_b32 s100, s100")
            a(f"v_writelane_b32 v{self.v}, s100, 0")
            a(f"v_lshlrev_b32 v{tmp}, 2, v0")
            a(f"s_mov_b64 exec, {(1 << len(self.labels)) - 1}")
            a(f"buffer_atomic_umax v{self.v}, v{tmp}, {sr(self.dbg,4)}, 0 offen sc1")
            a("s_mov_b64 exec, -1")
            return
        a("s_memrealtime s[100:101]")
        a("s_waitcnt lgkmcnt(0)")
        a(f"v_writelane_b32 v{self.v}, s100, 63")
        a("s_memtime s[100:101]")
        a("s_waitcnt lgkmcnt(0)")
        a(f"v_writelane_b32 v{self.v}, s100, 61")
        a(f"s_lshl_b32 s100, s2, {getattr(self, 'wshift', 3)}")
        a(f"s_add_u32 s100, s100, s{self.s_w}")
        a(f"s_lshl_b32 s100, s100, 8")
        a(f"s_add_u32 s100, s100, {self.base}")
        a(f"s_add_u32 s{self.r_ws+2}, s{self.r_ws+2}, {4<<20}")
        a(f"v_lshlrev_b32 v{tmp}, 2, v0")
        a(f"buffer_store_dword v{self.v}, v{tmp}, {sr(self.r_ws,4)}, s100 offen")
```

```python
from common import *
from p2 import Phase2

def gen(name, opts=None):
    opts = opts or {}
    a = Asm()
    XF = lambda u, ks: 112 + (ks*2+u)*4
    ACC = lambda t, u: 48 + (t*2+u)*4
    WF = lambda i: 24 + (i % 6)*4
    V_TRB, V_DMA, V_DMAQ, V_HST, V_XD0, V_XD1, V_XR = 1, 2, 3, 4, 5, 6, 7
    V_TR = [20, 21]; V_TS = 22; V_STAMP = 23
    T = 8
    OUT = 12
    V_DMAG, V_GUB, V_GU = 96, 97, 98; V_XA = [99, 100]
    V_QS, V_QS3, V_SC1, V_SC2 = 5, 6, 7, 3
    V_TS2 = 7
    R_X, R_G, R_U, R_Q, R_WS, R_GW, R_PK, R_SEL = 28, 32, 36, 40, 44, 52, 72, 12
    S_W, S_XCD, S_B, S_MB, S_J, S_L = 56, 57, 58, 59, 60, 61
    S_TOK, S_T0, S_T1, S_T2, S_T3 = 62, 63, 64, 65, 66
    S_GOFF, S_HB, S_G2O, S_QO, S_GM = 67, 68, 69, 70, 71
    S_K, S_C2G = 76, 77
    S_XB, S_TT, S_GT, S_PKL, S_CR, S_H2, S_R, S_WB = 78, 79, 80, 81, 82, 83, 84, 85
    S_PK, S_PKA, S_PKB, S_PKC, S_PKD, S_PKNB, S_PKON = 86, 87, 88, 89, 90, 91, 92
    S_U = 93
    SLOT = [0, 49152, 98304]
    NST = 15
    def stage_info(s):
        if s < 9: return 2, 2*s, 2
        if s < 12: return 0, 6*(s-9), 6
        return 1, 6*(s-12), 6
    stamp = Stamper(a, opts.get('stamp', False), V_STAMP, S_W, R_WS, WS_USED)
    stamp.keep = opts.get('keep1')
    stamp.real = opts.get('real', False)
    p2 = Phase2(a, name, opts, stamp)
    if opts.get('dbg'): stamp.dbg = p2.R_DBG
    lab = [0]
    def newlab():
        lab[0] += 1; return f"{name}_l{lab[0]}"

    a.raw(f".globl {name}\n.p2align 8\n.type {name},@function\n{name}:")
    a("s_cmp_ge_u32 s2, 256")
    a(f"s_cbranch_scc1 {name}_end")
    stamp('start')
    load_kernargs(a)
    a(f"""
    v_lshrrev_b32 v1, 6, v0
    v_and_b32 v0, 63, v0
    s_and_b32 s{S_XCD}, s2, 7
    v_readfirstlane_b32 s{S_W}, v1
    s_lshr_b32 s{S_T0}, s2, 3
    s_and_b32 s{S_B}, s{S_T0}, 3
    s_lshr_b32 s{S_MB}, s{S_T0}, 2
    s_getpc_b64 s[26:27]
    """)
    a.label(f"{name}_pc")
    a(f"""
    s_lshl_b32 s{S_T0}, s{S_T0}, 3
    s_add_u32 s{S_T0}, s{S_T0}, s{S_W}
    s_lshl_b32 s{S_T0}, s{S_T0}, 8
    v_and_b32 v8, 1, v0
    v_lshlrev_b32 v8, 7, v8
    v_add_u32 v8, s{S_T0}, v8
    v_min_u32 v8, all_code_end-{name}_pc-4, v8
    s_mov_b32 m0, 163584
    s_lshl_b32 s{S_J}, s{S_XCD}, 2
    global_load_lds_dword v8, s[26:27]
    s_add_u32 s{S_J}, s{S_J}, s{S_B}
    s_lshl_b32 s{S_TT}, s{S_MB}, 3
    s_add_u32 s{S_TT}, s{S_TT}, s{S_W}
    s_mul_i32 s{S_TOK}, s{S_TT}, {32*1152}
    s_lshl_b32 s{S_WB}, s{S_W}, 10
    s_lshl_b32 s{S_XB}, s{S_W}, 12
    s_add_u32 s{S_XB}, s{S_XB}, 16384
    s_mul_i32 s{S_G2O}, s{S_XCD}, {9*128}
    s_add_u32 s{S_G2O}, s{S_G2O}, {8*128}
    s_lshl_b32 s{S_T0}, s{S_B}, 5
    s_add_u32 s{S_G2O}, s{S_G2O}, s{S_T0}
    s_mul_i32 s{S_QO}, s{S_J}, 108
    """)
    a(f"""
    v_lshrrev_b32 v8, 3, v0
    v_lshrrev_b32 v9, 4, v0
    v_xor_b32 v9, v9, v0
    v_and_b32 v9, 7, v9
    v_mul_u32_u24 v10, 1152, v8
    v_lshl_add_u32 v{V_XD0}, v9, 4, v10
    v_xor_b32 v9, 4, v9
    v_add_u32 v10, {8*1152}, v10
    v_lshl_add_u32 v{V_XD1}, v9, 4, v10
    """)
    a(f"""
    s_and_b32 s{S_T1}, s{S_W}, 1
    s_lshl_b32 s{S_T0}, s{S_T1}, 1
    v_bfe_u32 v13, v0, 4, 1
    v_or_b32 v13, s{S_T0}, v13
    v_bfe_u32 v14, v0, 1, 2
    v_xor_b32 v13, v13, v14
    v_lshlrev_b32 v13, 5, v13
    v_and_b32 v14, 1, v0
    v_lshl_add_u32 v13, v14, 4, v13
    s_lshl_b32 s{S_T0}, s{S_W}, 3
    v_add_u32 v14, s{S_T0}, v8
    v_mul_u32_u24 v15, 3456, v14
    v_add_u32 v15, v13, v15
    v_cmp_eq_u32 vcc, 112, v13
    v_mov_b32 v16, {OOB}
    v_cndmask_b32 v{V_DMAQ}, v15, v16, vcc
    v_lshrrev_b32 v8, 1, v0
    v_and_b32 v9, 0x13, v8
    v_bfe_u32 v10, v8, 2, 1
    v_lshl_or_b32 v9, v10, 3, v9
    v_bfe_u32 v10, v8, 3, 1
    v_lshl_or_b32 v9, v10, 2, v9
    s_lshl_b32 s{S_T0}, s{S_T1}, 5
    v_add_u32 v9, s{S_T0}, v9
    v_mul_u32_u24 v9, 9216, v9
    v_and_b32 v10, 1, v0
    v_lshl_add_u32 v{V_DMAG}, v10, 4, v9
    s_lshr_b32 s{S_T0}, s{S_W}, 2
    s_lshl_b32 s{S_GM}, s{S_T0}, 11
    s_lshl_b32 s{S_T1}, s{S_T1}, 10
    s_add_u32 s{S_GM}, s{S_GM}, s{S_T1}
    s_bitcmp1_b32 s{S_W}, 1
    s_cselect_b32 s{S_GM}, 4096, s{S_GM}
    """)
    ra, rb, rc = opts.get('rot', (1, 2, 1))
    ROT = {'w': (S_GOFF, 96), 'x': (S_TOK, 97), 'q': (S_QO, 98), 'g': (S_G2O, 3)}
    def rot(dst, kind, m, cmp=True):
        hi, lo = ROT[kind]
        if cmp: a(f"s_cmp_ge_u32 s{S_R}, {9 - m}")
        a(f"s_cselect_b32 s{dst}, s{lo}, s{hi}")
    def rot_base(kind, stride):
        hi, lo = ROT[kind]
        a(f"s_mul_i32 s{lo}, s{S_R}, {stride}")
        a(f"s_add_u32 s{hi}, s{hi}, s{lo}")
        a(f"s_sub_u32 s{lo}, s{hi}, {9*stride}")
    a(f"""
    s_mul_i32 s{S_R}, s{S_MB}, {ra}
    s_mul_i32 s{S_T0}, s{S_B}, {rb}
    s_add_u32 s{S_R}, s{S_R}, s{S_T0}
    s_mul_i32 s{S_T0}, s{S_XCD}, {rc}
    s_add_u32 s{S_R}, s{S_R}, s{S_T0}
    s_mul_i32 s{S_T0}, s{S_R}, 57
    s_lshr_b32 s{S_T0}, s{S_T0}, 9
    s_mul_i32 s{S_T0}, s{S_T0}, 9
    s_sub_u32 s{S_R}, s{S_R}, s{S_T0}
    """)
    rot_base('x', 128); rot_base('q', 64*3456); rot_base('g', 64*9216)
    a("s_waitcnt lgkmcnt(0)")
    make_srd(a, R_X, P_X, 2048*1152)
    make_srd(a, R_Q, P_QKV, 576*3456)
    make_srd(a, R_G, P_WG, 576*9216)
    make_srd(a, R_U, P_WU, 576*9216)
    a(f"""
    s_cmp_ge_u32 s{S_W}, 4
    s_cselect_b32 s{R_SEL}, s{R_U}, s{R_G}
    s_cselect_b32 s{R_SEL+1}, s{R_U+1}, s{R_G+1}
    s_bitcmp1_b32 s{S_W}, 1
    s_cselect_b32 s{R_SEL+2}, 0, s{R_G+2}
    s_mov_b32 s{R_SEL+3}, 0x00020000
    """)

    dma_id = {}
    def note(stage, idd):
        d = dma_id.setdefault(stage, {})
        for r in ('A', 'B'):
            if a.role in (None, r): d[r] = idd[r]
    def dma_pieces(stage):
        grp, k0, nk = stage_info(stage)
        slot = SLOT[stage % 3]
        m_ = k0 // 2
        P = []
        def piece(kind, m, add, m0reg, m0add, vreg, srd):
            def f(cmp=True):
                rot(S_T0, kind, m, cmp)
                a(f"s_add_u32 m0, s{m0reg}, {slot + m0add}")
                a(f"s_add_u32 s{S_T0}, s{S_T0}, {add}")
                note(stage, a.emit(f"buffer_load_dwordx4 v{vreg}, {sr(srd,4)}, s{S_T0} offen lds"))
            P.append(f)
        if grp == 2:
            piece('g', m_, m_*64*9216, S_GM, 0, V_DMAG, R_SEL)
            piece('q', m_, m_*64*3456, S_WB, 8192, V_DMAQ, R_Q)
            for i in range(4):
                piece('x', m_, m_*128 + (i >> 1)*16*1152, S_XB, i*1024, V_XD1 if i & 1 else V_XD0, R_X)
        else:
            for i in range(3):
                for gu in range(2):
                    piece('w', m_ + i, (m_ + i)*64*9216 + grp*128, S_WB, gu*24576 + i*8192, V_DMA, R_U if gu else R_G)
        return P
    def dma(stage):
        if stage >= NST: return
        for f in dma_pieces(stage): f()

    class only:
        def __init__(self, role): self.role = role
        def __enter__(self):
            self.l = newlab()
            a(f"s_cmp_ge_u32 s{S_W}, 4")
            a(f"s_cbranch_scc{'1' if self.role=='A' else '0'} {self.l}")
            self.m = a.skip_begin(); a.role = self.role
        def __exit__(self, *e):
            a.skip_end(self.m); a.role = None
            a.label(self.l)

    dma(0)
    d1 = dma_pieces(1)
    a(f"s_add_u32 s10, s{P_WS}, {EPO}")
    a(f"s_addc_u32 s11, s{P_WS+1}, 0")
    a(f"s_load_dword s{p2.S_TAG}, s[10:11], 0")
    a(f"""
    v_mul_u32_u24 v15, 9216, v14
    v_add_u32 v{V_DMA}, v13, v15
    v_lshrrev_b32 v12, 4, v0
    v_bfe_u32 v13, v0, 2, 2
    v_lshl_add_u32 v14, v12, 3, v13
    v_lshlrev_b32 v14, 7, v14
    v_bfe_u32 v15, v0, 3, 2
    v_lshl_add_u32 v14, v15, 5, v14
    v_and_b32 v15, 3, v0
    v_lshl_add_u32 v{V_TRB}, v15, 3, v14
    v_lshrrev_b32 v9, 5, v0
    v_lshl_add_u32 v9, v9, 4, v13
    v_bfe_u32 v10, v0, 4, 1
    v_lshl_add_u32 v9, v10, 2, v9
    v_lshlrev_b32 v9, 5, v9
    v_lshl_add_u32 v{V_GUB}, v15, 3, v9
    """)
    d1.pop(0)()
    a(f"""
    v_lshrrev_b32 v14, 5, v0
    v_lshlrev_b32 v14, 12, v14
    v_lshl_add_u32 v14, v10, 9, v14
    v_and_b32 v15, 15, v0
    v_lshl_add_u32 v{V_HST}, v15, 4, v14
    v_bfe_u32 v14, v0, 1, 3
    v_xor_b32 v14, v14, v12
    v_lshlrev_b32 v14, 4, v14
    v_lshl_add_u32 v14, v15, 7, v14
    v_add_u32 v{V_XR}, s{S_XB}, v14
    """)
    d1.pop(0)()
    make_srd(a, R_WS, P_WS, WS_USED)
    make_srd(a, R_GW, P_GW, 1152)
    p2.early()
    d1.pop(0)()
    a(f"""
    s_mul_i32 s{S_L}, s{S_XCD}, 9
    s_lshl_b32 s{S_T1}, s{S_B}, 1
    s_add_u32 s{S_L}, s{S_L}, s{S_T1}
    s_lshl_b32 s{S_GOFF}, s{S_L}, 7
    s_lshr_b32 s{S_HB}, s{S_TT}, 2
    s_mul_i32 s{S_HB}, s{S_HB}, {288*4096}
    s_and_b32 s{S_T1}, s{S_TT}, 3
    s_lshl_b32 s{S_T1}, s{S_T1}, 10
    s_add_u32 s{S_HB}, s{S_HB}, s{S_T1}
    s_mov_b32 s{S_K}, {f2u(GELU_K)}
    s_mov_b32 s{S_C2G}, {f2u(GELU_C2)}
    s_lshl_b32 s{S_T2}, s{S_MB}, 8
    s_lshl_b32 s{S_T1}, s{S_J}, 3
    s_add_u32 s{S_T2}, s{S_T2}, s{S_T1}
    s_add_u32 s{S_GT}, s{S_T2}, s{S_W}
    """)
    rot_base('w', 64*9216)
    d1.pop(0)()
    a(f"s_mul_i32 s{S_T1}, s{S_J}, 3")
    for i in range(3):
        a(f"s_cmp_lt_u32 s{S_T1}, {32 - i}")
        a(f"s_cselect_b32 s{S_U+i}, {f2u(QSCALE)}, 1.0")
    a(f"""
    s_lshl_b32 s{S_CR}, s{S_J}, 6
    s_add_u32 s{S_CR}, s{S_CR}, s{S_TT}
    s_lshl_b32 s{S_CR}, s{S_CR}, 12
    s_add_u32 s{S_CR}, s{S_CR}, {QN}
    s_mul_i32 s{S_H2}, s{S_XCD}, 36
    s_add_u32 s{S_H2}, s{S_H2}, 32
    s_add_u32 s{S_H2}, s{S_H2}, s{S_B}
    s_lshl_b32 s{S_H2}, s{S_H2}, 12
    s_add_u32 s{S_H2}, s{S_H2}, s{S_HB}
    s_lshl_b32 s{S_T3}, s{S_L}, 14
    s_add_u32 s{S_HB}, s{S_HB}, s{S_T3}
    """)
    d1.pop(0)()

    g_id = {}
    GLATE = opts.get('glate', True)
    GX, GW_, GX2, GW2 = (12, 16, 3, 5) if GLATE else (104, 108, 102, 103)
    def g_load():
        a(f"""
        v_lshlrev_b32 v8, 4, v0
        v_lshlrev_b32 v9, 2, v0
        v_cmp_gt_u32 vcc, 32, v0
        v_mov_b32 v10, {OOB}
        v_cndmask_b32 v9, v10, v9, vcc
        s_mul_i32 s{S_T1}, s{S_GT}, 1152
        buffer_load_dwordx4 {vr(GX,4)}, v8, {sr(R_X,4)}, s{S_T1} offen
        buffer_load_dword v{GX2}, v9, {sr(R_X,4)}, s{S_T1} offen offset:1024
        buffer_load_dwordx4 {vr(GW_,4)}, v8, {sr(R_GW,4)}, 0 offen
        """)
        g_id[a.role] = a.emit(f"buffer_load_dword v{GW2}, v9, {sr(R_GW,4)}, 0 offen offset:1024")
    def g_compute():
        a.wait_vm(g_id[a.role])
        a("v_mov_b32 v8, 0")
        a(f"v_dot2_f32_bf16 v8, v{GX2}, v{GW2}, v8")
        for i in range(4):
            a(f"v_dot2_f32_bf16 v8, v{GX+i}, v{GW_+i}, v8")
        a("s_nop 3")
        a(f"""
        v_add_f32_dpp v8, v8, v8 quad_perm:[1,0,3,2] row_mask:0xf bank_mask:0xf
        v_add_f32_dpp v8, v8, v8 quad_perm:[2,3,0,1] row_mask:0xf bank_mask:0xf
        v_add_f32_dpp v8, v8, v8 row_half_mirror row_mask:0xf bank_mask:0xf
        v_add_f32_dpp v8, v8, v8 row_mirror row_mask:0xf bank_mask:0xf
        v_readlane_b32 s{S_T0}, v8, 16
        v_readlane_b32 s{S_T2}, v8, 32
        v_readlane_b32 s{S_T1}, v8, 48
        v_add_f32 v8, s{S_T0}, v8
        v_add_f32 v8, s{S_T2}, v8
        v_add_f32 v8, s{S_T1}, v8
        v_mul_f32 v8, {f2u(-1.4426950408889634)}, v8
        v_exp_f32 v8, v8
        v_cmp_eq_u32 vcc, 0, v0
        v_add_f32 v8, 1.0, v8
        v_rcp_f32 v8, v8
        v_mov_b32 v9, {OOB}
        v_cndmask_b32 v9, v9, v0, vcc
        s_lshl_b32 s{S_T0}, s{S_GT}, 2
        s_add_u32 s{S_T0}, s{S_T0}, {GB}
        buffer_store_dword v8, v9, {sr(R_WS,4)}, s{S_T0} offen
        """)

    pub = {}
    def do_barrier(stage):
        w = dict(dma_id[stage])
        if stage in pub: w = {r: max(w[r], pub[stage][r]) for r in w}
        a.wait_vm(w)
        a("s_waitcnt lgkmcnt(0)")
        a("s_barrier")

    PORD = (3, 2, 0, 1)
    def tiles_of(grp):
        if grp < 2:
            out = []
            for p in PORD:
                out.append((2*p, ('x', p), 0, 4096, 512, False))
                out.append((2*p+1, ('x', p), 24576, 4096, 512, False))
            return out
        return [(0, ('r', V_GU), 0, 1024, 256, False), (1, ('r', V_GU), 2048, 1024, 256, False)] + \
               [(2+t, ('x', t), 8192, 4096, 512, True) for t in range(4)]

    def pre_stage(stage):
        grp, k0, nk = stage_info(stage)
        slot = SLOT[stage % 3]
        if stage == 14:
            a(f"v_add_u32 v{V_TS2}, {slot}, v{V_TRB}")
            return
        a(f"v_add_u32 v{V_TS}, {slot}, v{V_TRB}")
        if grp == 2:
            a(f"v_add_u32 v{V_XA[0]}, {slot}, v{V_XR}")
            a(f"v_xor_b32 v{V_XA[1]}, 64, v{V_XA[0]}")
            a(f"v_add_u32 v{V_GU}, {slot}, v{V_GUB}")

    class Stage:
        def __init__(self, s, fbase):
            self.s = s; self.fbase = fbase
            self.grp, self.k0, self.nk = stage_info(s)
            self.tl = tiles_of(self.grp)
            nt = len(self.tl)
            if s == 13: segs = [(0, 13), (1, 13)]
            elif s == 14:
                segs = [(0, 14), (1, 14)]
                for ti in range(2, nt): segs += [(ti, 13), (ti, 14)]
            else: segs = [(ti, s) for ti in range(nt)]
            self.frags, self.mf = [], []
            ch = 2 if self.nk == 2 else 3
            for ti, ds in segs:
                for h in range(self.nk // ch):
                    base = len(self.frags)
                    for f in range(ch): self.frags.append((ti, h*ch + f, ds))
                    for u in ((0, 1) if h == 0 else (1, 0)):
                        for f in range(ch): self.mf.append((base + f, u))
            self.last_use = {}
            for i, (f, u) in enumerate(self.mf): self.last_use[f] = i
            rq = [('w', f, sec) for f in range(len(self.frags)) for sec in range(2)]
            if self.grp == 2:
                xr = [('x', u, kk) for u in range(2) for kk in range(2)]
                rq = rq[:2] + xr[:1] + rq[2:4] + xr[1:] + rq[4:]
            self.rq = rq
            self.reset()
        def reset(self):
            self.rp = 0; self.rid = {}; self.xid = {}; self.cur = None; self.naddr = 0; self.waited = 0
        def state(self): return (self.rp, dict(self.rid), dict(self.xid), self.cur, self.naddr, self.waited)
        def set_state(self, st): self.rp, self.rid, self.xid, self.cur, self.naddr, self.waited = st[0], dict(st[1]), dict(st[2]), st[3], st[4], st[5]
        def slot_free(self, f, done, prev, prev_done):
            g = f - 6
            if g >= 0: return self.last_use[g] < done
            if prev is None: return True
            return prev.last_use[len(prev.frags) + g] < prev_done
        def can_read(self, done, prev=None, prev_done=10**9):
            if self.rp >= len(self.rq): return False
            r = self.rq[self.rp]
            return r[0] == 'x' or self.slot_free(r[1], done, prev, prev_done)
        def issue_read(self):
            r = self.rq[self.rp]; self.rp += 1
            if r[0] == 'x':
                _, u, kk = r
                self.xid[(u, kk)] = a.emit(f"ds_read_b128 {vr(XF(u,self.k0+kk),4)}, v{V_XA[kk]} offset:{u*2048}")
                return
            _, f, sec = r
            ti, ks, ds = self.frags[f]
            t, ak, base, kst, sst, sw = self.tl[ti]
            if ak[0] == 'x':
                if self.cur != (ak, ds):
                    self.naddr += 1
                    a(f"v_xor_b32 v{V_TR[self.naddr & 1]}, {ak[1] << 5}, v{V_TS2 if ds == 14 else V_TS}")
                    self.cur = (ak, ds)
                reg = V_TR[self.naddr & 1]
            else:
                reg = ak[1]
            self.rid[f] = a.emit(f"ds_read_b64_tr_b16 {vr(WF(self.fbase+f)+2*sec,2)}, v{reg} offset:{base + ks*kst + sec*sst}")
        def mfma(self, i):
            f, u = self.mf[i]
            ti, ks, ds = self.frags[f]
            t, ak, base, kst, sst, sw = self.tl[ti]
            need = self.rid[f]
            if self.grp == 2: need = max(need, self.xid[(u, ks)])
            if need > self.waited:
                a.wait_lg(need); self.waited = need
            kk = stage_info(ds)[1] + ks
            acc = vr(ACC(t, u), 4)
            c = "0" if kk == 0 else acc
            wv, xv = vr(WF(self.fbase+f), 4), vr(XF(u, kk), 4)
            A_, B_ = (xv, wv) if sw else (wv, xv)
            if not opts.get('nomfma'): a(f"v_mfma_f32_16x16x32_bf16 {acc}, {A_}, {B_}, {c}")
        def tile_done_at(self, t):
            return max(i for i, (f, u) in enumerate(self.mf) if self.tl[self.frags[f][0]][0] == t)

    def gelu4(g, up, out2):
        t = T
        L = []
        for j in range(4): L.append(f"v_mul_f32 v{up+j}, v{g+j}, v{up+j}")
        for j in range(4): L.append(f"v_fma_f32 v{t+j}, v{g+j}, v{g+j}, s{S_K}")
        for j in range(4): L.append(f"v_mul_f32 v{g+j}, s{S_C2G}, v{g+j}")
        for j in range(4): L.append(f"v_mul_f32 v{t+j}, v{t+j}, v{g+j}")
        for j in range(4): L.append(f"v_exp_f32 v{t+j}, v{t+j}")
        for j in range(4): L.append(f"v_add_f32 v{t+j}, 1.0, v{t+j}")
        for j in range(4): L.append(f"v_rcp_f32 v{t+j}, v{t+j}")
        for j in range(4): L.append(f"v_mul_f32 v{t+j}, v{t+j}, v{up+j}")
        for j in range(2): L.append(f"v_cvt_pk_bf16_f32 v{out2+j}, v{t+2*j}, v{t+2*j+1}")
        return L
    def epair(grp, p, store, outbase=OUT):
        L = []
        for u in range(2):
            L += gelu4(ACC(2*p, u), ACC(2*p+1, u), outbase + 4*u + 2*(p & 1))
            if store:
                if u == 0:
                    L.append(f"s_add_u32 s{S_T3}, s{S_HB}, {HF + (grp*4 + (p & 2))*4096}")
                L.append(f"buffer_store_dwordx4 {vr(outbase+4*u,4)}, v{V_HST}, {sr(R_WS,4)}, s{S_T3} offen offset:{u*256}")
        return L
    def emit_all(L):
        for x in L: a(x)

    def qkv_addr_setup():
        a(f"""
        v_and_b32 v8, 15, v0
        v_lshrrev_b32 v9, 4, v0
        v_lshlrev_b32 v9, 10, v9
        v_lshl_add_u32 v{V_QS}, v8, 4, v9
        v_cmp_gt_u32 vcc, 8, v8
        v_mov_b32 v10, {OOB}
        v_cndmask_b32 v{V_QS3}, v10, v{V_QS}, vcc
        v_mov_b32 v9, s{S_U}
        v_mov_b32 v10, s{S_U+1}
        v_mov_b32 v11, s{S_U+2}
        v_cmp_le_u32 vcc, 2, v8
        v_cndmask_b32 v{V_SC1}, v9, v10, vcc
        v_cmp_le_u32 vcc, 4, v8
        v_cndmask_b32 v{V_SC2}, v10, v11, vcc
        """)
    def epi_qkv(ts):
        L = []
        sc = [f"s{S_U}", f"v{V_SC1}", f"v{V_SC2}", f"s{S_U+2}"]
        for t in ts:
            o = OUT + 4*(t & 1)
            for u in range(2):
                r = ACC(2+t, u)
                for i in range(4): L.append(f"v_mul_f32 v{r+i}, {sc[t]}, v{r+i}")
                L.append(f"v_cvt_pk_bf16_f32 v{o+2*u}, v{r}, v{r+1}")
                L.append(f"v_cvt_pk_bf16_f32 v{o+2*u+1}, v{r+2}, v{r+3}")
            L.append(f"buffer_store_dwordx4 {vr(o,4)}, v{V_QS3 if t == 3 else V_QS}, {sr(R_WS,4)}, s{S_CR} offen offset:{t*256}")
        return L
    def epi_h16():
        L = []
        for u in range(2):
            L += gelu4(ACC(0, u), ACC(1, u), OUT + 2*u)
        L.append(f"v_lshlrev_b32 v{T}, 4, v0")
        L.append(f"v_permlane16_swap_b32 v{OUT}, v{OUT+2}")
        L.append(f"v_permlane16_swap_b32 v{OUT+1}, v{OUT+3}")
        L.append(f"buffer_store_dwordx4 {vr(OUT,4)}, v{T}, {sr(R_WS,4)}, s{S_H2} offen")
        return L

    def pack_setup(rnd):
        l1 = newlab()
        a(f"""
        s_and_b32 s{S_T3}, s{S_W}, 3
        s_add_u32 s{S_T3}, s{S_T3}, {3*rnd}
        s_mul_i32 s{S_T1}, s{S_XCD}, 36
        s_lshl_b32 s{S_T0}, s{S_MB}, 2
        s_add_u32 s{S_T0}, s{S_T0}, s{S_T3}
        s_add_u32 s{S_T0}, s{S_T0}, s{S_T1}
        s_movk_i32 s{S_PKON}, 0x77
        """)
        if rnd: a(f"""
        s_add_u32 s{S_T1}, s{S_T1}, s{S_MB}
        s_add_u32 s{S_T1}, s{S_T1}, 32
        s_lshl_b32 s{S_T2}, s{S_XCD}, 2
        s_add_u32 s{S_T2}, s{S_T2}, s{S_MB}
        s_add_u32 s{S_T2}, s{S_T2}, 284
        s_cmp_lt_u32 s{S_MB}, 4
        s_cselect_b32 s{S_T1}, s{S_T1}, s{S_T2}
        s_cmp_eq_u32 s{S_T3}, 4
        s_cselect_b32 s{S_T0}, s{S_T1}, s{S_T0}
        s_add_u32 s{S_T1}, s{S_XCD}, 320
        s_cmp_eq_u32 s{S_T3}, 5
        s_cselect_b32 s{S_T0}, s{S_T1}, s{S_T0}
        s_lshl_b32 s{S_T1}, s{S_MB}, 3
        s_add_u32 s{S_T1}, s{S_T1}, s{S_XCD}
        s_cmp_lt_u32 s{S_T1}, 4
        s_cselect_b32 s{S_PKON}, s{S_PKON}, 0x30
        """)
        a(f"""
        s_bitcmp1_b32 s{S_PKON}, s{S_W}
        s_cselect_b32 s{S_PKON}, 1, 0
        s_mov_b32 s{S_T1}, s{S_B}
        s_mov_b32 s{R_PK+3}, 0x00020000
        s_lshr_b32 s{S_T2}, s{S_T0}, 2
        s_mul_i32 s{S_T3}, s{S_T2}, 57
        s_lshr_b32 s{S_T3}, s{S_T3}, 9
        s_mul_i32 s{S_T3}, s{S_T3}, 9
        s_sub_u32 s{S_T3}, s{S_T2}, s{S_T3}
        s_lshr_b32 s{S_PK}, s{S_T0}, 1
        s_lshl_b32 s{S_PK}, s{S_PK}, 5
        s_and_b32 s{S_T2}, s{S_T0}, 1
        s_lshl_b32 s{S_T2}, s{S_T2}, 3
        s_add_u32 s{S_PK}, s{S_PK}, s{S_T2}
        s_lshl_b32 s{S_T2}, s{S_T0}, 4
        s_cmp_eq_u32 s{S_T3}, 8
        s_cselect_b32 s{S_PK}, s{S_T2}, s{S_PK}
        s_cselect_b32 s{S_PKA}, 4, 16
        s_cselect_b32 s{S_PKB}, 8, 4
        s_mov_b32 s{S_PKC}, 2
        s_mul_i32 s{S_PKD}, s{S_T1}, 576
        s_add_u32 s{S_PKD}, s{S_PKD}, s{S_T0}
        s_mul_i32 s{S_PKD}, s{S_PKD}, 2304
        s_add_u32 s{S_PKD}, s{S_PKD}, {WDP}
        s_mov_b32 s{S_PKNB}, {288*2304}
        s_mov_b32 s{R_PK}, s{P_WD}
        s_and_b32 s{R_PK+1}, s{P_WD+1}, 0xffff
        s_mov_b32 s{R_PK+2}, {4608*1152}
        s_cmp_lt_u32 s{S_T0}, 288
        s_cbranch_scc1 {l1}
        """)
        m = a.skip_begin()
        a(f"""
        s_sub_u32 s{S_T0}, s{S_T0}, 288
        s_mul_i32 s{S_PKD}, s{S_T1}, 72
        s_add_u32 s{S_PKD}, s{S_PKD}, s{S_T0}
        s_mul_i32 s{S_PKD}, s{S_PKD}, 2304
        s_add_u32 s{S_PKD}, s{S_PKD}, {WOP}
        s_mov_b32 s{S_PKNB}, {36*2304}
        s_mov_b32 s{R_PK}, s{P_WO}
        s_and_b32 s{R_PK+1}, s{P_WO+1}, 0xffff
        s_mov_b32 s{R_PK+2}, {576*1152}
        s_mul_i32 s{S_PK}, s{S_T0}, 18
        s_sub_u32 s{S_T2}, s{S_T0}, 32
        s_mul_i32 s{S_T2}, s{S_T2}, 144
        s_add_u32 s{S_T2}, s{S_T2}, 16
        s_cmp_lt_u32 s{S_T0}, 32
        s_cselect_b32 s{S_PK}, s{S_PK}, s{S_T2}
        s_cselect_b32 s{S_PKA}, 4, 36
        s_cselect_b32 s{S_PKB}, 8, 72
        s_cselect_b32 s{S_PKC}, 2, 18
        """)
        a.skip_end(m)
        a.label(l1)
        a(f"""
        s_mul_i32 s{S_PK}, s{S_PK}, 1152
        s_mul_i32 s{S_T1}, s{S_T1}, 288
        s_add_u32 s{S_PK}, s{S_PK}, s{S_T1}
        s_mul_i32 s{S_PKA}, s{S_PKA}, 1152
        s_mul_i32 s{S_PKB}, s{S_PKB}, 1152
        s_mul_i32 s{S_PKC}, s{S_PKC}, 1152
        s_cmp_eq_u32 s{S_PKON}, 0
        s_cselect_b32 s{R_PK+2}, 0, s{R_PK+2}
        s_cselect_b32 s{S_PKD}, 0, s{S_PKD}
        """)
    pk_id = {}
    def pack_dma():
        a(f"""
        s_and_b32 s{S_PKL}, s{S_W}, 3
        s_mul_i32 s{S_PKL}, s{S_PKL}, 4608
        s_add_u32 s{S_PKL}, s{S_PKL}, 147456
        v_lshlrev_b32 v8, 4, v0
        v_add_u32 v9, {1152-288}, v8
        v_cmp_gt_u32 vcc, 18, v0
        v_cndmask_b32 v8, v9, v8, vcc
        s_mov_b32 exec_hi, 15
        """)
        for i in range(8):
            a(f"s_mov_b32 s{S_T0}, s{S_PK}")
            if i & 1: a(f"s_add_u32 s{S_T0}, s{S_T0}, s{S_PKC}")
            if i & 2: a(f"s_add_u32 s{S_T0}, s{S_T0}, s{S_PKB}")
            if i & 4: a(f"s_add_u32 s{S_T0}, s{S_T0}, s{S_PKA}")
            a(f"s_add_u32 m0, s{S_PKL}, {i*576}")
            pk_id[a.role] = a.emit(f"buffer_load_dwordx4 v8, {sr(R_PK,4)}, s{S_T0} offen lds")
        a("s_mov_b32 exec_hi, -1")
    def pack_finish(P):
        lg0 = a.lg
        a(f"""
        v_lshrrev_b32 v8, 5, v0
        v_bfe_u32 v9, v0, 2, 2
        v_lshl_add_u32 v8, v8, 2, v9
        v_mul_u32_u24 v8, 288, v8
        v_add_u32 v8, s{S_PKL}, v8
        v_and_b32 v9, 1, v0
        v_lshl_add_u32 v10, v9, 5, v8
        v_bfe_u32 v9, v0, 1, 1
        v_lshl_add_u32 v10, v9, 3, v10
        v_and_b32 v9, 3, v0
        v_lshl_add_u32 v8, v9, 3, v8
        v_bfe_u32 v9, v0, 4, 1
        v_lshl_add_u32 v10, v9, 4, v10
        v_mul_u32_u24 v11, 144, v9
        v_add_u32 v11, v11, v8
        """)
        a.wait_vm(pk_id[a.role])
        offs = [0, 64, 144, 144+64]
        def rd(i, r):
            v, o = (10, offs[i]) if i < 4 else (11, 128)
            a(f"ds_read_b64_tr_b16 {vr(r,2)}, v{v} offset:{o}")
            a(f"ds_read_b64_tr_b16 {vr(r+2,2)}, v{v} offset:{o+2304}")
        def st(i, r):
            if i < 4: a(f"buffer_store_dwordx4 {vr(r,4)}, v8, {sr(R_WS,4)}, s{S_PKD if i < 2 else S_T0} offen offset:{(i&1)*1024}")
            else: a(f"buffer_store_dwordx4 {vr(r,4)}, v9, {sr(R_WS,4)}, s{S_PKD} offen offset:2048")
        n = len(P)
        for i in range(n): rd(i, P[i])
        a(f"""
        v_mul_lo_u32 v9, v9, s{S_PKNB}
        v_lshrrev_b32 v8, 5, v0
        v_lshl_add_u32 v9, v8, 7, v9
        v_and_b32 v8, 15, v0
        v_lshl_add_u32 v9, v8, 4, v9
        v_cmp_gt_u32 vcc, 8, v8
        v_mov_b32 v8, {OOB}
        v_cndmask_b32 v9, v8, v9, vcc
        v_lshlrev_b32 v8, 4, v0
        s_cmp_eq_u32 s{S_PKON}, 0
        s_cselect_b32 s{S_T0}, {OOB}, 0
        v_or_b32 v8, s{S_T0}, v8
        v_or_b32 v9, s{S_T0}, v9
        s_add_u32 s{S_T0}, s{S_PKD}, s{S_PKNB}
        """)
        done = 0
        while done < 5:
            a("s_waitcnt lgkmcnt(0)")
            m = min(n, 5 - done)
            for i in range(m): st(done + i, P[i])
            done += m
            for i in range(min(n, 5 - done)): rd(done + i, P[i])
        a.lg = lg0

    def one_wave(wv, fn):
        l = newlab()
        a(f"s_cmp_lg_u32 s{S_W}, {wv}")
        a(f"s_cbranch_scc1 {l}")
        m = a.skip_begin(); vm0 = dict(a.vmr)
        fn()
        a.vmr = vm0
        a.skip_end(m)
        a.label(l)
    RING = [24, 28, 32, 36, 40]
    def side(s, role):
        if role == 'B' and s == 10: one_wave(7, lambda: p2.mail(S_J, S_MB, S_B))
        if role == 'B' and s == 13: one_wave(7, lambda: p2.mail2(S_J, S_MB, S_B))
        dma(s + (2 if role == 'A' else 3))
        if s == opts.get('tg1', 99) and role == 'A':
            a(f"""
            v_mul_u32_u24 v8, 9216, v0
            s_lshl_b32 s{S_T1}, s{S_MB}, 6
            s_lshl_b32 s{S_T2}, s{S_MB}, 3
            s_add_u32 s{S_T2}, s{S_T2}, 512
            s_bitcmp1_b32 s{S_W}, 1
            s_cselect_b32 s{S_T1}, s{S_T2}, s{S_T1}
            s_cselect_b64 exec, 0xff, -1
            s_mul_i32 s{S_T1}, s{S_T1}, 9216
            s_lshl_b32 s{S_T2}, s{S_L}, 7
            s_add_u32 s{S_T1}, s{S_T1}, s{S_T2}
            s_bitcmp1_b32 s{S_W}, 0
            s_cselect_b32 s{R_SEL}, s{R_U}, s{R_G}
            s_cselect_b32 s{R_SEL+1}, s{R_U+1}, s{R_G+1}
            s_mov_b32 s{R_SEL+2}, s{R_G+2}
            s_mov_b32 m0, {163584 - 128}
            buffer_load_dword v8, {sr(R_SEL,4)}, s{S_T1} offen offset:128 lds
            s_mov_b64 exec, -1
            """)
        if opts.get('pkB', True):
            if role == 'B':
                if s == 7: pack_setup(0)
                if s == 8: pack_dma()
                if s == 9:
                    pack_finish(RING); pack_setup(1); pack_dma()
                if s == 10: pack_finish(RING)
        else:
            if s == 6: pack_setup(role == 'B')
            if s == 8 and role == 'A': pack_dma()
            if s == 9:
                if role == 'A': pack_finish([12, 16])
                else: pack_dma()
            if s == 10 and role == 'B': pack_finish(RING)
        if s == 8: qkv_addr_setup()
        if s == (9 if GLATE else 2): g_load()
        if s == (10 if GLATE else 5): g_compute()
        if s == opts.get('su' + role, 12): p2.setup(role)
        if s == 11: emit_all(epair(0, 0, False))
        if s == 12:
            p2.patterns(role)
            if role == 'A':
                p2.reset_flags(); a.lg -= 1

    stages = []
    fb = 0
    for s in range(NST):
        st = Stage(s, fb); stages.append(st); fb += len(st.frags)
    PRE = 9
    def prime(st):
        n = PRE + (4 if st.grp == 2 else 0)
        while st.rp < n: st.issue_read()
    pre_stage(0)
    d1.pop(0)()
    assert not d1
    stamp('issued')
    a.wait_vm(dma_id[0])
    a("s_waitcnt lgkmcnt(0)")
    a(f"s_add_u32 s{p2.S_TAG}, s{p2.S_TAG}, 1")
    a("s_barrier")
    stamp('bar0')
    with only('B'): dma(2)
    prime(stages[0])
    TB = opts.get('tailb', 4)
    for s in range(NST):
        st = stages[s]
        n = len(st.mf)
        last = s == NST - 1
        blocks = {}
        fill = []
        rate = opts.get('rate', 1.6)
        if s == 9:
            if opts.get('blk9', True):
                blocks[st.tile_done_at(7) + 1] = epi_qkv((2, 3))
                blocks[st.tile_done_at(5) + 1] = epi_h16()
                blocks[st.tile_done_at(1) + 1] = epi_qkv((0, 1))
            else:
                fill = [(0, x) for x in epi_qkv((2, 3)) + epi_h16() + epi_qkv((0, 1))]
                rate = 2.2
                dead = {st.tile_done_at(7) + 1: 98, st.tile_done_at(5) + 1: 26, st.tile_done_at(1) + 1: 0}
        if s == 11:
            fill = [(st.tile_done_at(7), x) for x in epair(0, 3, False)] + [(st.tile_done_at(5), x) for x in epair(0, 2, True)]
            rate = opts.get('rate11', 2.5)
        if s == 12:
            fill = [(0, x) for x in epair(0, 1, True)]
            rate = 1.2
            dead = {st.tile_done_at(1) + 1: 0}
        if s == 14:
            fill = [(st.tile_done_at(7), x) for x in epair(1, 3, False)] + \
                   [(st.tile_done_at(5), x) for x in epair(1, 2, True)] + \
                   [(st.tile_done_at(1), x) for x in epair(1, 0, False)]
        if s not in (9, 12) or blocks: dead = {}
        credit = 0.0
        i = 0
        while i < n:
            if not last and st.rp == len(st.rq): break
            st.mfma(i); i += 1
            if st.can_read(i): st.issue_read()
            if i in blocks: emit_all(blocks.pop(i))
            if s == 13 and i == 2:
                with only('A'): p2.kv_probe(112, 113)
            if s == 14:
                tries = opts.get('ekv', (8, 100))
                if i in tries:
                    with only('A'): p2.kv_try(f"kt{i}", 112, 113)
                if i + 30 in tries:
                    with only('A'): p2.kv_probe(112, 113)
                if i == n - 12:
                    with only('B'): p2.g_probe(112, 113)
            if fill and fill[0][0] + 3 < i:
                credit += rate
                while credit >= 1 and fill and fill[0][0] + 3 < i:
                    a(fill.pop(0)[1]); credit -= 1
            if i in dead:
                while len(fill) > dead[i]: a(fill.pop(0)[1])
        assert not blocks
        emit_all([x for _, x in fill])
        if s == 9: pub[11] = dict(a.vmr)
        if s == 12: pub[14] = dict(a.vmr)
        if last:
            stamp(f'M{s}')
            emit_all(epair(1, 1, True))
            break
        nx = stages[s + 1]
        lA, lJ = newlab(), newlab()
        a(f"s_cmp_lt_u32 s{S_W}, 4")
        a(f"s_cbranch_scc1 {lA}")
        snap = a.snapshot(); lg0 = a.lg; st0 = st.state()
        a.role = 'B'
        for k in range(i, n):
            if k == n - TB:
                do_barrier(s + 1); st.waited = a.lg
            st.mfma(k)
        im = stamp(f'M{s}')
        side(s, 'B')
        pre_stage(s + 1)
        isx = stamp(f'S{s}')
        prime(nx)
        a(f"s_branch {lJ}")
        snapB = a.snapshot(); lgB = a.lg; nxB = nx.state()
        a.label(lA)
        a.restore(snap); a.lg = lg0; st.set_state(st0); nx.reset()
        if s == 12: assert all(not (st.mf[k][1] == 0 and st.frags[st.mf[k][0]][1] < 3) for k in range(i, n))
        if s == 11: assert st.tile_done_at(1) < i - 4
        a.role = 'A'
        stamp('', im)
        side(s, 'A')
        pre_stage(s + 1)
        do_barrier(s + 1)
        stamp('', isx)
        st.waited = a.lg
        npre = PRE + (4 if nx.grp == 2 else 0)
        while nx.rp < npre and nx.rp < 5 and nx.can_read(0, st, i): nx.issue_read()
        for k in range(i, n):
            st.mfma(k)
            for _ in range(2):
                if nx.rp < npre and nx.can_read(0, st, k + 1): nx.issue_read()
        prime(nx)
        assert a.lg == lgB and nx.state() == nxB, (a.lg, lgB)
        a.role = None
        a.merge(snapB)
        a.label(lJ)
    stamp('p1end')
    stamp.keep = None
    a(f"s_cmp_ge_u32 s{S_W}, 4")
    a(f"s_cbranch_scc1 {name}_gemm")
    snap = a.snapshot()
    n0 = len(stamp.labels)
    a.role = 'A'
    p2.attention()
    la = list(stamp.labels); del stamp.labels[n0:]
    a.restore(snap)
    a.role = 'B'
    a.label(f"{name}_gemm")
    p2.gemm()
    lb = list(stamp.labels)
    a.stamps = la[:n0] + ["/".join(x) for x in zip(la[n0:] + ["-"]*12, lb[n0:])]
    a.label(f"{name}_end")
    a("s_endpgm")
    return a, kdesc(name), dict(grid=256, block=512, lds=163840)
```

```python
from common import *

KVB = 64*KVREC
QST = KVB
FLAG = KVB + 12288
F_REL, F_RED, F_C2, F_C3, F_RD1, F_DUMP, F_ATT, F_C1, F_WDONE, F_ST, F_SEEN2 = range(11)

MBOX = 0x01ffff00

class Phase2:
    def __init__(self, a, name, opts, stamp):
        self.a, self.name, self.opts, self.stamp = a, name, opts, stamp
        self.probe_id = {}
    R_WS, R_OUT, R_DBG = 44, 40, 48
    S_W, S_XCD, S_T0, S_T1, S_T2 = 56, 57, 63, 64, 65
    S_LOC, S_H, S_QB, S_T3, S_KVO, S_IT, S_HO, S_WO, S_M0, S_KH, S_SP, S_OA, S_OB, S_MSK, S_QT = range(4, 19)
    S_P = 86
    S_HB0, S_WB0 = 88, 89
    NFIRST = 5

    def signal(self, fl, t0, t1):
        self.a(f"""
        v_mov_b32 v{t0}, {FLAG + 4*fl}
        v_mov_b32 v{t1}, 1
        s_mov_b64 exec, 1
        ds_add_u32 v{t0}, v{t1}
        s_mov_b64 exec, -1
        """)
    def poll(self, fl, t0, t1, tag, sleep, n=4):
        a, name = self.a, self.name
        a(f"v_mov_b32 v{t0}, {FLAG + 4*fl}")
        a.label(f"{name}_{tag}")
        a(f"""
        ds_read_b32 v{t1}, v{t0}
        s_waitcnt lgkmcnt(0)
        v_readfirstlane_b32 s{self.S_T0}, v{t1}
        s_cmp_ge_u32 s{self.S_T0}, {n}
        s_cbranch_scc1 {name}_{tag}d
        s_sleep {sleep}
        s_branch {name}_{tag}
        """)
        a.label(f"{name}_{tag}d")
    def gpoll(self, tag, srd, voff, soff, val, mask, t1, imm=0, sleep=None):
        a, name = self.a, self.name
        a(f"s_mov_b32 s{self.S_SP}, 0")
        a.label(f"{name}_{tag}")
        a(f"""
        buffer_load_dword v{t1}, v{voff}, {sr(srd,4)}, {soff} offen offset:{imm} sc1
        s_add_u32 s{self.S_SP}, s{self.S_SP}, 1
        s_waitcnt vmcnt(0)
        v_cmp_ne_u32 vcc, s{self.S_TAG}, v{t1}
        s_and_b32 vcc_lo, vcc_lo, {mask}
        s_cbranch_scc0 {name}_{tag}d
        s_cmp_ge_u32 s{self.S_SP}, 0x8000
        s_cbranch_scc1 {name}_{tag}d
        s_sleep {sleep or self.opts.get('gsleep', 8)}
        s_branch {name}_{tag}
        """)
        a.label(f"{name}_{tag}d")
    def arrive(self, which, t0, t1):
        self.a(f"""
        v_mov_b32 v{t0}, {(0, 128, 64)[which]}
        v_mov_b32 v{t1}, 1
        s_mov_b64 exec, 1
        buffer_atomic_add v{t1}, v{t0}, {sr(self.R_DBG,4)}, 0 offen sc0 sc1
        s_mov_b64 exec, -1
        """)
    def broadcast_if_last(self, which, t0, t1, skip, wait=True):
        a = self.a
        if wait: a("s_waitcnt vmcnt(0)")
        a(f"""
        v_readfirstlane_b32 s{self.S_T0}, v{t1}
        s_and_b32 s{self.S_T0}, s{self.S_T0}, 255
        s_cmp_lg_u32 s{self.S_T0}, 255
        s_cbranch_scc1 {skip}
        """)
        m = a.snapshot()
        a(f"""
        v_lshlrev_b32 v{t0}, 9, v0
        v_mov_b32 v{t1}, s{self.S_TAG}
        """)
        for i in range(4):
            a(f"s_mov_b32 s{self.S_T0}, {GOF + 4*which + i*32768}")
            a(f"buffer_store_dword v{t1}, v{t0}, {sr(self.R_WS,4)}, s{self.S_T0} offen")
        a(f"s_mov_b32 s{self.S_T0}, {EPO}")
        a("s_mov_b64 exec, 1")
        a(f"buffer_store_dword v{t1}, v{t0}, {sr(self.R_WS,4)}, s{self.S_T0} offen")
        a("s_mov_b64 exec, -1")
        a.merge(m)
    def early(self):
        a, s = self.a, self
        make_srd(a, s.R_DBG, P_DBG, 256)
        a(f"s_lshl_b32 s{s.S_GOA}, s2, 9")
        a(f"s_add_u32 s{s.S_GOA}, s{s.S_GOA}, {GOF}")
    def mail(self, S_J, S_MB, S_B):
        a, s = self.a, self
        a(f"""
        v_lshrrev_b32 v8, 3, v0
        s_mul_i32 s{s.S_T0}, s{S_J}, 3
        v_add_u32 v8, s{s.S_T0}, v8
        v_and_b32 v9, 7, v0
        v_and_b32 v10, 3, v8
        v_lshl_add_u32 v10, v9, 2, v10
        v_bfe_u32 v11, v8, 2, 3
        v_lshl_add_u32 v10, v10, 3, v11
        v_lshlrev_b32 v10, 9, v10
        v_lshrrev_b32 v8, 5, v8
        v_lshlrev_b32 v11, 5, v8
        s_lshl_b32 s{s.S_T0}, s{S_MB}, 2
        v_add_u32 v11, s{s.S_T0}, v11
        v_cmp_eq_u32 vcc, 0, v8
        v_mov_b32 v8, 96
        v_cndmask_b32 v11, v11, v8, vcc
        v_add_u32 v10, v10, v11
        v_cmp_ne_u32 {sr(s.S_P,2)}, s{S_MB}, v9
        s_and_b64 vcc, vcc, {sr(s.S_P,2)}
        s_or_b32 vcc_lo, vcc_lo, 0xff000000
        s_mov_b32 vcc_hi, -1
        v_mov_b32 v8, {OOB}
        v_cndmask_b32 v10, v10, v8, vcc
        v_mov_b32 v11, s{s.S_TAG}
        s_mov_b32 s{s.S_T0}, {GOF}
        buffer_store_dword v11, v10, {sr(s.R_WS,4)}, s{s.S_T0} offen
        """)
    def mail2(self, S_J, S_MB, S_B):
        a, s = self.a, self
        a(f"""
        v_lshrrev_b32 v8, 1, v0
        v_and_b32 v9, 1, v0
        s_lshl_b32 s{s.S_T0}, s{S_B}, 1
        v_add_u32 v9, s{s.S_T0}, v9
        v_bfe_u32 v10, v0, 3, 1
        s_lshl_b32 s{s.S_T0}, s{S_MB}, 1
        v_add_u32 v10, s{s.S_T0}, v10
        v_and_b32 v11, 7, v0
        v_cmp_gt_u32 vcc, 32, v0
        v_cndmask_b32 v8, v10, v8, vcc
        v_cndmask_b32 v9, v11, v9, vcc
        s_add_u32 s{s.S_T0}, s{S_B}, 8
        v_mov_b32 v10, s{s.S_T0}
        v_mov_b32 v11, s{S_MB}
        v_cndmask_b32 v10, v10, v11, vcc
        v_and_b32 v11, 3, v8
        v_lshl_add_u32 v9, v11, 3, v9
        v_lshrrev_b32 v8, 2, v8
        v_lshlrev_b32 v8, 1, v8
        v_lshl_add_u32 v8, v9, 3, v8
        v_lshlrev_b32 v8, 9, v8
        v_lshl_add_u32 v8, v10, 2, v8
        s_lshr_b32 s{s.S_T0}, s{s.S_XCD}, 2
        s_lshl_b32 s{s.S_T0}, s{s.S_T0}, 9
        s_and_b32 s{s.S_T1}, s{s.S_XCD}, 3
        s_lshl_b32 s{s.S_T1}, s{s.S_T1}, 6
        s_add_u32 s{s.S_T0}, s{s.S_T0}, s{s.S_T1}
        s_add_u32 s{s.S_T0}, s{s.S_T0}, {GOF + 128}
        v_mov_b32 v11, s{s.S_TAG}
        s_mov_b32 exec_hi, 0xffff
        buffer_store_dword v11, v8, {sr(s.R_WS,4)}, s{s.S_T0} offen
        s_mov_b32 exec_hi, -1
        """)
    def g_probe(self, t0, t1):
        a, s = self.a, self
        a(f"v_and_b32 v{t0}, 15, v0")
        a(f"s_lshl_b32 s{s.S_T0}, s{s.S_T3}, 6")
        a(f"v_lshl_add_u32 v{t0}, v{t0}, 2, s{s.S_T0}")
        s.probe_id[a.role] = a.emit(f"buffer_load_dword v{t1}, v{t0}, {sr(s.R_WS,4)}, s{s.S_GOA} offen offset:128 sc1")
    V_P = 120
    def unit_base(self, dst, add):
        s = self
        self.a(f"""
        s_add_u32 s{s.S_T0}, s{s.S_H}, {add}
        s_mul_i32 s{s.S_T1}, s{s.S_T0}, 171
        s_lshr_b32 s{s.S_T1}, s{s.S_T1}, 9
        s_mul_i32 s{s.S_T2}, s{s.S_T1}, 3
        s_sub_u32 s{s.S_T0}, s{s.S_T0}, s{s.S_T2}
        s_mul_i32 s{s.S_T0}, s{s.S_T0}, 288
        s_lshl_b32 s{s.S_T1}, s{s.S_T1}, 18
        s_add_u32 s{dst}, s{s.S_T0}, s{s.S_T1}
        s_add_u32 s{dst}, s{dst}, {QN}
        """)
    def setup(self, role):
        a, s = self.a, self
        make_srd(a, s.R_OUT, P_OUT, 2048*1152)
        a(f"""
        s_lshr_b32 s{s.S_LOC}, s2, 3
        s_and_b32 s{s.S_T0}, s{s.S_LOC}, 3
        s_lshl_b32 s{s.S_H}, s{s.S_XCD}, 2
        s_add_u32 s{s.S_H}, s{s.S_H}, s{s.S_T0}
        s_lshr_b32 s{s.S_QB}, s{s.S_LOC}, 2
        s_and_b32 s{s.S_T3}, s{s.S_W}, 3
        s_mul_i32 s{s.S_M0}, s{s.S_T3}, {KVREC}
        s_lshl_b32 s{s.S_T2}, s{s.S_QB}, 3
        s_lshl_b32 s{s.S_T1}, s{s.S_T3}, 1
        s_add_u32 s{s.S_QT}, s{s.S_T2}, s{s.S_T1}
        s_mul_i32 s{s.S_OA}, s{s.S_T3}, 3072
        s_add_u32 s{s.S_OA}, s{s.S_OA}, {QST}
        s_mov_b32 s{s.S_GO}, 0
        """)
        s.unit_base(s.S_KVO, 32)
        s.unit_base(s.S_IT, 64)
        a(f"s_sub_u32 s{s.S_IT}, s{s.S_IT}, s{s.S_KVO}")
        if role == 'A':
            s.unit_base(s.S_OB, 0)
            a(f"s_lshl_b32 s{s.S_T0}, s{s.S_QT}, 12")
            a(f"s_add_u32 s{s.S_OB}, s{s.S_OB}, s{s.S_T0}")
            a(f"""
            s_lshl_b32 s{s.S_T0}, s{s.S_QT}, 4
            s_add_u32 s{s.S_T0}, s{s.S_T0}, s{s.S_H}
            s_mul_i32 s{s.S_MSK}, s{s.S_T0}, 2304
            s_add_u32 s{s.S_MSK}, s{s.S_MSK}, {OF}
            v_mov_b32 v12, -1
            v_mov_b32 v13, -1
            v_mov_b32 v14, -1
            v_mov_b32 v15, -1
            v_lshlrev_b32 v8, 4, v0
            buffer_store_dwordx4 v[12:15], v8, {sr(s.R_WS,4)}, s{s.S_MSK} offen
            buffer_store_dwordx4 v[12:15], v8, {sr(s.R_WS,4)}, s{s.S_MSK} offen offset:1024
            s_mov_b64 exec, 0xffff
            buffer_store_dwordx4 v[12:15], v8, {sr(s.R_WS,4)}, s{s.S_MSK} offen offset:2048
            s_mov_b64 exec, -1
            """)
    def patterns(self, role):
        a, s = self.a, self
        for part in range(3):
            a(f"""
            v_add_u32 v8, {48*part}, v0
            v_mul_u32_u24 v9, 57, v8
            v_lshrrev_b32 v9, 10, v9
            v_mul_u32_u24 v10, 18, v9
            v_sub_u32 v8, v8, v10
            v_lshlrev_b32 v8, 4, v8
            v_lshrrev_b32 v10, 1, v9
            v_lshl_add_u32 v10, v10, 10, v8
            v_and_b32 v11, 1, v9
            v_mul_lo_u32 v11, v11, s{s.S_IT}
            v_add_u32 v{s.V_P+part}, v10, v11
            """)
            if role == 'A': a(f"v_lshl_add_u32 v{s.V_P+8+part}, v9, 10, v8")
    def consts(self, t0, first, n):
        self.a(f"""
        v_mul_u32_u24 v{t0}, {KVREC}, v0
        v_add_u32 v{t0}, {first*KVREC + 2304}, v{t0}
        v_mov_b32 v{t0+1}, 0x3f803f80
        v_mov_b32 v{t0+2}, 0x3f803f80
        v_mov_b32 v{t0+3}, 0
        v_mov_b32 v{t0+4}, 0
        s_mov_b64 exec, {(1 << n) - 1 if n <= 32 else -1}
        """)
        if n > 32: self.a(f"s_mov_b32 exec_hi, {(1 << (n - 32)) - 1}")
        self.a(f"""
        ds_write2_b64 v{t0}, {vr(t0+1,2)}, {vr(t0+1,2)} offset0:0 offset1:1
        ds_write2_b64 v{t0}, {vr(t0+3,2)}, {vr(t0+3,2)} offset0:2 offset1:3
        s_mov_b64 exec, -1
        """)
    def kv_tile(self, vp, base, m0base, t):
        a, s = self.a, self
        a(f"s_add_u32 s{s.S_T1}, s{base}, {t*4096}")
        for part in range(3):
            a(f"s_add_u32 m0, s{m0base}, {t*KVREC + part*768}")
            idd = a.emit(f"buffer_load_dwordx4 v{vp+part}, {sr(s.R_WS,4)}, s{s.S_T1} offen sc1 lds")
        return idd
    def reset_flags(self):
        self.a(f"""
        v_lshlrev_b32 v8, 2, v0
        v_and_b32 v8, 63, v8
        v_mov_b32 v9, 0
        ds_write_b32 v8, v9 offset:{FLAG - 131072}
        """.replace(f"ds_write_b32 v8, v9 offset:{FLAG - 131072}", f"v_add_u32 v8, {FLAG}, v8\nds_write_b32 v8, v9"))
    S_GO = 19
    S_GOA = 99
    S_TAG = 0
    def kv_probe(self, t0, t1):
        a, s = self.a, self
        a(f"v_and_b32 v{t0}, 31, v0")
        a(f"v_lshlrev_b32 v{t0}, 2, v{t0}")
        s.probe_id[a.role] = a.emit(f"buffer_load_dword v{t1}, v{t0}, {sr(s.R_WS,4)}, s{s.S_GOA} offen sc1")
    def kv_issue(self, t0):
        a, s = self.a, self
        a(f"""
        s_mov_b32 s{s.S_GO}, 1
        s_mov_b32 exec_hi, 0xffff
        """)
        for part in range(3):
            a(f"s_add_u32 m0, s{s.S_OA}, {part*768}")
            a(f"buffer_load_dwordx4 v{s.V_P+8+part}, {sr(s.R_WS,4)}, s{s.S_OB} offen sc1 lds")
        a(f"s_lshl_b32 s{s.S_T0}, s{s.S_T3}, 12")
        a(f"s_add_u32 s{s.S_T0}, s{s.S_T0}, s{s.S_KVO}")
        for i in range(s.NFIRST): s.kv_tile(s.V_P, s.S_T0, s.S_M0, 4*i)
        a("s_mov_b32 exec_hi, -1")
    def kv_try(self, tag, t0, t1):
        a, s, name = self.a, self, self.name
        a(f"s_cmp_lg_u32 s{s.S_GO}, 0")
        a(f"s_cbranch_scc1 {name}_{tag}")
        m = a.skip_begin()
        a.wait_vm(s.probe_id['A'])
        a(f"v_cmp_ne_u32 vcc, s{s.S_TAG}, v{t1}")
        a(f"s_and_b32 vcc_lo, vcc_lo, {MBOX}")
        a(f"s_cbranch_scc1 {name}_{tag}")
        m2 = a.skip_begin(); vm0 = dict(a.vmr)
        s.kv_issue(t0)
        a.vmr = vm0
        s.first_id = dict(a.vmr)
        a.skip_end(m); a.skip_end(m2)
        a.label(f"{name}_{tag}")

    def gather(self, R, va16, va32):
        a = self.a
        def rd(wv, dst):
            for i in range(4):
                a(f"ds_read_b128 {vr(dst + 4*i, 4)}, v{va32} offset:{wv*18432 + i*1024}")
            a(f"ds_read_b128 {vr(dst + 16, 4)}, v{va16} offset:{wv*18432 + 8192}")
        rd(0, R); rd(1, R+20); rd(2, R+40)
        a("s_waitcnt lgkmcnt(5)")
        for i in range(20): a(f"v_add_f32 v{R+i}, v{R+i}, v{R+20+i}")
        rd(3, R+20)
        a("s_waitcnt lgkmcnt(5)")
        for i in range(20): a(f"v_add_f32 v{R+i}, v{R+i}, v{R+40+i}")
        a("s_waitcnt lgkmcnt(0)")
        for i in range(20): a(f"v_add_f32 v{R+i}, v{R+i}, v{R+20+i}")

    def attention(self):
        a, s, name, opts, stamp = self.a, self, self.name, self.opts, self.stamp
        R_WS, S_W, S_H, S_QB, S_T0, S_T1, S_T2, S_T3, S_IT, S_KVO = s.R_WS, s.S_W, s.S_H, s.S_QB, s.S_T0, s.S_T1, s.S_T2, s.S_T3, s.S_IT, s.S_KVO
        SP = sr(s.S_P, 2)
        SA, SB, PA, PB, OA, OB = 160, 32, 48, 56, 64, 80
        QA0, QB0, Q1 = 96, 104, 100
        K0 = [112, 116]; KX = 124; V0 = [128, 176]
        TT = 208
        A_K, A_X, A_V0, A_V1 = 2, 3, 4, 14
        GA, GBr = 5, 6
        V_ST, V_STX = 7, 8
        a("s_setprio 1")
        s.signal(F_WDONE, 9, 10)
        s.consts(17, 0, 20)
        a(f"""
        v_lshlrev_b32 v1, 4, v0
        v_lshrrev_b32 v9, 5, v0
        v_bfe_u32 v10, v0, 4, 1
        v_and_b32 v11, 1, v0
        v_lshl_add_u32 v10, v10, 1, v11
        v_bfe_u32 v11, v0, 2, 2
        v_bfe_u32 v12, v0, 1, 1
        v_lshlrev_b32 v12, 3, v12
        v_lshl_add_u32 v13, v11, 4, v12
        v_lshl_add_u32 v15, v9, 7, v13
        v_mul_u32_u24 v16, 288, v10
        v_add_u32 v17, s{s.S_OA}, v16
        v_add_u32 v21, v17, v15
        v_and_b32 v18, 0x1f, v13
        v_add_u32 v22, v17, v18
        v_mul_u32_u24 v18, {QREC}, v9
        v_add_u32 v22, v22, v18
        """)
        a(f"s_cmp_lg_u32 s{s.S_GO}, 0")
        a(f"s_cbranch_scc1 {name}_kvgo")
        m = a.skip_begin(); vm0 = dict(a.vmr)
        s.gpoll("c1a", s.R_WS, 112, f"s{s.S_GOA}", 1, MBOX, 20, sleep=4)
        s.kv_issue(19)
        a("s_waitcnt vmcnt(0)")
        a.vmr = vm0
        a.skip_end(m)
        a.label(f"{name}_kvgo")
        for i in range(3): a(f"v_mov_b32 v{196+i}, v{s.V_P+i}")
        a.wait_vm(s.first_id)
        for (q0, o) in ((QA0, 0), (QB0, QREC)):
            a(f"ds_read_b64_tr_b16 {vr(q0,2)}, v21 offset:{o}")
            a(f"ds_read_b64_tr_b16 {vr(q0+2,2)}, v21 offset:{o+64}")
        a(f"ds_read_b64_tr_b16 {vr(Q1,2)}, v22 offset:256")
        s.signal(F_C1, 17, 18)
        a(f"""
        v_lshlrev_b32 v16, 1, v16
        v_add_u32 v{A_K}, v16, v15
        v_add_u32 v17, v16, v13
        v_add_u32 v17, 256, v17
        v_lshl_add_u32 v18, v11, 4, v12
        v_add_u32 v18, {2304-32}, v18
        v_cmp_gt_u32 vcc, 2, v11
        v_cndmask_b32 v{A_X}, v18, v17, vcc
        """)
        s.poll(F_C1, 17, 18, "ac1", 0)
        stamp('kv1')
        def kreads(p, o):
            return [f"ds_read_b64_tr_b16 {vr(K0[p],2)}, v{A_K} offset:{o}",
                    f"ds_read_b64_tr_b16 {vr(K0[p]+2,2)}, v{A_K} offset:{o+64}"]
        xread = lambda o: f"ds_read_b64_tr_b16 {vr(KX,2)}, v{A_X} offset:{o}"
        for x in [xread(0)] + kreads(0, 0): a(x)
        a(f"""
        v_and_b32 v11, 31, v0
        v_and_b32 v12, 0x13, v11
        v_bfe_u32 v13, v11, 2, 1
        v_lshl_or_b32 v12, v13, 3, v12
        v_bfe_u32 v13, v11, 3, 1
        v_lshl_or_b32 v12, v13, 2, v12
        v_mul_u32_u24 v13, 576, v9
        v_lshl_add_u32 v12, v12, 4, v13
        v_add_u32 v12, 288, v12
        v_add_u32 v13, 1152, v12
        v_mov_b32 v17, 2320
        v_mov_b32 v18, 2304
        v_and_b32 v19, 27, v11
        v_cmp_eq_u32 vcc, 18, v19
        v_cndmask_b32 v17, v17, v18, vcc
        v_cmp_gt_u32 vcc, 18, v11
        v_cndmask_b32 v{A_V0}, v17, v12, vcc
        v_cndmask_b32 v{A_V1}, v17, v13, vcc
        v_cmp_gt_u32 vcc, 32, v0
        v_mov_b32 v{Q1+1}, 0
        s_waitcnt lgkmcnt(0)
        """)
        r2 = f"v_mfma_f32_32x32x4_2b_bf16 {vr(TT,32)}, {vr(KX,2)}, {vr(Q1,2)}, 0"
        qa = lambda kb: f"v_mfma_f32_32x32x16_bf16 {vr(SA,16)}, {vr(K0[kb],4)}, {vr(QA0,4)}, {vr(TT,16)}"
        qb = lambda kb: f"v_mfma_f32_32x32x16_bf16 {vr(SB,16)}, {vr(K0[kb],4)}, {vr(QB0,4)}, {vr(TT+16,16)}"
        def pv(O, P, vb):
            return [f"v_mfma_f32_32x32x16_bf16 {vr(O,16)}, {vr(V0[vb],4)}, {vr(P,4)}, {vr(O,16)}",
                    f"v_mfma_f32_32x32x16_bf16 {vr(O,16)}, {vr(V0[vb]+4,4)}, {vr(P+4,4)}, {vr(O,16)}"]
        zer = [f"v_mov_b32 v{r}, 0" for r in list(range(PB, PB+8)) + list(range(OA, OA+32)) + list(range(V0[1], V0[1]+8))]
        a(r2)
        for z in zer[:18]: a(z)
        a(qa(0)); a(qb(0))
        for z in zer[18:28]: a(z)
        zer = zer[28:]
        for S, t in ((SA, 10), (SB, 12)):
            a(f"v_max3_f32 v{t}, v{S}, v{S+1}, v{S+2}")
            for i in range(3, 15, 2): a(f"v_max3_f32 v{t}, v{t}, v{S+i}, v{S+i+1}")
            a(f"v_max_f32 v{t}, v{t}, v{S+15}")
        a(zer.pop()); a(zer.pop())
        a("v_permlane32_swap_b32 v10, v12")
        a("v_max_f32 v10, v10, v12")
        a(f"v_cvt_pk_bf16_f32 v{Q1+1}, -v10, 0")
        a(r2)
        a(xread(KVREC))
        for z in zer: a(z)
        a(qa(0))
        a(f"s_mov_b32 s{S_IT}, 0")
        a("s_waitcnt lgkmcnt(0)")
        a.fence()
        stamp('pre')
        UN = opts.get('un', 8)
        NIT = 64 // UN
        PATA = opts.get('pata', "meee" "meee" "meee" "mL" "eeeeeee" "cccccccc")
        PATB = opts.get('patb', "Wmeee" "meee" "mL" "eeeeeeeeee" "cccccccc")
        def half(PAT, S, P, mf, reads):
            e = [f"v_exp_f32 v{S+i}, v{S+i}" for i in range(16)]
            c = [f"v_cvt_pk_bf16_f32 v{P+j}, v{S+2*j}, v{S+2*j+1}" for j in range(8)]
            mi = ei = ci = 0
            for ch in PAT:
                if ch == 'm': a(mf[mi]); mi += 1
                elif ch == 'e': a(e[ei]); ei += 1
                elif ch == 'c': a(c[ci]); ci += 1
                elif ch == 'L':
                    for r in reads: a(r)
                elif ch == 'W': a("s_waitcnt lgkmcnt(0)")
            assert (mi, ei, ci) == (len(mf), 16, 8)
        a.raw(".p2align 3")
        a.label(f"{name}_aloop")
        a(f"s_bitcmp1_b32 {(1 << 1) | (1 << 2) | (1 << 4) | (1 << 6) | (1 << 7)}, s{S_IT}")
        a(f"s_cbranch_scc1 {name}_astub")
        a.label(f"{name}_acont")
        if stamp.on and opts.get('itstamp', True):
            a("s_memtime s[100:101]")
            a(f"s_add_u32 m0, s{S_IT}, 40")
            a("s_waitcnt lgkmcnt(0)")
            a(f"v_writelane_b32 v{stamp.v}, s100, m0")
        nop0 = a.nops
        for t in range(UN):
            p = t & 1
            o = t * KVREC
            rd = kreads(p ^ 1, o + KVREC) + [f"ds_read_b128 {vr(V0[p],4)}, v{A_V0} offset:{o}",
                                             f"ds_read_b128 {vr(V0[p]+4,4)}, v{A_V1} offset:{o}", xread(o + 2*KVREC)]
            half(PATA, SA, PA, [([qb(p)] + pv(OB, PB, p ^ 1) + [r2])[int(ch)] for ch in opts.get('orda', '0123')], rd)
            ex = []
            if t == UN - 1:
                ex = [f"s_add_u32 s{S_IT}, s{S_IT}, 1", f"s_cmp_lt_u32 s{S_IT}, {NIT}"] + \
                     [f"v_add_u32 v{r}, {UN*KVREC}, v{r}" for r in (A_K, A_X, A_V0, A_V1)]
            pvs = pv(OA, PA, p)
            half(PATB, SB, PB, [[pvs[0], qa(p ^ 1), pvs[1]][int(ch)] for ch in opts.get('ordb', '012')], ex)
        assert a.nops == nop0, a.nops - nop0
        a(f"s_cbranch_scc1 {name}_aloop")
        for x in pv(OB, PB, (UN - 1) & 1): a(x)
        stamp('loop')
        a(f"s_mov_b32 s{S_T2}, {f2u(2.0**100)}")
        a(f"s_mov_b32 s{S_T1}, {f2u(2.0**-20)}")
        a(f"v_maximum3_f32 v10, |v{OA}|, |v{OA+1}|, |v{OA+2}|")
        for i in (3, 5, 7): a(f"v_maximum3_f32 v10, v10, |v{OA+i}|, |v{OA+i+1}|")
        a(f"v_mov_b32 v13, 0x7f000000")
        a("s_waitcnt vmcnt(0)")
        a(f"v_maximum3_f32 v10, v10, |v{OA+9}|, |v{OB}|")
        for i in (1, 3, 5, 7): a(f"v_maximum3_f32 v10, v10, |v{OB+i}|, |v{OB+i+1}|")
        a(f"""
        v_maximum3_f32 v11, v{OA+10}, v{OB+10}, v{OB+10}
        v_minimum3_f32 v12, v{OA+10}, v{OB+10}, v{OB+10}
        v_maximum3_f32 v10, v10, |v{OB+9}|, |v{OB+9}|
        v_cmp_ge_f32 vcc, s{S_T2}, v11
        v_cmp_le_f32 {SP}, s{S_T1}, v12
        s_and_b64 vcc, vcc, {SP}
        v_cmp_gt_f32 {SP}, v13, v10
        s_and_b64 vcc, vcc, {SP}
        s_cmp_eq_u64 vcc, -1
        s_cbranch_scc0 {name}_slow
        """)
        a.label(f"{name}_aepi")
        for tt, (O, G, P) in enumerate(((OA, GA, 144), (OB, GBr, 184))):
            a(f"v_rcp_f32 v{P+8}, v{O+10}")
            a(f"v_mul_f32 v{P+8}, v{P+8}, v{G}")
            for i in range(10): a(f"v_mul_f32 v{O+i}, v{O+i}, v{P+8}")
            for j in range(5): a(f"v_cvt_pk_bf16_f32 v{P+j}, v{O+2*j}, v{O+2*j+1}")
            a(f"buffer_store_dwordx4 {vr(P,4)}, v{V_ST}, {sr(R_WS,4)}, s{s.S_MSK} offen offset:{tt*1152}")
            a(f"buffer_store_dword v{P+4}, v{V_STX}, {sr(R_WS,4)}, s{s.S_MSK} offen offset:{tt*1152+1024}")
        s.signal(F_ATT, 12, 13)
        a(f"""
        s_lshr_b32 s{S_T1}, s{S_T3}, 1
        s_mul_i32 s{S_T0}, s{S_T1}, 9216
        v_add_u32 v10, s{S_T0}, v1
        s_and_b32 s{S_T2}, s{S_T3}, 1
        s_lshl_b32 s{S_T0}, s{S_T2}, 12
        v_add_u32 v11, s{S_T0}, v10
        s_lshl_b32 s{S_IT}, s2, 2
        s_add_u32 s{S_IT}, s{S_IT}, s{S_T3}
        s_mul_i32 s{S_T2}, s{S_IT}, 5120
        s_add_u32 s{S_T2}, s{S_T2}, {BP}
        s_add_u32 s{S_T1}, s{S_T2}, 4096
        s_lshl_b32 s{S_IT}, s{S_IT}, 5
        s_add_u32 s{S_IT}, s{S_IT}, {PFL}
        v_mov_b32 v16, 0
        v_mov_b32 v17, s{s.S_TAG}
        """)
        s.poll(F_RED, 12, 13, "ar", 1)
        s.gather(32, 10, 11)
        for i in range(4):
            a(f"buffer_store_dwordx4 {vr(32+4*i,4)}, v1, {sr(R_WS,4)}, s{S_T2} offen offset:{i*1024}")
        a(f"buffer_store_dwordx4 {vr(48,4)}, v1, {sr(R_WS,4)}, s{S_T1} offen")
        a(f"""
        s_waitcnt vmcnt(0)
        s_mov_b64 exec, 1
        buffer_store_dword v17, v16, {sr(R_WS,4)}, s{S_IT} offen
        s_mov_b64 exec, -1
        """)
        if stamp.on:
            a("s_waitcnt vmcnt(0)")
            stamp('end')
            if not opts.get('dbg'): stamp.out(9)
        a("s_endpgm")
        a.hists = [[]]
        a.label(f"{name}_slow")
        MA, MB = 144, 145
        a(f"""
        s_nop 7
        s_sub_u32 s{S_T2}, s{s.S_OA}, {KVB}
        v_add_u32 v{A_K}, s{S_T2}, v{A_K}
        v_add_u32 v{A_X}, s{S_T2}, v{A_X}
        v_add_u32 v{A_V0}, s{S_T2}, v{A_V0}
        v_add_u32 v{A_V1}, s{S_T2}, v{A_V1}
        v_mov_b32 v{Q1+1}, 0
        v_mov_b32 v{MA}, 0xff000000
        v_mov_b32 v{MB}, 0xff000000
        s_mov_b32 s{S_IT}, 0
        s_mov_b32 s{S_T2}, s{S_KVO}
        """)
        for r in range(OA, OA+32): a(f"v_mov_b32 v{r}, 0")
        a(f"""
        v_mov_b32 v17, s{s.S_OA}
        v_add_u32 v17, 2304, v17
        v_mov_b32 v18, 0x3f803f80
        v_mov_b32 v19, 0x3f803f80
        ds_write2_b64 v17, v[18:19], v[18:19] offset0:0 offset1:1
        ds_write2_b64 v17, {vr(OA,2)}, {vr(OA,2)} offset0:2 offset1:3
        """)
        a.fence()
        a.label(f"{name}_sloop")
        a("s_mov_b32 exec_hi, 0xffff")
        s.kv_tile(196, S_T2, s.S_OA, 0)
        a("s_mov_b32 exec_hi, -1")
        a("s_waitcnt vmcnt(0)")
        for x in kreads(0, 0) + [xread(0)]: a(x)
        a(f"ds_read_b128 {vr(V0[0],4)}, v{A_V0}")
        a(f"ds_read_b128 {vr(V0[0]+4,4)}, v{A_V1}")
        a("s_waitcnt lgkmcnt(0)")
        for x in (r2, qa(0), qb(0)): a(x)
        for S, P, O, M in ((SA, PA, OA, MA), (SB, PB, OB, MB)):
            a(f"v_max3_f32 v10, v{S}, v{S+1}, v{M}")
            for i in range(2, 16, 2): a(f"v_max3_f32 v10, v10, v{S+i}, v{S+i+1}")
            a("v_mov_b32 v11, v10")
            a("v_permlane32_swap_b32 v10, v11")
            a("v_max_f32 v10, v10, v11")
            a(f"v_sub_f32 v11, v{M}, v10")
            a("v_exp_f32 v11, v11")
            a(f"v_mov_b32 v{M}, v10")
            for i in range(16): a(f"v_sub_f32 v{S+i}, v{S+i}, v10")
            for i in range(16): a(f"v_exp_f32 v{S+i}, v{S+i}")
            for i in range(16): a(f"v_mul_f32 v{O+i}, v{O+i}, v11")
            for j in range(8): a(f"v_cvt_pk_bf16_f32 v{P+j}, v{S+2*j}, v{S+2*j+1}")
            for x in pv(O, P, 0): a(x)
        a(f"""
        s_add_u32 s{S_T2}, s{S_T2}, 4096
        s_add_u32 s{S_IT}, s{S_IT}, 1
        s_cmp_lt_u32 s{S_IT}, 64
        """)
        a.fence()
        a(f"s_cbranch_scc1 {name}_sloop")
        a(f"s_branch {name}_aepi")
        a.hists = [[]]
        a.label(f"{name}_astub")
        for it in (2, 4, 6, 7):
            a(f"s_cmp_eq_u32 s{S_IT}, {it}")
            a(f"s_cbranch_scc1 {name}_astub{it}")
        a("s_waitcnt vmcnt(0)")
        s.signal(F_ST, 10, 11)
        a("s_nop 3")
        a(f"s_branch {name}_acont")
        a.label(f"{name}_astub2")
        s.poll(F_C2, 10, 11, "ap2", 1)
        a(f"s_branch {name}_acont")
        a.label(f"{name}_astub4")
        s.poll(F_C3, 10, 11, "ap3", 1)
        a(f"s_branch {name}_acont")
        a.label(f"{name}_astub6")
        s.signal(F_REL, 10, 11)
        a("s_nop 3")
        a(f"s_branch {name}_acont")
        a.label(f"{name}_astub7")
        s.poll(F_SEEN2, 10, 11, "ap7", 1, n=1)
        a(f"""
        v_and_b32 v11, 7, v0
        v_bfe_u32 v12, v0, 3, 1
        v_lshl_add_u32 v11, v12, 4, v11
        v_bfe_u32 v12, v0, 4, 1
        v_lshl_add_u32 v11, v12, 3, v11
        v_lshlrev_b32 v12, 2, v11
        s_lshl_b32 s{S_T1}, s{s.S_QT}, 7
        s_add_u32 s{S_T1}, s{S_T1}, {GB}
        buffer_load_dword v{GA}, v12, {sr(R_WS,4)}, s{S_T1} offen sc1
        buffer_load_dword v{GBr}, v12, {sr(R_WS,4)}, s{S_T1} offen offset:128 sc1
        v_cmp_gt_u32 vcc, 32, v0
        v_mov_b32 v13, {OOB}
        v_cndmask_b32 v{V_STX}, v13, v12, vcc
        v_lshlrev_b32 v12, 4, v11
        v_lshl_add_u32 v{V_ST}, v9, 9, v12
        s_branch {name}_acont
        """)
        a.hists = [[]]

    def gemm(self):
        a, s, name, opts, stamp = self.a, self, self.name, self.opts, self.stamp
        R_WS, R_OUT, S_W, S_XCD, S_LOC, S_H, S_QB = s.R_WS, s.R_OUT, s.S_W, s.S_XCD, s.S_LOC, s.S_H, s.S_QB
        S_T0, S_T1, S_T2, S_T3, S_IT, S_KVO, S_HO, S_WO, S_M0 = s.S_T0, s.S_T1, s.S_T2, s.S_T3, s.S_IT, s.S_KVO, s.S_HO, s.S_WO, s.S_M0
        S_KH, S_OA, S_OB, S_MSK, S_HB0, S_WB0 = s.S_KH, s.S_OA, s.S_OB, s.S_MSK, s.S_HB0, s.S_WB0
        ACC32 = lambda q, h: 4 + q*36 + h*16
        ACC16 = lambda q: 4 + q*36 + 32
        BUF = lambda b: 148 + (b % 3)*28
        V_W8 = 2; V_H = 232; TM = 244
        if stamp.on:
            a(f"v_mov_b32 v255, v{stamp.v}")
            stamp.v = 255
        s.signal(F_WDONE, TM, TM+1)
        a(f"""
        v_lshlrev_b32 v1, 4, v0
        s_and_b32 s{S_KH}, s{S_XCD}, 1
        s_mul_i32 s{S_IT}, s{S_KH}, 144
        s_mul_i32 s{S_T1}, s{S_T3}, 36
        s_add_u32 s{S_IT}, s{S_IT}, s{S_T1}
        s_lshr_b32 s{S_T1}, s{S_XCD}, 1
        s_lshl_b32 s{S_T1}, s{S_T1}, 2
        s_lshr_b32 s{S_T2}, s{S_LOC}, 3
        s_add_u32 s{S_QB}, s{S_T1}, s{S_T2}
        s_and_b32 s{S_H}, s{S_LOC}, 7
        s_mul_i32 s{S_HB0}, s{S_QB}, 288
        s_add_u32 s{S_HB0}, s{S_HB0}, s{S_IT}
        s_lshl_b32 s{S_HB0}, s{S_HB0}, 12
        s_mul_i32 s{S_WB0}, s{S_H}, 288
        s_add_u32 s{S_WB0}, s{S_WB0}, s{S_IT}
        s_mul_i32 s{S_WB0}, s{S_WB0}, 2304
        s_add_u32 s{S_WB0}, s{S_WB0}, {WDP}
        s_lshl_b32 s{S_T1}, s{S_T3}, 12
        s_add_u32 s{S_KVO}, s{S_KVO}, s{S_T1}
        v_mov_b32 v236, v{s.V_P}
        v_mov_b32 v237, v{s.V_P+1}
        v_mov_b32 v238, v{s.V_P+2}
        v_bfe_u32 v{V_W8}, v0, 3, 1
        v_bfe_u32 v3, v0, 4, 1
        v_cmp_eq_u32 vcc, v{V_W8}, v3
        v_lshrrev_b32 v3, 5, v0
        v_lshlrev_b32 v3, 7, v3
        v_and_b32 v{V_W8}, 7, v0
        v_lshl_add_u32 v3, v{V_W8}, 4, v3
        v_mov_b32 v{V_W8}, {OOB}
        v_cndmask_b32 v{V_W8}, v{V_W8}, v3, vcc
        v_mov_b32 v{TM+2}, 0
        """)
        a(f"s_lshl_b32 s{S_T1}, s{S_KH}, 11")
        a(f"v_add_u32 v{V_H}, s{S_T1}, v1")
        a(f"v_xor_b32 v{V_H+1}, 2048, v{V_H}")
        a.wait_vm(s.probe_id['B'])
        a(f"v_cmp_ne_u32 vcc, s{s.S_TAG}, v113")
        a("s_and_b32 vcc_lo, vcc_lo, 0xfff")
        a(f"s_cbranch_scc0 {name}_gc1ok")
        m = a.skip_begin(); vm0 = dict(a.vmr)
        s.gpoll("gc1", R_WS, 112, f"s{s.S_GOA}", 1, 0xfff, TM+1, imm=128, sleep=4)
        a.vmr = vm0
        a.skip_end(m)
        a.label(f"{name}_gc1ok")
        order = [4*l + i for l in (0, 2, 4, 6, 8, 1, 3, 5, 7) for i in range(4)]
        ld_id = {}
        def pre(k):
            a(f"s_add_u32 s{S_HO}, s{S_HB0}, {order[k]*4096}")
            a(f"s_add_u32 s{S_WO}, s{S_WB0}, {order[k]*2304}")
        def ldH(k, q): a(f"buffer_load_dwordx4 {vr(BUF(k)+4*q,4)}, v{V_H+(q>>1)}, {sr(R_WS,4)}, s{S_HO} offen offset:{(q&1)*1024} sc1")
        def ldW(k):
            a(f"buffer_load_dwordx4 {vr(BUF(k)+16,4)}, v1, {sr(R_WS,4)}, s{S_WO} offen sc1")
            a(f"buffer_load_dwordx4 {vr(BUF(k)+20,4)}, v1, {sr(R_WS,4)}, s{S_WO} offen offset:1024 sc1")
            ld_id[k] = a.emit(f"buffer_load_dwordx4 {vr(BUF(k)+24,4)}, v{V_W8}, {sr(R_WS,4)}, s{S_WO} offen offset:2048 sc1")
        for k in range(3):
            pre(k)
            for q in range(4): ldH(k, q)
            ldW(k)
        stamp('g0')
        NC2, NC3 = 4, 7
        kvn = [0]; kv_id = {}
        def kvdma(n):
            if kvn[0] >= NC2 + NC3: return
            a("s_mov_b32 exec_hi, 0xffff")
            for _ in range(n):
                if kvn[0] >= NC2 + NC3: break
                t = 4*(s.NFIRST + kvn[0])
                kvn[0] += 1
                kv_id[kvn[0]] = s.kv_tile(236, S_KVO, S_M0, t)
            a("s_mov_b32 exec_hi, -1")
        sig = {F_C2: False, F_C3: False}
        KA = opts.get('ka', 5)
        WB = lambda k: 148 + (k % 7)*12
        GR = 236
        def ldWo(k):
            a(f"buffer_load_dwordx4 {vr(WB(k),4)}, v1, {sr(R_WS,4)}, s{S_WO} offen sc1")
            a(f"buffer_load_dwordx4 {vr(WB(k)+4,4)}, v1, {sr(R_WS,4)}, s{S_WO} offen offset:1024 sc1")
            return a.emit(f"buffer_load_dwordx4 {vr(WB(k)+8,4)}, v{V_W8}, {sr(R_WS,4)}, s{S_WO} offen offset:2048 sc1")
        for k in range(36):
            a.wait_vm(ld_id[k])
            if k == 0:
                s.signal(F_ST, TM, TM+1)
            if k == 1:
                s.poll(F_WDONE, TM, TM+1, "gwd", 1, n=8)
                s.consts(239, 20, 44)
            hp = opts.get('gprio', '0')
            if hp[k % len(hp)] != hp[(k - 1) % len(hp)] or k == 0: a(f"s_setprio {2 if hp[k % len(hp)] == '1' else 0}")
            for fl, last in ((F_C2, NC2), (F_C3, NC2 + NC3)):
                if not sig[fl] and last in kv_id and kv_id[last]['B'] <= ld_id[k]['B']:
                    s.signal(fl, TM, TM+1); sig[fl] = True
            if k == KA or k == KA + 3:
                a(f"s_cmp_lg_u32 s{S_W}, 4")
                a(f"s_cbranch_scc1 {name}_c2s{k}")
                m = a.skip_begin(); vm0 = dict(a.vmr)
                if k == KA:
                    s.poll(F_ST, TM, TM+1, "gst", 2, n=8)
                    s.arrive(1, TM, TM+10)
                else:
                    s.broadcast_if_last(1, TM, TM+10, f"{name}_c2s{k}", wait=False)
                a.vmr = vm0
                a.skip_end(m)
                a.label(f"{name}_c2s{k}")
            if k + 3 == 20:
                s.gpoll("c2", s.R_WS, TM+2, f"s{s.S_GOA}", 1, 1, TM+1, imm=4)
                s.signal(F_SEEN2, TM, TM+1)
                assert kvn[0] == NC2 + NC3
                a(f"""
                s_lshl_b32 s{S_IT}, s{S_QB}, 1
                s_add_u32 s{S_IT}, s{S_IT}, s{S_KH}
                s_lshl_b32 s{S_T0}, s{S_IT}, 8
                s_add_u32 s{S_T0}, s{S_T0}, {GB}
                s_lshr_b32 s{S_T2}, s{S_T3}, 1
                s_lshl_b32 s{S_T1}, s{S_T2}, 7
                s_add_u32 s{S_T1}, s{S_T1}, s{S_T0}
                v_and_b32 v{TM+3}, 31, v0
                v_lshlrev_b32 v{TM+3}, 2, v{TM+3}
                v_and_b32 v{TM+4}, 15, v0
                v_lshrrev_b32 v{TM+5}, 5, v0
                v_lshl_add_u32 v{TM+4}, v{TM+5}, 4, v{TM+4}
                v_lshlrev_b32 v{TM+4}, 2, v{TM+4}
                buffer_load_dword v{GR}, v{TM+3}, {sr(R_WS,4)}, s{S_T0} offen sc1
                buffer_load_dword v{GR+1}, v{TM+4}, {sr(R_WS,4)}, s{S_T0} offen sc1
                buffer_load_dword v{GR+2}, v{TM+3}, {sr(R_WS,4)}, s{S_T0} offen offset:128 sc1
                buffer_load_dword v{GR+3}, v{TM+4}, {sr(R_WS,4)}, s{S_T0} offen offset:128 sc1
                buffer_load_dword v{GR+4}, v{TM+3}, {sr(R_WS,4)}, s{S_T1} offen sc1
                buffer_load_dword v{GR+5}, v{TM+4}, {sr(R_WS,4)}, s{S_T1} offen sc1
                """)
            if k == 24:
                for i in range(6): a(f"v_sub_f32 v{GR+i}, 1.0, v{GR+i}")
                a(f"""
                v_and_b32 v{TM+10}, 7, v0
                v_mul_u32_u24 v{TM+10}, 2304, v{TM+10}
                v_mul_u32_u24 v{TM+6}, {4*2304}, v{TM+5}
                v_add_u32 v{TM+6}, v{TM+6}, v{TM+3}
                v_mul_u32_u24 v{TM+7}, 288, v{TM+3}
                v_lshl_add_u32 v{TM+7}, v{TM+5}, 5, v{TM+7}
                v_mul_u32_u24 v{TM+8}, 288, v{TM+4}
                v_bfe_u32 v{TM+9}, v0, 4, 1
                v_lshl_add_u32 v{TM+8}, v{TM+9}, 3, v{TM+8}
                s_mul_i32 s{S_T0}, s{S_T3}, 18432
                v_add_u32 v{TM+3}, s{S_T0}, v1
                s_lshr_b32 s{S_T1}, s{S_T3}, 1
                s_mul_i32 s{S_T0}, s{S_T1}, 9216
                s_add_u32 s{S_T0}, s{S_T0}, 73728
                v_add_u32 v{TM+4}, s{S_T0}, v1
                s_and_b32 s{S_T2}, s{S_T3}, 1
                s_lshl_b32 s{S_T0}, s{S_T2}, 12
                v_add_u32 v{TM+5}, s{S_T0}, v{TM+4}
                s_lshl_b32 s{S_T0}, s{S_T3}, 3
                s_lshl_b32 s{S_OA}, s{S_IT}, 5
                s_add_u32 s{S_OA}, s{S_OA}, s{S_T0}
                s_mul_i32 s{S_OA}, s{S_OA}, 2304
                s_add_u32 s{S_OA}, s{S_OA}, {OF}
                s_mul_i32 s{S_KVO}, s{S_H}, 36
                s_add_u32 s{S_M0}, s{S_KVO}, s{S_T3}
                s_mul_i32 s{S_M0}, s{S_M0}, 2304
                s_add_u32 s{S_M0}, s{S_M0}, {WOP + 32*2304}
                s_add_u32 s{S_KVO}, s{S_KVO}, s{S_T0}
                s_mul_i32 s{S_KVO}, s{S_KVO}, 2304
                s_add_u32 s{S_KVO}, s{S_KVO}, {WOP}
                s_lshl_b32 s{S_T0}, s{S_IT}, 1
                s_add_u32 s{S_T0}, s{S_T0}, s{S_T1}
                s_mul_i32 s{S_OB}, s{S_T0}, {32*1152}
                s_mul_i32 s{S_T0}, s{S_H}, 144
                s_add_u32 s{S_OB}, s{S_OB}, s{S_T0}
                s_lshl_b32 s{S_T0}, s{S_T2}, 6
                s_add_u32 s{S_MSK}, s{S_OB}, s{S_T0}
                s_lshl_b32 s{S_LOC}, s2, 2
                s_add_u32 s{S_LOC}, s{S_LOC}, s{S_T3}
                s_xor_b32 s{S_T0}, s{S_LOC}, 4
                s_lshl_b32 s{s.S_QT}, s{S_T0}, 5
                s_add_u32 s{s.S_QT}, s{s.S_QT}, {PFL}
                s_mul_i32 s{S_LOC}, s{S_T0}, 5120
                s_add_u32 s{S_LOC}, s{S_LOC}, {BP}
                """)
            if stamp.on and opts.get('itstamp', True) and k % 3 == 0: stamp('', 40 + k // 3)
            if k + 3 < 36: pre(k + 3)
            for q in range(4):
                h = vr(BUF(k)+4*q, 4)
                c = (lambda x: "0") if k == 0 else (lambda x: x)
                a(f"v_mfma_f32_32x32x16_bf16 {vr(ACC32(q,0),16)}, {vr(BUF(k)+16,4)}, {h}, {c(vr(ACC32(q,0),16))}")
                a(f"v_mfma_f32_32x32x16_bf16 {vr(ACC32(q,1),16)}, {vr(BUF(k)+20,4)}, {h}, {c(vr(ACC32(q,1),16))}")
                a(f"v_mfma_f32_16x16x32_bf16 {vr(ACC16(q),4)}, {vr(BUF(k)+24,4)}, {h}, {c(vr(ACC16(q),4))}")
                if k + 3 < 36: ldH(k + 3, q)
            if k >= 1: kvdma(2 if k < 3 else 1)
            if k + 3 < 36: ldW(k + 3)
        assert sig[F_C2] and sig[F_C3]
        a("s_setprio 0")
        stamp('loop')
        s.poll(F_REL, TM, TM+1, "gw1", 8)
        stamp('flag1')
        for i in range(18):
            a(f"ds_write_b128 v{TM+3}, {vr(76+4*i,4)} offset:{i*1024}")
        wid = {}
        for k in range(7):
            a(f"s_add_u32 s{S_WO}, s{S_KVO}, {k*2304}")
            wid[k] = ldWo(k)
            if k == 0: s.signal(F_RED, TM, TM+1)
        a(f"s_setprio {opts.get('redprio', 2)}")
        for q in range(2):
            for i in range(36):
                a(f"v_mul_f32 v{4+36*q+i}, v{4+36*q+i}, v{GR+2*q+(i >= 32)}")
        gather = lambda R, base: s.gather(R, TM+4, TM+5)
        a(f"""
        s_setprio 0
        v_add_u32 v{TM+3}, 73728, v{TM+3}
        """)
        stamp('red')
        s.poll(F_ATT, TM, TM+1, "gw6", 2)
        a("s_setprio 2")
        stamp('own')
        OB_ = lambda k: 76 + 8*k
        def ldO(k):
            if k < 8:
                a(f"s_add_u32 s{S_T1}, s{S_OA}, {k*2304}")
                a(f"buffer_load_dwordx4 {vr(OB_(k),4)}, v1, {sr(R_WS,4)}, s{S_T1} offen sc1")
                return a.emit(f"buffer_load_dwordx4 {vr(OB_(k)+4,4)}, v1, {sr(R_WS,4)}, s{S_T1} offen offset:1152 sc1")
            for i in range(4):
                a(f"s_add_u32 s{S_T1}, s{S_OA}, {i*2304}")
                a(f"buffer_load_dword v{OB_(8)+i}, v{TM+6}, {sr(R_WS,4)}, s{S_T1} offen offset:1024 sc1")
                r = a.emit(f"buffer_load_dword v{OB_(8)+4+i}, v{TM+6}, {sr(R_WS,4)}, s{S_T1} offen offset:{1152+1024} sc1")
            return r
        oid = {k: ldO(k) for k in range(9)}
        a(f"s_mov_b32 s{s.S_SP}, 0")
        PB = WB(2)
        for k in range(9):
            a.wait_vm(oid[k])
            a.label(f"{name}_ock{k}")
            o = OB_(k)
            a(f"v_max3_u32 v{TM}, v{o}, v{o+1}, v{o+2}")
            a(f"v_max3_u32 v{TM+1}, v{o+3}, v{o+4}, v{o+5}")
            a(f"v_max3_u32 v{TM}, v{TM}, v{o+6}, v{o+7}")
            a(f"v_max_u32 v{TM}, v{TM}, v{TM+1}")
            a(f"v_cmp_eq_u32 vcc, -1, v{TM}")
            a(f"s_cbranch_vccnz {name}_ort{k}")
            a.label(f"{name}_ogo{k}")
            if k >= 7: a.wait_vm(wid[k])
            for q in range(2):
                ov = vr(o+4*q, 4)
                a(f"v_mfma_f32_32x32x16_bf16 {vr(ACC32(q,0),16)}, {vr(WB(k),4)}, {ov}, {vr(ACC32(q,0),16)}")
                a(f"v_mfma_f32_32x32x16_bf16 {vr(ACC32(q,1),16)}, {vr(WB(k)+4,4)}, {ov}, {vr(ACC32(q,1),16)}")
                a(f"v_mfma_f32_16x16x32_bf16 {vr(ACC16(q),4)}, {vr(WB(k)+8,4)}, {ov}, {vr(ACC16(q),4)}")
            if k == 0:
                a(f"s_add_u32 s{S_WO}, s{S_KVO}, {7*2304}")
                wid[7] = ldWo(7)
            if k == 1:
                a(f"s_mov_b32 s{S_WO}, s{S_M0}")
                wid[8] = ldWo(8)
            if k == 6: pf_id = a.emit(f"buffer_load_dword v{TM+9}, v{TM+2}, {sr(R_WS,4)}, s{s.S_QT} offen sc1")
        stamp('omfma')
        def fetch_partner(tag):
            a(f"""
            v_cmp_ne_u32 vcc, s{s.S_TAG}, v{TM+9}
            s_cbranch_vccz {name}_{tag}
            """)
            m = a.skip_begin()
            s.gpoll("pp", R_WS, TM+2, f"s{s.S_QT}", 1, 1, TM+9, sleep=1)
            a.skip_end(m)
            a.label(f"{name}_{tag}")
            for i in range(4):
                a(f"buffer_load_dwordx4 {vr(PB+4*i,4)}, v1, {sr(R_WS,4)}, s{S_LOC} offen offset:{i*1024} sc1")
            a(f"s_add_u32 s{S_T1}, s{S_LOC}, 4096")
            a(f"buffer_load_dwordx4 {vr(PB+16,4)}, v1, {sr(R_WS,4)}, s{S_T1} offen sc1")
        for i in range(18):
            a(f"ds_write_b128 v{TM+3}, {vr(4+4*i,4)} offset:{i*1024}")
        s.signal(F_DUMP, TM, TM+1)
        a("s_waitcnt vmcnt(0)")
        fetch_partner("ppok")
        s.poll(F_DUMP, TM, TM+1, "gw5", 0)
        stamp('dump')
        gather(4, 73728)
        a("s_waitcnt vmcnt(0)")
        for i in range(20): a(f"v_fmac_f32 v{4+i}, v{PB+i}, v{GR+4+(i >= 16)}")
        for j in range(10): a(f"v_cvt_pk_bf16_f32 v{88+j}, v{4+2*j}, v{4+2*j+1}")
        a(f"buffer_store_dwordx4 v[88:91], v{TM+7}, {sr(R_OUT,4)}, s{S_MSK} offen ;plain")
        a(f"buffer_store_dwordx4 v[92:95], v{TM+7}, {sr(R_OUT,4)}, s{S_MSK} offen offset:16 ;plain")
        a(f"s_bitcmp1_b32 s{S_T3}, 0")
        a(f"s_cbranch_scc1 {name}_fin2")
        a(f"buffer_store_dwordx2 v[96:97], v{TM+8}, {sr(R_OUT,4)}, s{S_OB} offen offset:128 ;plain")
        a.label(f"{name}_fin2")
        if stamp.on:
            a("s_waitcnt vmcnt(0)")
            stamp('end')
            stamp.out(9)
        a("s_endpgm")
        a.hists = [[]]
        for k in range(9):
            a.label(f"{name}_ort{k}")
            a(f"""
            s_sleep {opts.get('osleep', 3)}
            buffer_load_dword v{TM}, v{TM+10}, {sr(R_WS,4)}, s{S_OA} offen offset:{1152+1024} sc1
            s_mov_b32 s{S_KH}, {k}
            s_add_u32 s{s.S_SP}, s{s.S_SP}, 1
            s_cmp_ge_u32 s{s.S_SP}, 0x8000
            s_cbranch_scc1 {name}_ogo{k}
            s_waitcnt vmcnt(0)
            v_cmp_eq_u32 vcc, -1, v{TM}
            s_and_b32 vcc_lo, vcc_lo, {1 << k if k < 8 else 0xff}
            s_cbranch_scc1 {name}_ort{k}
            s_branch {name}_orl{k}
            """)
        for k in range(9):
            a.label(f"{name}_orl{k}")
            ldO(k)
        a("s_waitcnt vmcnt(0)")
        for k in range(8):
            a(f"s_cmp_eq_u32 s{S_KH}, {k}")
            a(f"s_cbranch_scc1 {name}_ock{k}")
        a(f"s_branch {name}_ock8")
        a.hists = [[]]
```

```python
S, D, F, NH, DH = 2048, 576, 4608, 32, 18
HF   = 0
HF_SZ = 16*288*4*1024
WDP  = HF + HF_SZ
WDP_SZ = 8*288*2304
WOP  = WDP + WDP_SZ
WOP_SZ = 8*36*2304
QN   = WOP + WOP_SZ
QN_SZ = 32*64*4096
KVREC = 2336
QREC = 1152
QF = QN; QF_SZ = QN_SZ
OF   = QF + QF_SZ
OF_SZ = 32*36*2*1024
GB   = OF + OF_SZ
GB_SZ = 2048*4
GOF  = GB + GB_SZ
GOF_SZ = 256*1024
EPO  = GOF + GOF_SZ
WS_USED = EPO + 128
assert all(x % 128 == 0 for x in (WDP, WOP, QN, OF, GB, GOF))
import math
QSCALE = (DH ** -0.5) * math.log2(math.e)
GELU_C1 = -2.0 * math.sqrt(2.0/math.pi) * math.log2(math.e)
GELU_C2 = GELU_C1 * 0.044715
GELU_K  = 1.0/0.044715
```

```python
from common import *
from p2 import Phase2

def gen(name, opts=None):
    opts = opts or {}
    a = Asm()
    XF = lambda u, ks: 112 + (ks*2+u)*4
    ACC = lambda t, u: 48 + (t*2+u)*4
    WF = lambda i: 24 + (i % 6)*4
    V_TRB, V_DMA, V_DMAQ, V_HST, V_XD0, V_XD1, V_XR = 1, 2, 3, 4, 5, 6, 7
    V_TR = [20, 21]; V_TS = 22; V_STAMP = 23
    T = 8
    OUT = 12
    V_DMAG, V_GUB, V_GU = 96, 97, 98; V_XA = [99, 100]
    V_QS, V_QS3, V_SC1, V_SC2 = 5, 6, 7, 3
    V_TS2 = 7
    R_X, R_G, R_U, R_Q, R_WS, R_GW, R_PK, R_SEL = 28, 32, 36, 40, 44, 52, 72, 12
    S_W, S_XCD, S_B, S_MB, S_J, S_L = 56, 57, 58, 59, 60, 61
    S_TOK, S_T0, S_T1, S_T2, S_T3 = 62, 63, 64, 65, 66
    S_GOFF, S_HB, S_G2O, S_QO, S_GM = 67, 68, 69, 70, 71
    S_K, S_C2G = 76, 77
    S_XB, S_TT, S_GT, S_PKL, S_CR, S_H2, S_R, S_WB = 78, 79, 80, 81, 82, 83, 84, 85
    S_PK, S_PKA, S_PKB, S_PKC, S_PKD, S_PKNB, S_PKON = 86, 87, 88, 89, 90, 91, 92
    S_U = 93
    SLOT = [0, 49152, 98304]
    NST = 15
    def stage_info(s):
        if s < 9: return 2, 2*s, 2
        if s < 12: return 0, 6*(s-9), 6
        return 1, 6*(s-12), 6
    stamp = Stamper(a, opts.get('stamp', False), V_STAMP, S_W, R_WS, WS_USED)
    stamp.keep = opts.get('keep1')
    stamp.real = opts.get('real', False)
    p2 = Phase2(a, name, opts, stamp)
    if opts.get('dbg'): stamp.dbg = p2.R_DBG
    lab = [0]
    def newlab():
        lab[0] += 1; return f"{name}_l{lab[0]}"

    a.raw(f".globl {name}\n.p2align 8\n.type {name},@function\n{name}:")
    a("s_cmp_ge_u32 s2, 256")
    a(f"s_cbranch_scc1 {name}_end")
    stamp('start')
    load_kernargs(a)
    a(f"""
    v_lshrrev_b32 v1, 6, v0
    v_and_b32 v0, 63, v0
    s_and_b32 s{S_XCD}, s2, 7
    v_readfirstlane_b32 s{S_W}, v1
    s_lshr_b32 s{S_T0}, s2, 3
    s_and_b32 s{S_B}, s{S_T0}, 3
    s_lshr_b32 s{S_MB}, s{S_T0}, 2
    s_getpc_b64 s[26:27]
    """)
    a.label(f"{name}_pc")
    a(f"""
    s_lshl_b32 s{S_T0}, s{S_T0}, 3
    s_add_u32 s{S_T0}, s{S_T0}, s{S_W}
    s_lshl_b32 s{S_T0}, s{S_T0}, 8
    v_and_b32 v8, 1, v0
    v_lshlrev_b32 v8, 7, v8
    v_add_u32 v8, s{S_T0}, v8
    v_min_u32 v8, all_code_end-{name}_pc-4, v8
    s_mov_b32 m0, 163584
    s_lshl_b32 s{S_J}, s{S_XCD}, 2
    global_load_lds_dword v8, s[26:27]
    s_add_u32 s{S_J}, s{S_J}, s{S_B}
    s_lshl_b32 s{S_TT}, s{S_MB}, 3
    s_add_u32 s{S_TT}, s{S_TT}, s{S_W}
    s_mul_i32 s{S_TOK}, s{S_TT}, {32*1152}
    s_lshl_b32 s{S_WB}, s{S_W}, 10
    s_lshl_b32 s{S_XB}, s{S_W}, 12
    s_add_u32 s{S_XB}, s{S_XB}, 16384
    s_mul_i32 s{S_G2O}, s{S_XCD}, {9*128}
    s_add_u32 s{S_G2O}, s{S_G2O}, {8*128}
    s_lshl_b32 s{S_T0}, s{S_B}, 5
    s_add_u32 s{S_G2O}, s{S_G2O}, s{S_T0}
    s_mul_i32 s{S_QO}, s{S_J}, 108
    """)
    a(f"""
    v_lshrrev_b32 v8, 3, v0
    v_lshrrev_b32 v9, 4, v0
    v_xor_b32 v9, v9, v0
    v_and_b32 v9, 7, v9
    v_mul_u32_u24 v10, 1152, v8
    v_lshl_add_u32 v{V_XD0}, v9, 4, v10
    v_xor_b32 v9, 4, v9
    v_add_u32 v10, {8*1152}, v10
    v_lshl_add_u32 v{V_XD1}, v9, 4, v10
    """)
    a(f"""
    s_and_b32 s{S_T1}, s{S_W}, 1
    s_lshl_b32 s{S_T0}, s{S_T1}, 1
    v_bfe_u32 v13, v0, 4, 1
    v_or_b32 v13, s{S_T0}, v13
    v_bfe_u32 v14, v0, 1, 2
    v_xor_b32 v13, v13, v14
    v_lshlrev_b32 v13, 5, v13
    v_and_b32 v14, 1, v0
    v_lshl_add_u32 v13, v14, 4, v13
    s_lshl_b32 s{S_T0}, s{S_W}, 3
    v_add_u32 v14, s{S_T0}, v8
    v_mul_u32_u24 v15, 3456, v14
    v_add_u32 v15, v13, v15
    v_cmp_eq_u32 vcc, 112, v13
    v_mov_b32 v16, {OOB}
    v_cndmask_b32 v{V_DMAQ}, v15, v16, vcc
    v_lshrrev_b32 v8, 1, v0
    v_and_b32 v9, 0x13, v8
    v_bfe_u32 v10, v8, 2, 1
    v_lshl_or_b32 v9, v10, 3, v9
    v_bfe_u32 v10, v8, 3, 1
    v_lshl_or_b32 v9, v10, 2, v9
    s_lshl_b32 s{S_T0}, s{S_T1}, 5
    v_add_u32 v9, s{S_T0}, v9
    v_mul_u32_u24 v9, 9216, v9
    v_and_b32 v10, 1, v0
    v_lshl_add_u32 v{V_DMAG}, v10, 4, v9
    s_lshr_b32 s{S_T0}, s{S_W}, 2
    s_lshl_b32 s{S_GM}, s{S_T0}, 11
    s_lshl_b32 s{S_T1}, s{S_T1}, 10
    s_add_u32 s{S_GM}, s{S_GM}, s{S_T1}
    s_bitcmp1_b32 s{S_W}, 1
    s_cselect_b32 s{S_GM}, 4096, s{S_GM}
    """)
    ra, rb, rc = opts.get('rot', (1, 2, 1))
    ROT = {'w': (S_GOFF, 96), 'x': (S_TOK, 97), 'q': (S_QO, 98), 'g': (S_G2O, 3)}
    HY = opts.get('hyb', 0); NR = 9 - HY
    FIX = {'w': 1, 'x': 27, 'q': 100 if not stamp.on else 27, 'g': 101 if not stamp.on else 27}
    def rot(dst, kind, m, cmp=True):
        hi, lo = ROT[kind]
        if m < HY:
            a(f"s_mov_b32 s{dst}, s{FIX[kind]}"); return
        if cmp: a(f"s_cmp_ge_u32 s{S_R}, {9 - m}")
        a(f"s_cselect_b32 s{dst}, s{lo}, s{hi}")
    def rot_base(kind, stride):
        hi, lo = ROT[kind]
        if HY: a(f"s_mov_b32 s{FIX[kind]}, s{hi}")
        a(f"s_mul_i32 s{lo}, s{S_R}, {stride}")
        a(f"s_add_u32 s{hi}, s{hi}, s{lo}")
        a(f"s_sub_u32 s{lo}, s{hi}, {NR*stride}")
    mg = {9: 57, 8: 64, 7: 74, 6: 86}[NR]
    assert all((x*mg) >> 9 == x // NR for x in range(40))
    a(f"""
    s_mul_i32 s{S_R}, s{S_MB}, {ra}
    s_mul_i32 s{S_T0}, s{S_B}, {rb}
    s_add_u32 s{S_R}, s{S_R}, s{S_T0}
    s_mul_i32 s{S_T0}, s{S_XCD}, {rc}
    s_add_u32 s{S_R}, s{S_R}, s{S_T0}
    s_mul_i32 s{S_T0}, s{S_R}, {mg}
    s_lshr_b32 s{S_T0}, s{S_T0}, 9
    s_mul_i32 s{S_T0}, s{S_T0}, {NR}
    s_sub_u32 s{S_R}, s{S_R}, s{S_T0}
    """)
    rot_base('x', 128); rot_base('q', 64*3456); rot_base('g', 64*9216)
    a("s_waitcnt lgkmcnt(0)")
    make_srd(a, R_X, P_X, 2048*1152)
    make_srd(a, R_Q, P_QKV, 576*3456)
    make_srd(a, R_G, P_WG, 576*9216)
    make_srd(a, R_U, P_WU, 576*9216)
    a(f"""
    s_cmp_ge_u32 s{S_W}, 4
    s_cselect_b32 s{R_SEL}, s{R_U}, s{R_G}
    s_cselect_b32 s{R_SEL+1}, s{R_U+1}, s{R_G+1}
    s_bitcmp1_b32 s{S_W}, 1
    s_cselect_b32 s{R_SEL+2}, 0, s{R_G+2}
    s_mov_b32 s{R_SEL+3}, 0x00020000
    """)

    dma_id = {}
    def note(stage, idd):
        d = dma_id.setdefault(stage, {})
        for r in ('A', 'B'):
            if a.role in (None, r): d[r] = idd[r]
    def dma_pieces(stage):
        grp, k0, nk = stage_info(stage)
        slot = SLOT[stage % 3]
        m_ = k0 // 2
        P = []
        def piece(kind, m, add, m0reg, m0add, vreg, srd):
            def f(cmp=True):
                rot(S_T0, kind, m, cmp)
                a(f"s_add_u32 m0, s{m0reg}, {slot + m0add}")
                a(f"s_add_u32 s{S_T0}, s{S_T0}, {add}")
                note(stage, a.emit(f"buffer_load_dwordx4 v{vreg}, {sr(srd,4)}, s{S_T0} offen lds"))
            P.append(f)
        if grp == 2:
            piece('g', m_, m_*64*9216, S_GM, 0, V_DMAG, R_SEL)
            piece('q', m_, m_*64*3456, S_WB, 8192, V_DMAQ, R_Q)
            for i in range(4):
                piece('x', m_, m_*128 + (i >> 1)*16*1152, S_XB, i*1024, V_XD1 if i & 1 else V_XD0, R_X)
        else:
            for i in range(3):
                for gu in range(2):
                    piece('w', m_ + i, (m_ + i)*64*9216 + grp*128, S_WB, gu*24576 + i*8192, V_DMA, R_U if gu else R_G)
        return P
    def dma(stage):
        if stage >= NST: return
        for f in dma_pieces(stage): f()

    class only:
        def __init__(self, role): self.role = role
        def __enter__(self):
            self.l = newlab()
            a(f"s_cmp_ge_u32 s{S_W}, 4")
            a(f"s_cbranch_scc{'1' if self.role=='A' else '0'} {self.l}")
            self.m = a.skip_begin(); a.role = self.role
        def __exit__(self, *e):
            a.skip_end(self.m); a.role = None
            a.label(self.l)

    dma(0)
    d1 = dma_pieces(1)
    a(f"s_add_u32 s10, s{P_WS}, {EPO}")
    a(f"s_addc_u32 s11, s{P_WS+1}, 0")
    a(f"s_load_dword s{p2.S_TAG}, s[10:11], 0")
    a(f"""
    v_mul_u32_u24 v15, 9216, v14
    v_add_u32 v{V_DMA}, v13, v15
    v_lshrrev_b32 v12, 4, v0
    v_bfe_u32 v13, v0, 2, 2
    v_lshl_add_u32 v14, v12, 3, v13
    v_lshlrev_b32 v14, 7, v14
    v_bfe_u32 v15, v0, 3, 2
    v_lshl_add_u32 v14, v15, 5, v14
    v_and_b32 v15, 3, v0
    v_lshl_add_u32 v{V_TRB}, v15, 3, v14
    v_lshrrev_b32 v9, 5, v0
    v_lshl_add_u32 v9, v9, 4, v13
    v_bfe_u32 v10, v0, 4, 1
    v_lshl_add_u32 v9, v10, 2, v9
    v_lshlrev_b32 v9, 5, v9
    v_lshl_add_u32 v{V_GUB}, v15, 3, v9
    """)
    d1.pop(0)()
    a(f"""
    v_lshrrev_b32 v14, 5, v0
    v_lshlrev_b32 v14, 12, v14
    v_lshl_add_u32 v14, v10, 9, v14
    v_and_b32 v15, 15, v0
    v_lshl_add_u32 v{V_HST}, v15, 4, v14
    v_bfe_u32 v14, v0, 1, 3
    v_xor_b32 v14, v14, v12
    v_lshlrev_b32 v14, 4, v14
    v_lshl_add_u32 v14, v15, 7, v14
    v_add_u32 v{V_XR}, s{S_XB}, v14
    """)
    d1.pop(0)()
    make_srd(a, R_WS, P_WS, WS_USED)
    make_srd(a, R_GW, P_GW, 1152)
    p2.early()
    d1.pop(0)()
    a(f"""
    s_mul_i32 s{S_L}, s{S_XCD}, 9
    s_lshl_b32 s{S_T1}, s{S_B}, 1
    s_add_u32 s{S_L}, s{S_L}, s{S_T1}
    s_lshl_b32 s{S_GOFF}, s{S_L}, 7
    s_lshr_b32 s{S_HB}, s{S_TT}, 2
    s_mul_i32 s{S_HB}, s{S_HB}, {288*4096}
    s_and_b32 s{S_T1}, s{S_TT}, 3
    s_lshl_b32 s{S_T1}, s{S_T1}, 10
    s_add_u32 s{S_HB}, s{S_HB}, s{S_T1}
    s_mov_b32 s{S_K}, {f2u(GELU_K)}
    s_mov_b32 s{S_C2G}, {f2u(GELU_C2)}
    s_lshl_b32 s{S_T2}, s{S_MB}, 8
    s_lshl_b32 s{S_T1}, s{S_J}, 3
    s_add_u32 s{S_T2}, s{S_T2}, s{S_T1}
    s_add_u32 s{S_GT}, s{S_T2}, s{S_W}
    """)
    rot_base('w', 64*9216)
    d1.pop(0)()
    a(f"s_mul_i32 s{S_T1}, s{S_J}, 3")
    for i in range(3):
        a(f"s_cmp_lt_u32 s{S_T1}, {32 - i}")
        a(f"s_cselect_b32 s{S_U+i}, {f2u(QSCALE)}, 1.0")
    a(f"""
    s_lshl_b32 s{S_CR}, s{S_J}, 6
    s_add_u32 s{S_CR}, s{S_CR}, s{S_TT}
    s_lshl_b32 s{S_CR}, s{S_CR}, 12
    s_add_u32 s{S_CR}, s{S_CR}, {QN}
    s_mul_i32 s{S_H2}, s{S_XCD}, 36
    s_add_u32 s{S_H2}, s{S_H2}, 32
    s_add_u32 s{S_H2}, s{S_H2}, s{S_B}
    s_lshl_b32 s{S_H2}, s{S_H2}, 12
    s_add_u32 s{S_H2}, s{S_H2}, s{S_HB}
    s_lshl_b32 s{S_T3}, s{S_L}, 14
    s_add_u32 s{S_HB}, s{S_HB}, s{S_T3}
    """)
    d1.pop(0)()

    g_id = {}
    GLATE = opts.get('glate', True)
    GX, GW_, GX2, GW2 = (12, 16, 3, 5) if GLATE else (104, 108, 102, 103)
    def g_load():
        a(f"""
        v_lshlrev_b32 v8, 4, v0
        v_lshlrev_b32 v9, 2, v0
        v_cmp_gt_u32 vcc, 32, v0
        v_mov_b32 v10, {OOB}
        v_cndmask_b32 v9, v10, v9, vcc
        s_mul_i32 s{S_T1}, s{S_GT}, 1152
        buffer_load_dwordx4 {vr(GX,4)}, v8, {sr(R_X,4)}, s{S_T1} offen
        buffer_load_dword v{GX2}, v9, {sr(R_X,4)}, s{S_T1} offen offset:1024
        buffer_load_dwordx4 {vr(GW_,4)}, v8, {sr(R_GW,4)}, 0 offen
        """)
        g_id[a.role] = a.emit(f"buffer_load_dword v{GW2}, v9, {sr(R_GW,4)}, 0 offen offset:1024")
    def g_compute():
        a.wait_vm(g_id[a.role])
        a("v_mov_b32 v8, 0")
        a(f"v_dot2_f32_bf16 v8, v{GX2}, v{GW2}, v8")
        for i in range(4):
            a(f"v_dot2_f32_bf16 v8, v{GX+i}, v{GW_+i}, v8")
        a("s_nop 3")
        a(f"""
        v_add_f32_dpp v8, v8, v8 quad_perm:[1,0,3,2] row_mask:0xf bank_mask:0xf
        v_add_f32_dpp v8, v8, v8 quad_perm:[2,3,0,1] row_mask:0xf bank_mask:0xf
        v_add_f32_dpp v8, v8, v8 row_half_mirror row_mask:0xf bank_mask:0xf
        v_add_f32_dpp v8, v8, v8 row_mirror row_mask:0xf bank_mask:0xf
        v_readlane_b32 s{S_T0}, v8, 16
        v_readlane_b32 s{S_T2}, v8, 32
        v_readlane_b32 s{S_T1}, v8, 48
        v_add_f32 v8, s{S_T0}, v8
        v_add_f32 v8, s{S_T2}, v8
        v_add_f32 v8, s{S_T1}, v8
        v_max_f32 v8, {f2u(-40.0)}, v8
        v_min_f32 v8, {f2u(30.0)}, v8
        v_mul_f32 v8, {f2u(1.4426950408889634)}, v8
        v_exp_f32 v8, v8
        v_cmp_eq_u32 vcc, 0, v0
        v_mov_b32 v9, {OOB}
        v_cndmask_b32 v9, v9, v0, vcc
        s_lshl_b32 s{S_T0}, s{S_GT}, 2
        s_add_u32 s{S_T0}, s{S_T0}, {GB}
        buffer_store_dword v8, v9, {sr(R_WS,4)}, s{S_T0} offen
        """)

    pub = {}
    def do_barrier(stage):
        w = dict(dma_id[stage])
        if stage in pub: w = {r: max(w[r], pub[stage][r]) for r in w}
        a.wait_vm(w)
        a("s_waitcnt lgkmcnt(0)")
        a("s_barrier")

    PORD = (3, 2, 0, 1)
    def tiles_of(grp):
        if grp < 2:
            out = []
            for p in PORD:
                out.append((2*p, ('x', p), 0, 4096, 512, False))
                out.append((2*p+1, ('x', p), 24576, 4096, 512, False))
            return out
        return [(0, ('r', V_GU), 0, 1024, 256, False), (1, ('r', V_GU), 2048, 1024, 256, False)] + \
               [(2+t, ('x', t), 8192, 4096, 512, True) for t in range(4)]

    def pre_stage(stage):
        grp, k0, nk = stage_info(stage)
        slot = SLOT[stage % 3]
        if stage == 14:
            a(f"v_add_u32 v{V_TS2}, {slot}, v{V_TRB}")
            return
        a(f"v_add_u32 v{V_TS}, {slot}, v{V_TRB}")
        if grp == 2:
            a(f"v_add_u32 v{V_XA[0]}, {slot}, v{V_XR}")
            a(f"v_xor_b32 v{V_XA[1]}, 64, v{V_XA[0]}")
            a(f"v_add_u32 v{V_GU}, {slot}, v{V_GUB}")

    class Stage:
        def __init__(self, s, fbase):
            self.s = s; self.fbase = fbase
            self.grp, self.k0, self.nk = stage_info(s)
            self.tl = tiles_of(self.grp)
            nt = len(self.tl)
            if s == 13: segs = [(0, 13), (1, 13)]
            elif s == 14:
                segs = [(0, 14), (1, 14)]
                for ti in range(2, nt): segs += [(ti, 13), (ti, 14)]
            else: segs = [(ti, s) for ti in range(nt)]
            self.frags, self.mf = [], []
            ch = 2 if self.nk == 2 else 3
            for ti, ds in segs:
                for h in range(self.nk // ch):
                    base = len(self.frags)
                    for f in range(ch): self.frags.append((ti, h*ch + f, ds))
                    for u in ((0, 1) if h == 0 else (1, 0)):
                        for f in range(ch): self.mf.append((base + f, u))
            self.last_use = {}
            for i, (f, u) in enumerate(self.mf): self.last_use[f] = i
            rq = [('w', f, sec) for f in range(len(self.frags)) for sec in range(2)]
            if self.grp == 2:
                xr = [('x', u, kk) for u in range(2) for kk in range(2)]
                rq = rq[:2] + xr[:1] + rq[2:4] + xr[1:] + rq[4:]
            self.rq = rq
            self.reset()
        def reset(self):
            self.rp = 0; self.rid = {}; self.xid = {}; self.cur = None; self.naddr = 0; self.waited = 0
        def state(self): return (self.rp, dict(self.rid), dict(self.xid), self.cur, self.naddr, self.waited)
        def set_state(self, st): self.rp, self.rid, self.xid, self.cur, self.naddr, self.waited = st[0], dict(st[1]), dict(st[2]), st[3], st[4], st[5]
        def slot_free(self, f, done, prev, prev_done):
            g = f - 6
            if g >= 0: return self.last_use[g] < done
            if prev is None: return True
            return prev.last_use[len(prev.frags) + g] < prev_done
        def can_read(self, done, prev=None, prev_done=10**9):
            if self.rp >= len(self.rq): return False
            r = self.rq[self.rp]
            return r[0] == 'x' or self.slot_free(r[1], done, prev, prev_done)
        def issue_read(self):
            r = self.rq[self.rp]; self.rp += 1
            if r[0] == 'x':
                _, u, kk = r
                self.xid[(u, kk)] = a.emit(f"ds_read_b128 {vr(XF(u,self.k0+kk),4)}, v{V_XA[kk]} offset:{u*2048}")
                return
            _, f, sec = r
            ti, ks, ds = self.frags[f]
            t, ak, base, kst, sst, sw = self.tl[ti]
            if ak[0] == 'x':
                if self.cur != (ak, ds):
                    self.naddr += 1
                    a(f"v_xor_b32 v{V_TR[self.naddr & 1]}, {ak[1] << 5}, v{V_TS2 if ds == 14 else V_TS}")
                    self.cur = (ak, ds)
                reg = V_TR[self.naddr & 1]
            else:
                reg = ak[1]
            self.rid[f] = a.emit(f"ds_read_b64_tr_b16 {vr(WF(self.fbase+f)+2*sec,2)}, v{reg} offset:{base + ks*kst + sec*sst}")
        def mfma(self, i):
            f, u = self.mf[i]
            ti, ks, ds = self.frags[f]
            t, ak, base, kst, sst, sw = self.tl[ti]
            need = self.rid[f]
            if self.grp == 2: need = max(need, self.xid[(u, ks)])
            if need > self.waited:
                a.wait_lg(need); self.waited = need
            kk = stage_info(ds)[1] + ks
            acc = vr(ACC(t, u), 4)
            c = "0" if kk == 0 else acc
            wv, xv = vr(WF(self.fbase+f), 4), vr(XF(u, kk), 4)
            A_, B_ = (xv, wv) if sw else (wv, xv)
            if not opts.get('nomfma'): a(f"v_mfma_f32_16x16x32_bf16 {acc}, {A_}, {B_}, {c}")
        def tile_done_at(self, t):
            return max(i for i, (f, u) in enumerate(self.mf) if self.tl[self.frags[f][0]][0] == t)

    def gelu4(g, up, out2):
        t = T
        L = []
        for j in range(4): L.append(f"v_mul_f32 v{up+j}, v{g+j}, v{up+j}")
        for j in range(4): L.append(f"v_fma_f32 v{t+j}, v{g+j}, v{g+j}, s{S_K}")
        for j in range(4): L.append(f"v_mul_f32 v{g+j}, s{S_C2G}, v{g+j}")
        for j in range(4): L.append(f"v_mul_f32 v{t+j}, v{t+j}, v{g+j}")
        for j in range(4): L.append(f"v_exp_f32 v{t+j}, v{t+j}")
        for j in range(4): L.append(f"v_add_f32 v{t+j}, 1.0, v{t+j}")
        for j in range(4): L.append(f"v_rcp_f32 v{t+j}, v{t+j}")
        for j in range(4): L.append(f"v_mul_f32 v{t+j}, v{t+j}, v{up+j}")
        for j in range(2): L.append(f"v_cvt_pk_bf16_f32 v{out2+j}, v{t+2*j}, v{t+2*j+1}")
        return L
    def epair(grp, p, store, outbase=OUT):
        L = []
        for u in range(2):
            L += gelu4(ACC(2*p, u), ACC(2*p+1, u), outbase + 4*u + 2*(p & 1))
            if store:
                if u == 0:
                    L.append(f"s_add_u32 s{S_T3}, s{S_HB}, {HF + (grp*4 + (p & 2))*4096}")
                L.append(f"buffer_store_dwordx4 {vr(outbase+4*u,4)}, v{V_HST}, {sr(R_WS,4)}, s{S_T3} offen offset:{u*256}")
        return L
    def emit_all(L):
        for x in L: a(x)

    def qkv_addr_setup():
        a(f"""
        v_and_b32 v8, 15, v0
        v_lshrrev_b32 v9, 4, v0
        v_lshlrev_b32 v9, 10, v9
        v_lshl_add_u32 v{V_QS}, v8, 4, v9
        v_cmp_gt_u32 vcc, 8, v8
        v_mov_b32 v10, {OOB}
        v_cndmask_b32 v{V_QS3}, v10, v{V_QS}, vcc
        v_mov_b32 v9, s{S_U}
        v_mov_b32 v10, s{S_U+1}
        v_mov_b32 v11, s{S_U+2}
        v_cmp_le_u32 vcc, 2, v8
        v_cndmask_b32 v{V_SC1}, v9, v10, vcc
        v_cmp_le_u32 vcc, 4, v8
        v_cndmask_b32 v{V_SC2}, v10, v11, vcc
        """)
    def epi_qkv(ts):
        L = []
        sc = [f"s{S_U}", f"v{V_SC1}", f"v{V_SC2}", f"s{S_U+2}"]
        for t in ts:
            o = OUT + 4*(t & 1)
            for u in range(2):
                r = ACC(2+t, u)
                for i in range(4): L.append(f"v_mul_f32 v{r+i}, {sc[t]}, v{r+i}")
                L.append(f"v_cvt_pk_bf16_f32 v{o+2*u}, v{r}, v{r+1}")
                L.append(f"v_cvt_pk_bf16_f32 v{o+2*u+1}, v{r+2}, v{r+3}")
            L.append(f"buffer_store_dwordx4 {vr(o,4)}, v{V_QS3 if t == 3 else V_QS}, {sr(R_WS,4)}, s{S_CR} offen offset:{t*256}")
        return L
    def epi_h16():
        L = []
        for u in range(2):
            L += gelu4(ACC(0, u), ACC(1, u), OUT + 2*u)
        L.append(f"v_lshlrev_b32 v{T}, 4, v0")
        L.append(f"v_permlane16_swap_b32 v{OUT}, v{OUT+2}")
        L.append(f"v_permlane16_swap_b32 v{OUT+1}, v{OUT+3}")
        L.append(f"buffer_store_dwordx4 {vr(OUT,4)}, v{T}, {sr(R_WS,4)}, s{S_H2} offen")
        return L

    def pack_setup(rnd):
        l1 = newlab()
        a(f"""
        s_and_b32 s{S_T3}, s{S_W}, 3
        s_add_u32 s{S_T3}, s{S_T3}, {3*rnd}
        s_mul_i32 s{S_T1}, s{S_XCD}, 36
        s_lshl_b32 s{S_T0}, s{S_MB}, 2
        s_add_u32 s{S_T0}, s{S_T0}, s{S_T3}
        s_add_u32 s{S_T0}, s{S_T0}, s{S_T1}
        s_movk_i32 s{S_PKON}, 0x77
        """)
        if rnd: a(f"""
        s_add_u32 s{S_T1}, s{S_T1}, s{S_MB}
        s_add_u32 s{S_T1}, s{S_T1}, 32
        s_lshl_b32 s{S_T2}, s{S_XCD}, 2
        s_add_u32 s{S_T2}, s{S_T2}, s{S_MB}
        s_add_u32 s{S_T2}, s{S_T2}, 284
        s_cmp_lt_u32 s{S_MB}, 4
        s_cselect_b32 s{S_T1}, s{S_T1}, s{S_T2}
        s_cmp_eq_u32 s{S_T3}, 4
        s_cselect_b32 s{S_T0}, s{S_T1}, s{S_T0}
        s_add_u32 s{S_T1}, s{S_XCD}, 320
        s_cmp_eq_u32 s{S_T3}, 5
        s_cselect_b32 s{S_T0}, s{S_T1}, s{S_T0}
        s_lshl_b32 s{S_T1}, s{S_MB}, 3
        s_add_u32 s{S_T1}, s{S_T1}, s{S_XCD}
        s_cmp_lt_u32 s{S_T1}, 4
        s_cselect_b32 s{S_PKON}, s{S_PKON}, 0x30
        """)
        a(f"""
        s_bitcmp1_b32 s{S_PKON}, s{S_W}
        s_cselect_b32 s{S_PKON}, 1, 0
        s_mov_b32 s{S_T1}, s{S_B}
        s_mov_b32 s{R_PK+3}, 0x00020000
        s_lshr_b32 s{S_T2}, s{S_T0}, 2
        s_mul_i32 s{S_T3}, s{S_T2}, 57
        s_lshr_b32 s{S_T3}, s{S_T3}, 9
        s_mul_i32 s{S_T3}, s{S_T3}, 9
        s_sub_u32 s{S_T3}, s{S_T2}, s{S_T3}
        s_lshr_b32 s{S_PK}, s{S_T0}, 1
        s_lshl_b32 s{S_PK}, s{S_PK}, 5
        s_and_b32 s{S_T2}, s{S_T0}, 1
        s_lshl_b32 s{S_T2}, s{S_T2}, 3
        s_add_u32 s{S_PK}, s{S_PK}, s{S_T2}
        s_lshl_b32 s{S_T2}, s{S_T0}, 4
        s_cmp_eq_u32 s{S_T3}, 8
        s_cselect_b32 s{S_PK}, s{S_T2}, s{S_PK}
        s_cselect_b32 s{S_PKA}, 4, 16
        s_cselect_b32 s{S_PKB}, 8, 4
        s_mov_b32 s{S_PKC}, 2
        s_mul_i32 s{S_PKD}, s{S_T1}, 576
        s_add_u32 s{S_PKD}, s{S_PKD}, s{S_T0}
        s_mul_i32 s{S_PKD}, s{S_PKD}, 2304
        s_add_u32 s{S_PKD}, s{S_PKD}, {WDP}
        s_mov_b32 s{S_PKNB}, {288*2304}
        s_mov_b32 s{R_PK}, s{P_WD}
        s_and_b32 s{R_PK+1}, s{P_WD+1}, 0xffff
        s_mov_b32 s{R_PK+2}, {4608*1152}
        s_cmp_lt_u32 s{S_T0}, 288
        s_cbranch_scc1 {l1}
        """)
        m = a.skip_begin()
        a(f"""
        s_sub_u32 s{S_T0}, s{S_T0}, 288
        s_mul_i32 s{S_PKD}, s{S_T1}, 72
        s_add_u32 s{S_PKD}, s{S_PKD}, s{S_T0}
        s_mul_i32 s{S_PKD}, s{S_PKD}, 2304
        s_add_u32 s{S_PKD}, s{S_PKD}, {WOP}
        s_mov_b32 s{S_PKNB}, {36*2304}
        s_mov_b32 s{R_PK}, s{P_WO}
        s_and_b32 s{R_PK+1}, s{P_WO+1}, 0xffff
        s_mov_b32 s{R_PK+2}, {576*1152}
        s_mul_i32 s{S_PK}, s{S_T0}, 18
        s_sub_u32 s{S_T2}, s{S_T0}, 32
        s_mul_i32 s{S_T2}, s{S_T2}, 144
        s_add_u32 s{S_T2}, s{S_T2}, 16
        s_cmp_lt_u32 s{S_T0}, 32
        s_cselect_b32 s{S_PK}, s{S_PK}, s{S_T2}
        s_cselect_b32 s{S_PKA}, 4, 36
        s_cselect_b32 s{S_PKB}, 8, 72
        s_cselect_b32 s{S_PKC}, 2, 18
        """)
        a.skip_end(m)
        a.label(l1)
        a(f"""
        s_mul_i32 s{S_PK}, s{S_PK}, 1152
        s_mul_i32 s{S_T1}, s{S_T1}, 288
        s_add_u32 s{S_PK}, s{S_PK}, s{S_T1}
        s_mul_i32 s{S_PKA}, s{S_PKA}, 1152
        s_mul_i32 s{S_PKB}, s{S_PKB}, 1152
        s_mul_i32 s{S_PKC}, s{S_PKC}, 1152
        s_cmp_eq_u32 s{S_PKON}, 0
        s_cselect_b32 s{R_PK+2}, 0, s{R_PK+2}
        s_cselect_b32 s{S_PKD}, 0, s{S_PKD}
        """)
    pk_id = {}
    def pack_dma():
        a(f"""
        s_and_b32 s{S_PKL}, s{S_W}, 3
        s_mul_i32 s{S_PKL}, s{S_PKL}, 4608
        s_add_u32 s{S_PKL}, s{S_PKL}, 147456
        v_lshlrev_b32 v8, 4, v0
        v_add_u32 v9, {1152-288}, v8
        v_cmp_gt_u32 vcc, 18, v0
        v_cndmask_b32 v8, v9, v8, vcc
        s_mov_b32 exec_hi, 15
        """)
        for i in range(8):
            a(f"s_mov_b32 s{S_T0}, s{S_PK}")
            if i & 1: a(f"s_add_u32 s{S_T0}, s{S_T0}, s{S_PKC}")
            if i & 2: a(f"s_add_u32 s{S_T0}, s{S_T0}, s{S_PKB}")
            if i & 4: a(f"s_add_u32 s{S_T0}, s{S_T0}, s{S_PKA}")
            a(f"s_add_u32 m0, s{S_PKL}, {i*576}")
            pk_id[a.role] = a.emit(f"buffer_load_dwordx4 v8, {sr(R_PK,4)}, s{S_T0} offen lds")
        a("s_mov_b32 exec_hi, -1")
    def pack_finish(P):
        lg0 = a.lg
        a(f"""
        v_lshrrev_b32 v8, 5, v0
        v_bfe_u32 v9, v0, 2, 2
        v_lshl_add_u32 v8, v8, 2, v9
        v_mul_u32_u24 v8, 288, v8
        v_add_u32 v8, s{S_PKL}, v8
        v_and_b32 v9, 1, v0
        v_lshl_add_u32 v10, v9, 5, v8
        v_bfe_u32 v9, v0, 1, 1
        v_lshl_add_u32 v10, v9, 3, v10
        v_and_b32 v9, 3, v0
        v_lshl_add_u32 v8, v9, 3, v8
        v_bfe_u32 v9, v0, 4, 1
        v_lshl_add_u32 v10, v9, 4, v10
        v_mul_u32_u24 v11, 144, v9
        v_add_u32 v11, v11, v8
        """)
        a.wait_vm(pk_id[a.role])
        offs = [0, 64, 144, 144+64]
        def rd(i, r):
            v, o = (10, offs[i]) if i < 4 else (11, 128)
            a(f"ds_read_b64_tr_b16 {vr(r,2)}, v{v} offset:{o}")
            a(f"ds_read_b64_tr_b16 {vr(r+2,2)}, v{v} offset:{o+2304}")
        def st(i, r):
            if i < 4: a(f"buffer_store_dwordx4 {vr(r,4)}, v8, {sr(R_WS,4)}, s{S_PKD if i < 2 else S_T0} offen offset:{(i&1)*1024}")
            else: a(f"buffer_store_dwordx4 {vr(r,4)}, v9, {sr(R_WS,4)}, s{S_PKD} offen offset:2048")
        n = len(P)
        for i in range(n): rd(i, P[i])
        a(f"""
        v_mul_lo_u32 v9, v9, s{S_PKNB}
        v_lshrrev_b32 v8, 5, v0
        v_lshl_add_u32 v9, v8, 7, v9
        v_and_b32 v8, 15, v0
        v_lshl_add_u32 v9, v8, 4, v9
        v_cmp_gt_u32 vcc, 8, v8
        v_mov_b32 v8, {OOB}
        v_cndmask_b32 v9, v8, v9, vcc
        v_lshlrev_b32 v8, 4, v0
        s_cmp_eq_u32 s{S_PKON}, 0
        s_cselect_b32 s{S_T0}, {OOB}, 0
        v_or_b32 v8, s{S_T0}, v8
        v_or_b32 v9, s{S_T0}, v9
        s_add_u32 s{S_T0}, s{S_PKD}, s{S_PKNB}
        """)
        done = 0
        while done < 5:
            a("s_waitcnt lgkmcnt(0)")
            m = min(n, 5 - done)
            for i in range(m): st(done + i, P[i])
            done += m
            for i in range(min(n, 5 - done)): rd(done + i, P[i])
        a.lg = lg0

    def one_wave(wv, fn):
        l = newlab()
        a(f"s_cmp_lg_u32 s{S_W}, {wv}")
        a(f"s_cbranch_scc1 {l}")
        m = a.skip_begin(); vm0 = dict(a.vmr)
        fn()
        a.vmr = vm0
        a.skip_end(m)
        a.label(l)
    RING = [24, 28, 32, 36, 40]
    def side(s, role):
        if role == 'B' and s == 10: one_wave(7, lambda: p2.mail(S_J, S_MB, S_B))
        if role == 'B' and s == 13: one_wave(7, lambda: p2.mail2(S_J, S_MB, S_B))
        dma(s + (2 if role == 'A' else 3))
        if s == opts.get('tg1', 99) and role == 'A':
            a(f"""
            v_mul_u32_u24 v8, 9216, v0
            s_lshl_b32 s{S_T1}, s{S_MB}, 6
            s_lshl_b32 s{S_T2}, s{S_MB}, 3
            s_add_u32 s{S_T2}, s{S_T2}, 512
            s_bitcmp1_b32 s{S_W}, 1
            s_cselect_b32 s{S_T1}, s{S_T2}, s{S_T1}
            s_cselect_b64 exec, 0xff, -1
            s_mul_i32 s{S_T1}, s{S_T1}, 9216
            s_lshl_b32 s{S_T2}, s{S_L}, 7
            s_add_u32 s{S_T1}, s{S_T1}, s{S_T2}
            s_bitcmp1_b32 s{S_W}, 0
            s_cselect_b32 s{R_SEL}, s{R_U}, s{R_G}
            s_cselect_b32 s{R_SEL+1}, s{R_U+1}, s{R_G+1}
            s_mov_b32 s{R_SEL+2}, s{R_G+2}
            s_mov_b32 m0, {163584 - 128}
            buffer_load_dword v8, {sr(R_SEL,4)}, s{S_T1} offen offset:128 lds
            s_mov_b64 exec, -1
            """)
        if opts.get('pkB', True):
            if role == 'B':
                if s == 7: pack_setup(0)
                if s == 8: pack_dma()
                if s == 9:
                    pack_finish(RING); pack_setup(1); pack_dma()
                if s == 10: pack_finish(RING)
        else:
            if s == 6: pack_setup(role == 'B')
            if s == 8 and role == 'A': pack_dma()
            if s == 9:
                if role == 'A': pack_finish([12, 16])
                else: pack_dma()
            if s == 10 and role == 'B': pack_finish(RING)
        if s == 8: qkv_addr_setup()
        if s == (9 if GLATE else 2): g_load()
        if s == (10 if GLATE else 5): g_compute()
        if s == opts.get('su' + role, 12): p2.setup(role)
        if s == 11: emit_all(epair(0, 0, False))
        if s == 12:
            p2.patterns(role)
            if role == 'A':
                p2.reset_flags(); a.lg -= 1

    stages = []
    fb = 0
    for s in range(NST):
        st = Stage(s, fb); stages.append(st); fb += len(st.frags)
    PRE = 9
    def prime(st):
        n = PRE + (4 if st.grp == 2 else 0)
        while st.rp < n: st.issue_read()
    pre_stage(0)
    d1.pop(0)()
    assert not d1
    if opts.get('d2early'):
        with only('B'): dma(2)
    stamp('issued')
    a.wait_vm(dma_id[0])
    a("s_waitcnt lgkmcnt(0)")
    a(f"s_add_u32 s{p2.S_TAG}, s{p2.S_TAG}, 1")
    a("s_barrier")
    stamp('bar0')
    if not opts.get('d2early'):
        with only('B'): dma(2)
    prime(stages[0])
    TB = opts.get('tailb', 3)
    for s in range(NST):
        st = stages[s]
        n = len(st.mf)
        last = s == NST - 1
        blocks = {}
        fill = []
        rate = opts.get('rate', 1.45)
        if s == 9:
            if opts.get('blk9', True):
                blocks[st.tile_done_at(7) + 1] = epi_qkv((2, 3))
                blocks[st.tile_done_at(5) + 1] = epi_h16()
                blocks[st.tile_done_at(1) + 1] = epi_qkv((0, 1))
            else:
                fill = [(0, x) for x in epi_qkv((2, 3)) + epi_h16() + epi_qkv((0, 1))]
                rate = 2.2
                dead = {st.tile_done_at(7) + 1: 98, st.tile_done_at(5) + 1: 26, st.tile_done_at(1) + 1: 0}
        if s == 11:
            fill = [(st.tile_done_at(7), x) for x in epair(0, 3, False)] + [(st.tile_done_at(5), x) for x in epair(0, 2, True)]
            rate = opts.get('rate11', 1.8)
        if s == 12:
            fill = [(0, x) for x in epair(0, 1, True)]
            rate = 1.2
            dead = {st.tile_done_at(1) + 1: 0}
        if s == 14:
            fill = [(st.tile_done_at(7), x) for x in epair(1, 3, False)] + \
                   [(st.tile_done_at(5), x) for x in epair(1, 2, True)] + \
                   [(st.tile_done_at(1), x) for x in epair(1, 0, False)]
            if opts.get('blk14', False):
                fill = []
                blocks[st.tile_done_at(7) + 4] = epair(1, 3, False)
                blocks[st.tile_done_at(5) + 4] = epair(1, 2, True)
                blocks[st.tile_done_at(1) + 4] = epair(1, 0, False)
        if s not in (9, 12) or blocks: dead = {}
        credit = 0.0
        i = 0
        while i < n:
            if not last and st.rp == len(st.rq): break
            st.mfma(i); i += 1
            if st.can_read(i): st.issue_read()
            if i in blocks: emit_all(blocks.pop(i))
            if s == 13 and i == 2:
                with only('A'):
                    p2.kv_probe(112, 113)
                    if opts.get('aprio'): a(f"s_setprio {opts.get('aprio')}")
            if s == 14:
                tries = opts.get('ekv', (8, 100))
                if i in tries:
                    with only('A'): p2.kv_try(f"kt{i}", 112, 113)
                if i + 30 in tries:
                    with only('A'): p2.kv_probe(112, 113)
                if i == n - 12:
                    with only('B'): p2.g_probe(112, 113)
            if fill and fill[0][0] + 3 < i:
                credit += rate
                while credit >= 1 and fill and fill[0][0] + 3 < i:
                    a(fill.pop(0)[1]); credit -= 1
            if i in dead:
                while len(fill) > dead[i]: a(fill.pop(0)[1])
        assert not blocks
        emit_all([x for _, x in fill])
        if s == 9: pub[11] = dict(a.vmr)
        if s == 12: pub[14] = dict(a.vmr)
        if last:
            stamp(f'M{s}')
            emit_all(epair(1, 1, True))
            break
        nx = stages[s + 1]
        lA, lJ = newlab(), newlab()
        a(f"s_cmp_lt_u32 s{S_W}, 4")
        a(f"s_cbranch_scc1 {lA}")
        snap = a.snapshot(); lg0 = a.lg; st0 = st.state()
        a.role = 'B'
        for k in range(i, n):
            if k == n - TB:
                do_barrier(s + 1); st.waited = a.lg
            st.mfma(k)
        im = stamp(f'M{s}')
        side(s, 'B')
        pre_stage(s + 1)
        isx = stamp(f'S{s}')
        prime(nx)
        a(f"s_branch {lJ}")
        snapB = a.snapshot(); lgB = a.lg; nxB = nx.state()
        a.label(lA)
        a.restore(snap); a.lg = lg0; st.set_state(st0); nx.reset()
        if s == 12: assert all(not (st.mf[k][1] == 0 and st.frags[st.mf[k][0]][1] < 3) for k in range(i, n))
        if s == 11: assert st.tile_done_at(1) < i - 4
        a.role = 'A'
        stamp('', im)
        side(s, 'A')
        pre_stage(s + 1)
        do_barrier(s + 1)
        stamp('', isx)
        st.waited = a.lg
        npre = PRE + (4 if nx.grp == 2 else 0)
        while nx.rp < npre and nx.rp < 5 and nx.can_read(0, st, i): nx.issue_read()
        for k in range(i, n):
            st.mfma(k)
            for _ in range(2):
                if nx.rp < npre and nx.can_read(0, st, k + 1): nx.issue_read()
        prime(nx)
        assert a.lg == lgB and nx.state() == nxB, (a.lg, lgB)
        a.role = None
        a.merge(snapB)
        a.label(lJ)
    stamp('p1end')
    stamp.keep = None
    a(f"s_cmp_ge_u32 s{S_W}, 4")
    a(f"s_cbranch_scc1 {name}_gemm")
    snap = a.snapshot()
    n0 = len(stamp.labels)
    a.role = 'A'
    p2.attention()
    la = list(stamp.labels); del stamp.labels[n0:]
    a.restore(snap)
    a.role = 'B'
    a.label(f"{name}_gemm")
    p2.gemm()
    lb = list(stamp.labels)
    a.stamps = la[:n0] + ["/".join(x) for x in zip(la[n0:] + ["-"]*12, lb[n0:])]
    a.label(f"{name}_end")
    a("s_endpgm")
    return a, kdesc(name), dict(grid=256, block=512, lds=163840)
```

```python
from common import *
from p2 import Phase2, F_C1, F_C2, F_C3

def gen(name, opts=None):
    opts = opts or {}
    a = Asm()
    XF = lambda u, ks: 112 + (ks*2+u)*4
    ACC = lambda t, u: 48 + (t*2+u)*4
    WF = lambda i: 24 + (i % 6)*4
    V_TRB, V_DMA, V_HST, V_XD0, V_XD1, V_XR = 1, 2, 4, 5, 6, 7
    V_TR = [20, 21]; V_TS = 22; V_STAMP = 23
    T = 8; OUT = 12
    V_XA = [18, 19]
    V_TS2 = 7
    V_QS3, V_SC = 3, [5, 6]
    R_X, R_0, R_1, R_WS, R_GW, R_PK = 28, 32, 36, 44, 52, 72
    S_W, S_XCD, S_B, S_MB, S_L = 56, 57, 58, 59, 61
    S_TOK, S_T0, S_T1, S_T2, S_T3 = 62, 63, 64, 65, 66
    S_GOFF, S_HB, S_Q = 67, 68, 69
    S_K, S_C2G = 76, 77
    S_XB, S_TT, S_PKL, S_R, S_WB = 78, 79, 81, 84, 85
    S_PK, S_PKA, S_PKB, S_PKC, S_PKD, S_PKNB, S_PKON = 86, 87, 88, 89, 90, 91, 92
    S_U = 93
    SLOT = [0, 49152, 98304]
    def stage_info(s):
        if s < 9: return 0, 2*s, 2
        if s < 12: return 1, 6*(s-9), 6
        return 2, 6*(s-12), 6
    stamp = Stamper(a, opts.get('stamp', False), V_STAMP, S_W, R_WS, WS_USED)
    stamp.keep = opts.get('keep1')
    stamp.real = opts.get('real', False)
    p2 = Phase2(a, name, opts, stamp)
    if opts.get('dbg'): stamp.dbg = p2.R_DBG
    lab = [0]
    def newlab():
        lab[0] += 1; return f"{name}_l{lab[0]}"

    a.raw(f".globl {name}\n.p2align 8\n.type {name},@function\n{name}:")
    a("s_cmp_ge_u32 s2, 256")
    a(f"s_cbranch_scc1 {name}_end")
    stamp('start')
    load_kernargs(a)
    a(f"""
    v_lshrrev_b32 v1, 6, v0
    v_and_b32 v0, 63, v0
    s_and_b32 s{S_XCD}, s2, 7
    v_readfirstlane_b32 s{S_W}, v1
    s_lshr_b32 s{S_T0}, s2, 3
    s_and_b32 s{S_B}, s{S_T0}, 3
    s_lshr_b32 s{S_MB}, s{S_T0}, 2
    s_getpc_b64 s[26:27]
    """)
    a.label(f"{name}_pc")
    ra, rb, rc = opts.get('rot', (1, 2, 1))
    a(f"""
    s_lshl_b32 s{S_T0}, s{S_T0}, 3
    s_add_u32 s{S_T0}, s{S_T0}, s{S_W}
    s_mul_i32 s{S_T0}, s{S_T0}, 384
    v_min_u32 v8, 2, v0
    v_lshlrev_b32 v8, 7, v8
    v_add_u32 v8, s{S_T0}, v8
    v_min_u32 v8, all_code_end-{name}_pc-4, v8
    s_mov_b32 m0, 163584
    s_lshl_b32 s{S_TT}, s{S_MB}, 3
    global_load_lds_dword v8, s[26:27]
    s_add_u32 s{S_TT}, s{S_TT}, s{S_W}
    s_mul_i32 s{S_TOK}, s{S_TT}, {32*1152}
    s_lshl_b32 s{S_WB}, s{S_W}, 10
    s_lshl_b32 s{S_XB}, s{S_W}, 12
    s_add_u32 s{S_XB}, s{S_XB}, 16384
    v_lshrrev_b32 v8, 3, v0
    v_lshrrev_b32 v9, 4, v0
    v_xor_b32 v9, v9, v0
    v_and_b32 v9, 7, v9
    v_mul_u32_u24 v10, 1152, v8
    v_lshl_add_u32 v{V_XD0}, v9, 4, v10
    v_xor_b32 v9, 4, v9
    v_add_u32 v10, {8*1152}, v10
    v_lshl_add_u32 v{V_XD1}, v9, 4, v10
    s_and_b32 s{S_T1}, s{S_W}, 1
    s_lshl_b32 s{S_T0}, s{S_T1}, 1
    v_bfe_u32 v13, v0, 4, 1
    v_or_b32 v13, s{S_T0}, v13
    v_bfe_u32 v14, v0, 1, 2
    v_xor_b32 v13, v13, v14
    v_lshlrev_b32 v13, 5, v13
    v_and_b32 v14, 1, v0
    v_lshl_add_u32 v13, v14, 4, v13
    s_lshl_b32 s{S_T0}, s{S_W}, 3
    v_add_u32 v14, s{S_T0}, v8
    s_mul_i32 s{S_R}, s{S_MB}, {ra}
    s_mul_i32 s{S_T0}, s{S_B}, {rb}
    s_add_u32 s{S_R}, s{S_R}, s{S_T0}
    s_mul_i32 s{S_T0}, s{S_XCD}, {rc}
    s_add_u32 s{S_R}, s{S_R}, s{S_T0}
    s_mul_i32 s{S_T0}, s{S_R}, 57
    s_lshr_b32 s{S_T0}, s{S_T0}, 9
    s_mul_i32 s{S_T0}, s{S_T0}, 9
    s_sub_u32 s{S_R}, s{S_R}, s{S_T0}
    """)
    ROT = {'w': (S_GOFF, 96), 'x': (S_TOK, 97)}
    def rot(dst, kind, m):
        hi, lo = ROT[kind]
        a(f"s_cmp_ge_u32 s{S_R}, {9 - m}")
        a(f"s_cselect_b32 s{dst}, s{lo}, s{hi}")
    def rot_base(kind, stride):
        hi, lo = ROT[kind]
        a(f"s_mul_i32 s{lo}, s{S_R}, {stride}")
        a(f"s_add_u32 s{hi}, s{hi}, s{lo}")
        a(f"s_sub_u32 s{lo}, s{hi}, {9*stride}")
    rot_base('x', 128)
    a(f"s_cmp_eq_u32 s{S_B}, 3")
    a(f"s_cbranch_scc1 {name}_qtype")
    snap0 = a.snapshot(); vm0_ = dict(a.vmr)

    class only:
        def __init__(self, role): self.role = role
        def __enter__(self):
            self.l = newlab()
            a(f"s_cmp_ge_u32 s{S_W}, 4")
            a(f"s_cbranch_scc{'1' if self.role=='A' else '0'} {self.l}")
            self.m = a.skip_begin(); a.role = self.role
        def __exit__(self, *e):
            a.skip_end(self.m); a.role = None
            a.label(self.l)
    def one_wave(wv, fn):
        l = newlab()
        a(f"s_cmp_lg_u32 s{S_W}, {wv}")
        a(f"s_cbranch_scc1 {l}")
        m = a.skip_begin(); vm0 = dict(a.vmr)
        fn()
        a.vmr = vm0
        a.skip_end(m)
        a.label(l)

    PORD = (3, 2, 0, 1)
    def tiles_of(grp, kind):
        im1 = 8192 if grp == 0 else 24576
        if kind == 'Q': return [(4*im + t, ('x', t), im*im1, 4096, 512, True) for im in range(2) for t in range(4)]
        out = []
        for p in PORD:
            out.append((2*p, ('x', p), 0, 4096, 512, False))
            out.append((2*p+1, ('x', p), im1, 4096, 512, False))
        return out
    def pre_stage(stage):
        grp, k0, nk = stage_info(stage)
        slot = SLOT[stage % 3]
        if stage == 14:
            a(f"v_add_u32 v{V_TS2}, {slot}, v{V_TRB}")
            return
        a(f"v_add_u32 v{V_TS}, {slot}, v{V_TRB}")
        if grp == 0:
            a(f"v_add_u32 v{V_XA[0]}, {slot}, v{V_XR}")
            a(f"v_xor_b32 v{V_XA[1]}, 64, v{V_XA[0]}")

    class Stage:
        def __init__(self, s, fbase, kind):
            self.s = s; self.fbase = fbase
            self.grp, self.k0, self.nk = stage_info(s)
            self.tl = tiles_of(self.grp, kind)
            nt = len(self.tl)
            if s == 13: segs = [(0, 13), (1, 13)]
            elif s == 14:
                segs = [(0, 14), (1, 14)]
                for ti in range(2, nt): segs += [(ti, 13), (ti, 14)]
            else: segs = [(ti, s) for ti in range(nt)]
            self.frags, self.mf = [], []
            ch = 2 if self.nk == 2 else 3
            for ti, ds in segs:
                for h in range(self.nk // ch):
                    base = len(self.frags)
                    for f in range(ch): self.frags.append((ti, h*ch + f, ds))
                    for u in ((0, 1) if h == 0 else (1, 0)):
                        for f in range(ch): self.mf.append((base + f, u))
            self.last_use = {}
            for i, (f, u) in enumerate(self.mf): self.last_use[f] = i
            rq = [('w', f, sec) for f in range(len(self.frags)) for sec in range(2)]
            if self.grp == 0:
                xr = [('x', u, kk) for u in range(2) for kk in range(2)]
                rq = rq[:2] + xr[:1] + rq[2:4] + xr[1:] + rq[4:]
            self.rq = rq
            self.reset()
        def reset(self):
            self.rp = 0; self.rid = {}; self.xid = {}; self.cur = None; self.naddr = 0; self.waited = 0
        def state(self): return (self.rp, dict(self.rid), dict(self.xid), self.cur, self.naddr, self.waited)
        def set_state(self, st): self.rp, self.rid, self.xid, self.cur, self.naddr, self.waited = st[0], dict(st[1]), dict(st[2]), st[3], st[4], st[5]
        def slot_free(self, f, done, prev, prev_done):
            g = f - 6
            if g >= 0: return self.last_use[g] < done
            if prev is None: return True
            return prev.last_use[len(prev.frags) + g] < prev_done
        def can_read(self, done, prev=None, prev_done=10**9):
            if self.rp >= len(self.rq): return False
            r = self.rq[self.rp]
            return r[0] == 'x' or self.slot_free(r[1], done, prev, prev_done)
        def issue_read(self):
            r = self.rq[self.rp]; self.rp += 1
            if r[0] == 'x':
                _, u, kk = r
                self.xid[(u, kk)] = a.emit(f"ds_read_b128 {vr(XF(u,self.k0+kk),4)}, v{V_XA[kk]} offset:{u*2048}")
                return
            _, f, sec = r
            ti, ks, ds = self.frags[f]
            t, ak, base, kst, sst, sw = self.tl[ti]
            if ak[0] == 'x':
                if self.cur != (ak, ds):
                    self.naddr += 1
                    a(f"v_xor_b32 v{V_TR[self.naddr & 1]}, {ak[1] << 5}, v{V_TS2 if ds == 14 else V_TS}")
                    self.cur = (ak, ds)
                reg = V_TR[self.naddr & 1]
            else:
                reg = ak[1]
            self.rid[f] = a.emit(f"ds_read_b64_tr_b16 {vr(WF(self.fbase+f)+2*sec,2)}, v{reg} offset:{base + ks*kst + sec*sst}")
        def mfma(self, i):
            f, u = self.mf[i]
            ti, ks, ds = self.frags[f]
            t, ak, base, kst, sst, sw = self.tl[ti]
            need = self.rid[f]
            if self.grp == 0: need = max(need, self.xid[(u, ks)])
            if need > self.waited:
                a.wait_lg(need); self.waited = need
            kk = stage_info(ds)[1] + ks
            acc = vr(ACC(t, u), 4)
            c = "0" if kk == 0 else acc
            wv, xv = vr(WF(self.fbase+f), 4), vr(XF(u, kk), 4)
            A_, B_ = (xv, wv) if sw else (wv, xv)
            if not opts.get('nomfma'): a(f"v_mfma_f32_16x16x32_bf16 {acc}, {A_}, {B_}, {c}")
        def tile_done_at(self, t):
            return max(i for i, (f, u) in enumerate(self.mf) if self.tl[self.frags[f][0]][0] == t)

    def gelu4(g, up, out2):
        t = T
        L = []
        for j in range(4): L.append(f"v_mul_f32 v{up+j}, v{g+j}, v{up+j}")
        for j in range(4): L.append(f"v_fma_f32 v{t+j}, v{g+j}, v{g+j}, s{S_K}")
        for j in range(4): L.append(f"v_mul_f32 v{g+j}, s{S_C2G}, v{g+j}")
        for j in range(4): L.append(f"v_mul_f32 v{t+j}, v{t+j}, v{g+j}")
        for j in range(4): L.append(f"v_exp_f32 v{t+j}, v{t+j}")
        for j in range(4): L.append(f"v_add_f32 v{t+j}, 1.0, v{t+j}")
        for j in range(4): L.append(f"v_rcp_f32 v{t+j}, v{t+j}")
        for j in range(4): L.append(f"v_mul_f32 v{t+j}, v{t+j}, v{up+j}")
        for j in range(2): L.append(f"v_cvt_pk_bf16_f32 v{out2+j}, v{t+2*j}, v{t+2*j+1}")
        return L
    def epair(grp, p, store, outbase=OUT):
        L = []
        for u in range(2):
            L += gelu4(ACC(2*p, u), ACC(2*p+1, u), outbase + 4*u + 2*(p & 1))
            if store:
                if u == 0:
                    L.append(f"s_add_u32 s{S_T3}, s{S_HB}, {HF + (grp*4 + (p & 2))*4096}")
                L.append(f"buffer_store_dwordx4 {vr(outbase+4*u,4)}, v{V_HST}, {sr(R_WS,4)}, s{S_T3} offen offset:{u*256}")
        return L
    def emit_all(L):
        for x in L: a(x)


    def phase1(kind, setup2, side, plan, hooks):
        NST = 15 if kind == 'F' else 12
        stride, off1, goff = (9216, 0, 128) if kind == 'F' else (3456, 128, 256)
        dma_id = {}
        def note(stage, idd):
            d = dma_id.setdefault(stage, {})
            for r in ('A', 'B'):
                if a.role in (None, r): d[r] = idd[r]
        def dma_pieces(stage):
            grp, k0, nk = stage_info(stage)
            slot = SLOT[stage % 3]
            m_ = k0 // 2
            P = []
            def piece(kd, m, add, m0reg, m0add, vreg, srd):
                def f():
                    rot(S_T0, kd, m)
                    a(f"s_add_u32 m0, s{m0reg}, {slot + m0add}")
                    a(f"s_add_u32 s{S_T0}, s{S_T0}, {add}")
                    note(stage, a.emit(f"buffer_load_dwordx4 v{vreg}, {sr(srd,4)}, s{S_T0} offen lds"))
                P.append(f)
            for i in range(nk // 2):
                for im in range(2):
                    piece('w', m_ + i, (m_ + i)*64*stride + grp*goff + im*off1, S_WB, im*(8192 if grp == 0 else 24576) + i*8192, V_DMA, R_1 if im else R_0)
            if grp == 0:
                for i in range(4):
                    piece('x', m_, m_*128 + (i >> 1)*16*1152, S_XB, i*1024, V_XD1 if i & 1 else V_XD0, R_X)
            return P
        def dma(stage):
            if stage < NST:
                for f in dma_pieces(stage): f()
        pub = {}
        def do_barrier(stage):
            w = dict(dma_id[stage])
            if stage in pub: w = {r: max(w[r], pub[stage][r]) for r in w}
            a.wait_vm(w)
            a("s_waitcnt lgkmcnt(0)")
            a("s_barrier")
        dma(0)
        d1 = dma_pieces(1)
        a(f"s_add_u32 s10, s{P_WS}, {EPO}")
        a(f"s_addc_u32 s11, s{P_WS+1}, 0")
        a(f"s_load_dword s{p2.S_TAG}, s[10:11], 0")
        a(f"""
        v_lshrrev_b32 v12, 4, v0
        v_bfe_u32 v13, v0, 2, 2
        v_lshl_add_u32 v14, v12, 3, v13
        v_lshlrev_b32 v14, 7, v14
        v_bfe_u32 v15, v0, 3, 2
        v_lshl_add_u32 v14, v15, 5, v14
        v_and_b32 v15, 3, v0
        v_lshl_add_u32 v{V_TRB}, v15, 3, v14
        """)
        d1.pop(0)()
        a(f"""
        v_and_b32 v15, 15, v0
        v_bfe_u32 v14, v0, 1, 3
        v_xor_b32 v14, v14, v12
        v_lshlrev_b32 v14, 4, v14
        v_lshl_add_u32 v14, v15, 7, v14
        v_add_u32 v{V_XR}, s{S_XB}, v14
        """)
        d1.pop(0)()
        make_srd(a, R_WS, P_WS, WS_USED)
        p2.early()
        d1.pop(0)()
        setup2()
        d1.pop(0)()
        stages = []
        fb = 0
        for s in range(NST):
            st = Stage(s, fb, kind); stages.append(st); fb += len(st.frags)
        PRE = 9
        def prime(st):
            n = PRE + (4 if st.grp == 0 else 0)
            while st.rp < n: st.issue_read()
        pre_stage(0)
        d1.pop(0)(); d1.pop(0)()
        a.wait_vm(dma_id[0])
        a("s_waitcnt lgkmcnt(0)")
        a(f"s_add_u32 s{p2.S_TAG}, s{p2.S_TAG}, 1")
        a("s_barrier")
        if kind == 'F': stamp('bar0')
        with only('B'): dma(2)
        prime(stages[0])
        TB = opts.get('tailb', 3)
        for s in range(NST):
            st = stages[s]
            n = len(st.mf)
            last = s == NST - 1
            blocks, fill, rate, dead = plan(s, st)
            credit = 0.0
            i = 0
            if 0 in blocks: emit_all(blocks.pop(0))
            while i < n:
                if not last and st.rp == len(st.rq): break
                st.mfma(i); i += 1
                if st.can_read(i): st.issue_read()
                if i in blocks: emit_all(blocks.pop(i))
                hooks(s, i, n)
                if fill and fill[0][0] + 3 < i:
                    credit += rate
                    while credit >= 1 and fill and fill[0][0] + 3 < i:
                        a(fill.pop(0)[1]); credit -= 1
                if i in dead:
                    while len(fill) > dead[i]: a(fill.pop(0)[1])
            assert not blocks
            emit_all([x for _, x in fill])
            if s == 12: pub[14] = dict(a.vmr)
            if last: break
            nx = stages[s + 1]
            lA, lJ = newlab(), newlab()
            a(f"s_cmp_lt_u32 s{S_W}, 4")
            a(f"s_cbranch_scc1 {lA}")
            snap = a.snapshot(); lg0 = a.lg; st0 = st.state()
            a.role = 'B'
            for k in range(i, n):
                if k == n - TB:
                    do_barrier(s + 1); st.waited = a.lg
                st.mfma(k)
            side(s, 'B', True); dma(s + 3); side(s, 'B', False)
            pre_stage(s + 1)
            isx = stamp(f'S{s}') if kind == 'F' else -1
            prime(nx)
            a(f"s_branch {lJ}")
            snapB = a.snapshot(); lgB = a.lg; nxB = nx.state()
            a.label(lA)
            a.restore(snap); a.lg = lg0; st.set_state(st0); nx.reset()
            if s == 12: assert all(not (st.mf[k][1] == 0 and st.frags[st.mf[k][0]][1] < 3) for k in range(i, n))
            if kind == 'F' and s == 11: assert st.tile_done_at(1) < i - 4
            if kind == 'F' and s == 8: assert st.tile_done_at(5) < i - 4
            a.role = 'A'
            dma(s + 2); side(s, 'A', False)
            pre_stage(s + 1)
            do_barrier(s + 1)
            stamp('', isx)
            st.waited = a.lg
            npre = PRE + (4 if nx.grp == 0 else 0)
            while nx.rp < npre and nx.rp < 5 and nx.can_read(0, st, i): nx.issue_read()
            for k in range(i, n):
                st.mfma(k)
                for _ in range(2):
                    if nx.rp < npre and nx.can_read(0, st, k + 1): nx.issue_read()
            prime(nx)
            assert a.lg == lgB and nx.state() == nxB, (a.lg, lgB)
            a.role = None
            a.merge(snapB)
            a.label(lJ)

    a(f"""
    v_mul_u32_u24 v15, 9216, v14
    v_add_u32 v{V_DMA}, v13, v15
    s_mul_i32 s{S_L}, s{S_XCD}, 9
    s_mul_i32 s{S_T1}, s{S_B}, 3
    s_add_u32 s{S_L}, s{S_L}, s{S_T1}
    s_lshl_b32 s{S_GOFF}, s{S_L}, 7
    """)
    rot_base('w', 64*9216)
    a("s_waitcnt lgkmcnt(0)")
    make_srd(a, R_X, P_X, 2048*1152)
    make_srd(a, R_0, P_WG, 576*9216)
    make_srd(a, R_1, P_WU, 576*9216)
    def f_setup2():
        a(f"""
        v_lshrrev_b32 v14, 5, v0
        v_lshlrev_b32 v14, 12, v14
        v_bfe_u32 v10, v0, 4, 1
        v_lshl_add_u32 v14, v10, 9, v14
        v_lshl_add_u32 v{V_HST}, v15, 4, v14
        s_lshr_b32 s{S_HB}, s{S_TT}, 2
        s_mul_i32 s{S_HB}, s{S_HB}, {288*4096}
        s_and_b32 s{S_T1}, s{S_TT}, 3
        s_lshl_b32 s{S_T1}, s{S_T1}, 10
        s_add_u32 s{S_HB}, s{S_HB}, s{S_T1}
        s_lshl_b32 s{S_T3}, s{S_L}, 14
        s_add_u32 s{S_HB}, s{S_HB}, s{S_T3}
        s_mov_b32 s{S_K}, {f2u(GELU_K)}
        s_mov_b32 s{S_C2G}, {f2u(GELU_C2)}
        """)
    def f_side(s, role, early):
        if early:
            if s == 13: one_wave(7, lambda: p2.mail_h(S_MB, S_B))
            return
        if s == 8: emit_all(epair(0, 3, False) + (epair(0, 2, True) if opts.get('e8', 2) == 2 else []))
        if s == 10: p2.setup(role)
        if s == 11: emit_all(epair(1, 0, False))
        if s == 12:
            p2.patterns(role)
            if role == 'A':
                p2.reset_flags(); a.lg -= 1
    def f_plan(s, st):
        blocks, fill, rate, dead = {}, [], opts.get('rate', 1.45), {}
        if s == 9:
            if opts.get('e8', 2) == 1: blocks[st.tile_done_at(7) + 1] = epair(0, 2, True)
            if opts.get('blk9', True):
                blocks[st.tile_done_at(5) + 1] = epair(0, 0, False)
                blocks[st.tile_done_at(1) + 1] = epair(0, 1, True)
            else:
                fill = [(0, x) for x in epair(0, 0, False) + epair(0, 1, True)]
                rate = 2.1
                dead = {st.tile_done_at(5) + 1: 71, st.tile_done_at(1) + 1: 0}
        if s == 11:
            fill = [(st.tile_done_at(7), x) for x in epair(1, 3, False)] + [(st.tile_done_at(5), x) for x in epair(1, 2, True)]
            rate = opts.get('rate11', 1.8)
        if s == 12:
            fill = [(0, x) for x in epair(1, 1, True)]
            rate = 1.2
            dead = {st.tile_done_at(1) + 1: 0}
        if s == 14:
            fill = [(st.tile_done_at(7), x) for x in epair(2, 3, False)] + \
                   [(st.tile_done_at(5), x) for x in epair(2, 2, True)] + \
                   [(st.tile_done_at(1), x) for x in epair(2, 0, False)]
        return blocks, fill, rate, dead
    def f_hooks(s, i, n):
        if s == 13 and i == 2:
            with only('A'): p2.kv_probe(112, 113)
        if s == 14:
            tries = opts.get('ekv', (8, 70, 130))
            if i in tries:
                with only('A'): p2.kv_try(f"kt{i}", 112, 113)
            if i + 30 in tries:
                with only('A'): p2.kv_probe(112, 113)
            if i == n - 12:
                with only('B'): p2.g_probe(112, 113)
    phase1('F', f_setup2, f_side, f_plan, f_hooks)
    stamp('M14')
    emit_all(epair(2, 1, True))
    a.fence()
    a.label(f"{name}_p2")
    ip1 = stamp('p1end')
    stamp.keep = None
    a(f"s_cmp_ge_u32 s{S_W}, 4")
    a(f"s_cbranch_scc1 {name}_gemm")
    snap = a.snapshot()
    n0 = len(stamp.labels)
    a.role = 'A'
    p2.attention()
    la = list(stamp.labels); del stamp.labels[n0:]
    a.restore(snap)
    a.role = 'B'
    a.label(f"{name}_gemm")
    p2.gemm()
    lb = list(stamp.labels)
    a.stamps = la[:n0] + ["/".join(x) for x in zip(la[n0:] + ["-"]*12, lb[n0:])]

    a.role = None
    stamp.v = V_STAMP
    a.restore(snap0); a.vmr = dict(vm0_)
    a.label(f"{name}_qtype")
    a(f"""
    v_mul_u32_u24 v15, 3456, v14
    v_add_u32 v{V_DMA}, v13, v15
    s_mul_i32 s{S_Q}, s{S_XCD}, 27
    s_lshr_b32 s{S_Q}, s{S_Q}, 3
    s_lshl_b32 s{S_GOFF}, s{S_Q}, 7
    """)
    rot_base('w', 64*3456)
    a("s_waitcnt lgkmcnt(0)")
    make_srd(a, R_X, P_X, 2048*1152)
    make_srd(a, R_0, P_QKV, 576*3456)
    make_srd(a, R_1, P_QKV, 576*3456)
    def q_setup2():
        make_srd(a, R_GW, P_GW, 1152)
        a(f"""
        v_lshlrev_b32 v9, 10, v12
        v_lshl_add_u32 v{V_HST}, v15, 4, v9
        s_bitcmp1_b32 0xa4, s{S_XCD}
        s_cselect_b32 s{S_T1}, 0, {OOB}
        s_cselect_b32 s{S_K}, s{R_1+2}, 0
        v_or_b32 v{V_QS3}, s{S_T1}, v{V_HST}
        s_lshl_b32 s{S_HB}, s{S_Q}, 6
        s_add_u32 s{S_HB}, s{S_HB}, s{S_TT}
        s_lshl_b32 s{S_HB}, s{S_HB}, 12
        s_add_u32 s{S_HB}, s{S_HB}, {QN}
        """)
    def epi_q(blk, t):
        L = []
        if t == 0:
            L += [f"s_cmp_lt_u32 s{S_Q}, {9 - blk}", f"s_cselect_b32 s{S_U}, {f2u(QSCALE)}, 1.0", f"s_add_u32 s{S_T3}, s{S_HB}, {blk*64*4096}"]
        o = OUT + 4*(t & 1)
        for u in range(2):
            r = ACC(4*(blk & 1) + t, u)
            for i in range(4): L.append(f"v_mul_f32 v{r+i}, s{S_U}, v{r+i}")
            L.append(f"v_cvt_pk_bf16_f32 v{o+2*u}, v{r}, v{r+1}")
            L.append(f"v_cvt_pk_bf16_f32 v{o+2*u+1}, v{r+2}, v{r+3}")
        L.append(f"buffer_store_dwordx4 {vr(o,4)}, v{V_QS3 if blk == 3 else V_HST}, {sr(R_WS,4)}, s{S_T3} offen offset:{t*256}")
        return L
    def q_side(s, role, early):
        if not early and s == (5 if role == 'B' else 6): a(f"s_mov_b32 s{R_1+2}, s{S_K}")
    def q_plan(s, st):
        blocks, fill = {}, []
        if s == 9:
            for j in range(8): blocks[max(0, 12*j - 6)] = epi_q(j >> 2, j & 3)
        if s == 11:
            for j in range(7): blocks[12*j + 16] = epi_q(2 + (j >> 2), j & 3)
        return blocks, fill, 1.0, {}
    phase1('Q', q_setup2, q_side, q_plan, lambda *x: None)
    emit_all(epi_q(3, 3))
    stamp('', 6)
    a("s_waitcnt vmcnt(0)")
    a("s_barrier")
    def bc():
        p2.arrive(0, 8, 39)
        l = newlab()
        p2.broadcast_if_last(0, 38, 39, l, wait=True, count=64)
        a.label(l)
    one_wave(7, bc)
    if opts.get('qbar', True): a("s_barrier")
    stamp('', 7)
    def pack_setup(rnd):
        l1 = newlab()
        a(f"""
        s_lshr_b32 s{S_T3}, s{S_W}, 2
        s_add_u32 s{S_T3}, s{S_T3}, {2*rnd}
        s_mul_i32 s{S_T1}, s{S_XCD}, 36
        s_lshl_b32 s{S_T0}, s{S_MB}, 2
        s_add_u32 s{S_T0}, s{S_T0}, s{S_T3}
        s_add_u32 s{S_T0}, s{S_T0}, s{S_T1}
        s_mov_b32 s{S_PKON}, 1
        """)
        if rnd == 2: a(f"""
        s_add_u32 s{S_T1}, s{S_T1}, s{S_MB}
        s_add_u32 s{S_T1}, s{S_T1}, 32
        s_lshl_b32 s{S_T2}, s{S_XCD}, 2
        s_add_u32 s{S_T2}, s{S_T2}, s{S_MB}
        s_add_u32 s{S_T2}, s{S_T2}, 284
        s_cmp_lt_u32 s{S_MB}, 4
        s_cselect_b32 s{S_T0}, s{S_T1}, s{S_T2}
        s_add_u32 s{S_T1}, s{S_XCD}, 320
        s_cmp_eq_u32 s{S_T3}, 5
        s_cselect_b32 s{S_T0}, s{S_T1}, s{S_T0}
        s_lshl_b32 s{S_T1}, s{S_MB}, 3
        s_add_u32 s{S_T1}, s{S_T1}, s{S_XCD}
        s_cmp_lt_u32 s{S_T1}, 4
        s_cselect_b32 s{S_PKON}, 0xff, 15
        s_bitcmp1_b32 s{S_PKON}, s{S_W}
        s_cselect_b32 s{S_PKON}, 1, 0
        """)
        a(f"""
        s_and_b32 s{S_T1}, s{S_W}, 3
        s_mov_b32 s{R_PK+3}, 0x00020000
        s_lshr_b32 s{S_PK}, s{S_T0}, 1
        s_lshl_b32 s{S_PK}, s{S_PK}, 5
        s_and_b32 s{S_T2}, s{S_T0}, 1
        s_lshl_b32 s{S_T2}, s{S_T2}, 3
        s_add_u32 s{S_PK}, s{S_PK}, s{S_T2}
        s_mov_b32 s{S_PKA}, 16
        s_mov_b32 s{S_PKB}, 4
        s_mov_b32 s{S_PKC}, 2
        s_mul_i32 s{S_PKD}, s{S_T1}, 576
        s_add_u32 s{S_PKD}, s{S_PKD}, s{S_T0}
        s_mul_i32 s{S_PKD}, s{S_PKD}, 2304
        s_add_u32 s{S_PKD}, s{S_PKD}, {WDP}
        s_mov_b32 s{S_PKNB}, {288*2304}
        s_mov_b32 s{R_PK}, s{P_WD}
        s_and_b32 s{R_PK+1}, s{P_WD+1}, 0xffff
        s_mov_b32 s{R_PK+2}, {4608*1152}
        s_cmp_lt_u32 s{S_T0}, 288
        s_cbranch_scc1 {l1}
        """)
        m = a.skip_begin()
        a(f"""
        s_sub_u32 s{S_T0}, s{S_T0}, 288
        s_mul_i32 s{S_PKD}, s{S_T1}, 72
        s_add_u32 s{S_PKD}, s{S_PKD}, s{S_T0}
        s_mul_i32 s{S_PKD}, s{S_PKD}, 2304
        s_add_u32 s{S_PKD}, s{S_PKD}, {WOP}
        s_mov_b32 s{S_PKNB}, {36*2304}
        s_mov_b32 s{R_PK}, s{P_WO}
        s_and_b32 s{R_PK+1}, s{P_WO+1}, 0xffff
        s_mov_b32 s{R_PK+2}, {576*1152}
        s_mul_i32 s{S_PK}, s{S_T0}, 18
        s_sub_u32 s{S_T2}, s{S_T0}, 32
        s_mul_i32 s{S_T2}, s{S_T2}, 144
        s_add_u32 s{S_T2}, s{S_T2}, 16
        s_cmp_lt_u32 s{S_T0}, 32
        s_cselect_b32 s{S_PK}, s{S_PK}, s{S_T2}
        s_cselect_b32 s{S_PKA}, 4, 36
        s_cselect_b32 s{S_PKB}, 8, 72
        s_cselect_b32 s{S_PKC}, 2, 18
        """)
        a.skip_end(m)
        a.label(l1)
        a(f"""
        s_mul_i32 s{S_PK}, s{S_PK}, 1152
        s_mul_i32 s{S_T1}, s{S_T1}, 288
        s_add_u32 s{S_PK}, s{S_PK}, s{S_T1}
        s_mul_i32 s{S_PKA}, s{S_PKA}, 1152
        s_mul_i32 s{S_PKB}, s{S_PKB}, 1152
        s_mul_i32 s{S_PKC}, s{S_PKC}, 1152
        s_cmp_eq_u32 s{S_PKON}, 0
        s_cselect_b32 s{R_PK+2}, 0, s{R_PK+2}
        s_cselect_b32 s{S_PKD}, 0, s{S_PKD}
        s_cselect_b32 s{82 if rnd == 2 else S_T2}, {OOB}, 0
        s_mov_b32 s{4+rnd}, s{S_PKD}
        """)
    a(f"""
    v_lshlrev_b32 v1, 4, v0
    s_mul_i32 s{S_PKL}, s{S_W}, {3*4608}
    v_add_u32 v9, {1152-288}, v1
    v_cmp_gt_u32 vcc, 18, v0
    v_cndmask_b32 v40, v9, v1, vcc
    """)
    st_id = dict(a.vmr)
    for rnd in range(3):
        pack_setup(rnd)
        a("s_mov_b32 exec_hi, 15")
        for i in range(8):
            a(f"s_mov_b32 s{S_T0}, s{S_PK}")
            if i & 1: a(f"s_add_u32 s{S_T0}, s{S_T0}, s{S_PKC}")
            if i & 2: a(f"s_add_u32 s{S_T0}, s{S_T0}, s{S_PKB}")
            if i & 4: a(f"s_add_u32 s{S_T0}, s{S_T0}, s{S_PKA}")
            a(f"s_add_u32 m0, s{S_PKL}, {rnd*4608 + i*576}")
            pk_id = a.emit(f"buffer_load_dwordx4 v40, {sr(R_PK,4)}, s{S_T0} offen lds")
        a("s_mov_b32 exec_hi, -1")
    a(f"""
    v_lshlrev_b32 v9, 2, v0
    v_cmp_gt_u32 vcc, 32, v0
    v_mov_b32 v10, {OOB}
    v_cndmask_b32 v9, v10, v9, vcc
    s_lshl_b32 s{S_L}, s{S_MB}, 3
    s_add_u32 s{S_L}, s{S_L}, s{S_XCD}
    s_lshl_b32 s{S_L}, s{S_L}, 3
    s_add_u32 s{S_L}, s{S_L}, s{S_W}
    s_mul_i32 s{S_T1}, s{S_L}, {4*1152}
    buffer_load_dwordx4 v[48:51], v1, {sr(R_GW,4)}, 0 offen
    buffer_load_dword v52, v9, {sr(R_GW,4)}, 0 offen offset:1024
    """)
    for i in range(4):
        if i == 2: a(f"s_add_u32 s{S_T1}, s{S_T1}, 2304")
        a(f"buffer_load_dwordx4 {vr(60+4*i,4)}, v1, {sr(R_X,4)}, s{S_T1} offen offset:{(i&1)*1152}")
        a(f"buffer_load_dword v{53+i}, v9, {sr(R_X,4)}, s{S_T1} offen offset:{(i&1)*1152+1024}")
    a(f"""
    v_lshrrev_b32 v8, 5, v0
    v_bfe_u32 v9, v0, 2, 2
    v_lshl_add_u32 v8, v8, 2, v9
    v_mul_u32_u24 v8, 288, v8
    v_add_u32 v8, s{S_PKL}, v8
    v_and_b32 v9, 1, v0
    v_lshl_add_u32 v41, v9, 5, v8
    v_bfe_u32 v9, v0, 1, 1
    v_lshl_add_u32 v41, v9, 3, v41
    v_and_b32 v9, 3, v0
    v_lshl_add_u32 v8, v9, 3, v8
    v_bfe_u32 v43, v0, 4, 1
    v_lshl_add_u32 v41, v43, 4, v41
    v_mul_u32_u24 v42, 144, v43
    v_add_u32 v42, v42, v8
    v_lshrrev_b32 v8, 5, v0
    v_lshlrev_b32 v44, 7, v8
    v_and_b32 v8, 15, v0
    v_lshl_add_u32 v44, v8, 4, v44
    v_cmp_gt_u32 vcc, 8, v8
    v_mov_b32 v8, {OOB}
    v_cndmask_b32 v44, v8, v44, vcc
    s_mov_b32 s{S_T2}, {288*2304}
    v_mul_lo_u32 v45, v43, s{S_T2}
    v_add_u32 v45, v45, v44
    v_mul_lo_u32 v46, v43, s{S_PKNB}
    v_add_u32 v46, v46, v44
    v_or_b32 v46, s82, v46
    v_or_b32 v47, s82, v1
    """)
    a.wait_vm(pk_id)
    offs = [0, 64, 144, 144+64]
    for rnd in range(3):
        for i in range(5):
            v, o = (41, offs[i]) if i < 4 else (42, 128)
            a(f"ds_read_b64_tr_b16 {vr(80+20*rnd+4*i,2)}, v{v} offset:{rnd*4608+o}")
            a(f"ds_read_b64_tr_b16 {vr(82+20*rnd+4*i,2)}, v{v} offset:{rnd*4608+o+2304}")
        a(f"s_add_u32 s{S_T0}, s{4+rnd}, {'s' + str(S_PKNB) if rnd == 2 else 288*2304}")
        a("s_waitcnt lgkmcnt(0)")
        for i in range(4):
            a(f"buffer_store_dwordx4 {vr(80+20*rnd+4*i,4)}, v{47 if rnd == 2 else 1}, {sr(R_WS,4)}, s{4+rnd if i < 2 else S_T0} offen offset:{(i&1)*1024}")
        a(f"buffer_store_dwordx4 {vr(96+20*rnd,4)}, v{46 if rnd == 2 else 45}, {sr(R_WS,4)}, s{4+rnd} offen offset:2048")
    pst = dict(a.vmr)
    stamp('', 8)
    a("s_waitcnt vmcnt(15)")
    for i in range(4):
        d = 12 + i
        a(f"v_mov_b32 v{d}, 0")
        a(f"v_dot2_f32_bf16 v{d}, v{53+i}, v52, v{d}")
        for j in range(4): a(f"v_dot2_f32_bf16 v{d}, v{60+4*i+j}, v{48+j}, v{d}")
    a("s_nop 3")
    for pat in ("quad_perm:[1,0,3,2]", "quad_perm:[2,3,0,1]", "row_half_mirror", "row_mirror"):
        for d in range(12, 16): a(f"v_add_f32_dpp v{d}, v{d}, v{d} {pat} row_mask:0xf bank_mask:0xf")
    a(f"v_mov_b32 v10, {f2u(40.0)}")
    for d in range(12, 16):
        a(f"""
        v_readlane_b32 s{S_T0}, v{d}, 16
        v_readlane_b32 s{S_T2}, v{d}, 32
        v_readlane_b32 s{S_T1}, v{d}, 48
        v_add_f32 v{d}, s{S_T0}, v{d}
        v_add_f32 v{d}, s{S_T2}, v{d}
        v_add_f32 v{d}, s{S_T1}, v{d}
        v_med3_f32 v{d}, v{d}, -v10, v10
        v_mul_f32 v{d}, {f2u(1.4426950408889634)}, v{d}
        v_exp_f32 v{d}, v{d}
        """)
    a(f"""
    s_lshl_b32 s{S_T0}, s{S_L}, 4
    s_add_u32 s{S_T0}, s{S_T0}, {GB}
    s_mov_b64 exec, 1
    buffer_store_dwordx4 v[12:15], v1, {sr(R_WS,4)}, s{S_T0} offen
    s_mov_b64 exec, -1
    """)
    with only('A'):
        p2.setup('A'); p2.patterns('A'); p2.reset_flags()
        a(f"v_and_b32 v112, 31, v0")
        a(f"v_lshlrev_b32 v112, 2, v112")
        a.wait_vm(pst)
    with only('B'):
        p2.setup('B'); p2.patterns('B')
        a.wait_vm(pst)
    a("s_waitcnt lgkmcnt(0)")
    a("s_barrier")
    a(f"s_cmp_lt_u32 s{S_W}, 4")
    a.fence()
    a(f"s_cbranch_scc1 {name}_p2")
    one_wave(7, lambda: p2.mail_pack(S_MB))
    p2.preload_kv()
    p2.g_probe(112, 113)
    a("s_waitcnt vmcnt(0)")
    a.fence()
    a(f"s_branch {name}_p2")
    a.label(f"{name}_end")
    a("s_endpgm")
    return a, kdesc(name), dict(grid=256, block=512, lds=163840)
```

```python
from common import *

KVB = 64*KVREC
QST = KVB
FLAG = KVB + 12288
F_REL, F_RED, F_C2, F_C3, F_RD1, F_DUMP, F_ATT, F_C1, F_WDONE, F_ST, F_SEEN2 = range(11)

MBOX = 0x01ffff00

class Phase2:
    def __init__(self, a, name, opts, stamp):
        self.a, self.name, self.opts, self.stamp = a, name, opts, stamp
        self.probe_id = {}
        self.S31 = opts.get('split31')
        self.MB = 1 if self.S31 else MBOX
    R_WS, R_OUT, R_DBG = 44, 40, 48
    S_W, S_XCD, S_T0, S_T1, S_T2 = 56, 57, 63, 64, 65
    S_LOC, S_H, S_QB, S_T3, S_KVO, S_IT, S_HO, S_WO, S_M0, S_KH, S_SP, S_OA, S_OB, S_MSK, S_QT = range(4, 19)
    S_P = 86
    S_HB0, S_WB0 = 88, 89
    NFIRST = 5

    def signal(self, fl, t0, t1):
        self.a(f"""
        v_mov_b32 v{t0}, {FLAG + 4*fl}
        v_mov_b32 v{t1}, 1
        s_mov_b64 exec, 1
        ds_add_u32 v{t0}, v{t1}
        s_mov_b64 exec, -1
        """)
    def poll(self, fl, t0, t1, tag, sleep, n=4):
        a, name = self.a, self.name
        a(f"v_mov_b32 v{t0}, {FLAG + 4*fl}")
        a.label(f"{name}_{tag}")
        a(f"""
        ds_read_b32 v{t1}, v{t0}
        s_waitcnt lgkmcnt(0)
        v_readfirstlane_b32 s{self.S_T0}, v{t1}
        s_cmp_ge_u32 s{self.S_T0}, {n}
        s_cbranch_scc1 {name}_{tag}d
        s_sleep {sleep}
        s_branch {name}_{tag}
        """)
        a.label(f"{name}_{tag}d")
    def gpoll(self, tag, srd, voff, soff, val, mask, t1, imm=0, sleep=None):
        a, name = self.a, self.name
        a(f"s_mov_b32 s{self.S_SP}, 0")
        a.label(f"{name}_{tag}")
        a(f"""
        buffer_load_dword v{t1}, v{voff}, {sr(srd,4)}, {soff} offen offset:{imm} sc1
        s_add_u32 s{self.S_SP}, s{self.S_SP}, 1
        s_waitcnt vmcnt(0)
        v_cmp_ne_u32 vcc, s{self.S_TAG}, v{t1}
        s_and_b32 vcc_lo, vcc_lo, {mask}
        s_cbranch_scc0 {name}_{tag}d
        s_cmp_ge_u32 s{self.S_SP}, 0x8000
        s_cbranch_scc1 {name}_{tag}d
        s_sleep {sleep or self.opts.get('gsleep', 8)}
        s_branch {name}_{tag}
        """)
        a.label(f"{name}_{tag}d")
    def arrive(self, which, t0, t1):
        self.a(f"""
        v_mov_b32 v{t0}, {(0, 128, 64)[which]}
        v_mov_b32 v{t1}, 1
        s_mov_b64 exec, 1
        buffer_atomic_add v{t1}, v{t0}, {sr(self.R_DBG,4)}, 0 offen sc0 sc1
        s_mov_b64 exec, -1
        """)
    def broadcast_if_last(self, which, t0, t1, skip, wait=True, count=256):
        a = self.a
        if wait: a("s_waitcnt vmcnt(0)")
        a(f"""
        v_readfirstlane_b32 s{self.S_T0}, v{t1}
        s_and_b32 s{self.S_T0}, s{self.S_T0}, {count-1}
        s_cmp_lg_u32 s{self.S_T0}, {count-1}
        s_cbranch_scc1 {skip}
        """)
        m = a.snapshot()
        a(f"""
        v_lshlrev_b32 v{t0}, 9, v0
        v_mov_b32 v{t1}, s{self.S_TAG}
        """)
        for i in range(4):
            a(f"s_mov_b32 s{self.S_T0}, {GOF + 4*which + i*32768}")
            a(f"buffer_store_dword v{t1}, v{t0}, {sr(self.R_WS,4)}, s{self.S_T0} offen")
        if count == 256:
            a(f"s_mov_b32 s{self.S_T0}, {EPO}")
            a("s_mov_b64 exec, 1")
            a(f"buffer_store_dword v{t1}, v{t0}, {sr(self.R_WS,4)}, s{self.S_T0} offen")
            a("s_mov_b64 exec, -1")
        a.merge(m)
    def early(self):
        a, s = self.a, self
        make_srd(a, s.R_DBG, P_DBG, 256)
        a(f"s_lshl_b32 s{s.S_GOA}, s2, 9")
        a(f"s_add_u32 s{s.S_GOA}, s{s.S_GOA}, {GOF}")
    def mail(self, S_J, S_MB, S_B):
        a, s = self.a, self
        a(f"""
        v_lshrrev_b32 v8, 3, v0
        s_mul_i32 s{s.S_T0}, s{S_J}, 3
        v_add_u32 v8, s{s.S_T0}, v8
        v_and_b32 v9, 7, v0
        v_and_b32 v10, 3, v8
        v_lshl_add_u32 v10, v9, 2, v10
        v_bfe_u32 v11, v8, 2, 3
        v_lshl_add_u32 v10, v10, 3, v11
        v_lshlrev_b32 v10, 9, v10
        v_lshrrev_b32 v8, 5, v8
        v_lshlrev_b32 v11, 5, v8
        s_lshl_b32 s{s.S_T0}, s{S_MB}, 2
        v_add_u32 v11, s{s.S_T0}, v11
        v_cmp_eq_u32 vcc, 0, v8
        v_mov_b32 v8, 96
        v_cndmask_b32 v11, v11, v8, vcc
        v_add_u32 v10, v10, v11
        v_cmp_ne_u32 {sr(s.S_P,2)}, s{S_MB}, v9
        s_and_b64 vcc, vcc, {sr(s.S_P,2)}
        s_or_b32 vcc_lo, vcc_lo, 0xff000000
        s_mov_b32 vcc_hi, -1
        v_mov_b32 v8, {OOB}
        v_cndmask_b32 v10, v10, v8, vcc
        v_mov_b32 v11, s{s.S_TAG}
        s_mov_b32 s{s.S_T0}, {GOF}
        buffer_store_dword v11, v10, {sr(s.R_WS,4)}, s{s.S_T0} offen
        """)
    def mail2(self, S_J, S_MB, S_B):
        a, s = self.a, self
        a(f"""
        v_lshrrev_b32 v8, 1, v0
        v_and_b32 v9, 1, v0
        s_lshl_b32 s{s.S_T0}, s{S_B}, 1
        v_add_u32 v9, s{s.S_T0}, v9
        v_bfe_u32 v10, v0, 3, 1
        s_lshl_b32 s{s.S_T0}, s{S_MB}, 1
        v_add_u32 v10, s{s.S_T0}, v10
        v_and_b32 v11, 7, v0
        v_cmp_gt_u32 vcc, 32, v0
        v_cndmask_b32 v8, v10, v8, vcc
        v_cndmask_b32 v9, v11, v9, vcc
        s_add_u32 s{s.S_T0}, s{S_B}, 8
        v_mov_b32 v10, s{s.S_T0}
        v_mov_b32 v11, s{S_MB}
        v_cndmask_b32 v10, v10, v11, vcc
        v_and_b32 v11, 3, v8
        v_lshl_add_u32 v9, v11, 3, v9
        v_lshrrev_b32 v8, 2, v8
        v_lshlrev_b32 v8, 1, v8
        v_lshl_add_u32 v8, v9, 3, v8
        v_lshlrev_b32 v8, 9, v8
        v_lshl_add_u32 v8, v10, 2, v8
        s_lshr_b32 s{s.S_T0}, s{s.S_XCD}, 2
        s_lshl_b32 s{s.S_T0}, s{s.S_T0}, 9
        s_and_b32 s{s.S_T1}, s{s.S_XCD}, 3
        s_lshl_b32 s{s.S_T1}, s{s.S_T1}, 6
        s_add_u32 s{s.S_T0}, s{s.S_T0}, s{s.S_T1}
        s_add_u32 s{s.S_T0}, s{s.S_T0}, {GOF + 128}
        v_mov_b32 v11, s{s.S_TAG}
        s_mov_b32 exec_hi, 0xffff
        buffer_store_dword v11, v8, {sr(s.R_WS,4)}, s{s.S_T0} offen
        s_mov_b32 exec_hi, -1
        """)
    def mail_qkv(self, S_U0, S_MB):
        a, s = self.a, self
        for h in range(2):
            a(f"""
            v_lshrrev_b32 v8, 3, v0
            s_add_u32 s{s.S_T0}, s{S_U0}, {8*h}
            v_add_u32 v8, s{s.S_T0}, v8
            v_and_b32 v9, 7, v0
            v_and_b32 v10, 3, v8
            v_lshl_add_u32 v10, v9, 2, v10
            v_bfe_u32 v11, v8, 2, 3
            v_lshl_add_u32 v10, v10, 3, v11
            v_lshlrev_b32 v10, 9, v10
            v_lshrrev_b32 v8, 5, v8
            v_lshlrev_b32 v11, 5, v8
            s_lshl_b32 s{s.S_T0}, s{S_MB}, 2
            v_add_u32 v11, s{s.S_T0}, v11
            v_cmp_eq_u32 vcc, 0, v8
            v_mov_b32 v8, 96
            v_cndmask_b32 v11, v11, v8, vcc
            v_add_u32 v10, v10, v11
            v_cmp_ne_u32 s[70:71], s{S_MB}, v9
            s_and_b64 vcc, vcc, s[70:71]
            """)
            if h: a("s_mov_b32 vcc_hi, -1")
            a(f"""
            v_mov_b32 v8, {OOB}
            v_cndmask_b32 v10, v10, v8, vcc
            v_mov_b32 v11, s{s.S_TAG}
            s_mov_b32 s{s.S_T0}, {GOF}
            buffer_store_dword v11, v10, {sr(s.R_WS,4)}, s{s.S_T0} offen
            """)
    def _mbase(self, S_WORD, add):
        a, s = self.a, self
        a(f"""
        s_lshr_b32 s{s.S_T0}, s{s.S_XCD}, 2
        s_lshl_b32 s{s.S_T0}, s{s.S_T0}, 9
        s_and_b32 s{s.S_T1}, s{s.S_XCD}, 3
        s_lshl_b32 s{s.S_T1}, s{s.S_T1}, 6
        s_add_u32 s{s.S_T0}, s{s.S_T0}, s{s.S_T1}
        s_lshl_b32 s{s.S_T1}, s{S_WORD}, 2
        s_add_u32 s{s.S_T0}, s{s.S_T0}, s{s.S_T1}
        s_add_u32 s{s.S_T0}, s{s.S_T0}, {GOF + 128 + add}
        v_mov_b32 v11, s{s.S_TAG}
        """)
    def mail_pack(self, S_MB):
        a, s = self.a, self
        s._mbase(S_MB, 0)
        a(f"""
        v_lshlrev_b32 v8, 10, v0
        buffer_store_dword v11, v8, {sr(s.R_WS,4)}, s{s.S_T0} offen
        s_add_u32 s{s.S_T0}, s{s.S_T0}, 65536
        buffer_store_dword v11, v8, {sr(s.R_WS,4)}, s{s.S_T0} offen
        """)
    def mail_h(self, S_MB, S_B):
        a, s = self.a, self
        s._mbase(S_B, 32)
        a(f"""
        s_lshr_b32 s{s.S_T1}, s{S_MB}, 1
        s_lshl_b32 s{s.S_T1}, s{s.S_T1}, 10
        s_add_u32 s{s.S_T0}, s{s.S_T0}, s{s.S_T1}
        s_and_b32 s{s.S_T1}, s{S_MB}, 1
        s_lshl_b32 s{s.S_T1}, s{s.S_T1}, 16
        s_add_u32 s{s.S_T0}, s{s.S_T0}, s{s.S_T1}
        v_lshlrev_b32 v8, 12, v0
        s_mov_b64 exec, 0xffff
        buffer_store_dword v11, v8, {sr(s.R_WS,4)}, s{s.S_T0} offen
        s_mov_b64 exec, -1
        """)
    def preload_kv(self):
        a, s = self.a, self
        s.poll(F_C1, 8, 9, "pc1", 4, n=1)
        s.consts(11, 20, 44)
        a(f"s_lshl_b32 s{s.S_T2}, s{s.S_T3}, 12")
        a(f"s_add_u32 s{s.S_T2}, s{s.S_T2}, s{s.S_KVO}")
        a("s_mov_b32 exec_hi, 0xffff")
        for i in range(11): s.kv_tile(s.V_P, s.S_T2, s.S_M0, 4*(s.NFIRST + i))
        a("s_mov_b32 exec_hi, -1")
        a("s_waitcnt vmcnt(21)")
        s.signal(F_C2, 8, 9)
        a("s_waitcnt vmcnt(0)")
        s.signal(F_C3, 8, 9)
    def g_probe(self, t0, t1):
        a, s = self.a, self
        a(f"v_and_b32 v{t0}, 15, v0")
        a(f"s_lshl_b32 s{s.S_T0}, s{s.S_T3}, 6")
        a(f"v_lshl_add_u32 v{t0}, v{t0}, 2, s{s.S_T0}")
        s.probe_id[a.role] = a.emit(f"buffer_load_dword v{t1}, v{t0}, {sr(s.R_WS,4)}, s{s.S_GOA} offen offset:128 sc1")
    V_P = 120
    def unit_base(self, dst, add):
        s = self
        self.a(f"""
        s_add_u32 s{s.S_T0}, s{s.S_H}, {add}
        s_mul_i32 s{s.S_T1}, s{s.S_T0}, 171
        s_lshr_b32 s{s.S_T1}, s{s.S_T1}, 9
        s_mul_i32 s{s.S_T2}, s{s.S_T1}, 3
        s_sub_u32 s{s.S_T0}, s{s.S_T0}, s{s.S_T2}
        s_mul_i32 s{s.S_T0}, s{s.S_T0}, 288
        s_lshl_b32 s{s.S_T1}, s{s.S_T1}, 18
        s_add_u32 s{dst}, s{s.S_T0}, s{s.S_T1}
        s_add_u32 s{dst}, s{dst}, {QN}
        """)
    def setup(self, role):
        a, s = self.a, self
        make_srd(a, s.R_OUT, P_OUT, 2048*1152)
        a(f"""
        s_lshr_b32 s{s.S_LOC}, s2, 3
        s_and_b32 s{s.S_T0}, s{s.S_LOC}, 3
        s_lshl_b32 s{s.S_H}, s{s.S_XCD}, 2
        s_add_u32 s{s.S_H}, s{s.S_H}, s{s.S_T0}
        s_lshr_b32 s{s.S_QB}, s{s.S_LOC}, 2
        s_and_b32 s{s.S_T3}, s{s.S_W}, 3
        s_mul_i32 s{s.S_M0}, s{s.S_T3}, {KVREC}
        s_lshl_b32 s{s.S_T2}, s{s.S_QB}, 3
        s_lshl_b32 s{s.S_T1}, s{s.S_T3}, 1
        s_add_u32 s{s.S_QT}, s{s.S_T2}, s{s.S_T1}
        s_mul_i32 s{s.S_OA}, s{s.S_T3}, 3072
        s_add_u32 s{s.S_OA}, s{s.S_OA}, {QST}
        s_mov_b32 s{s.S_GO}, 0
        """)
        if s.S31:
            a(f"s_mov_b32 s{s.S_KVO}, {QN + (9 << 18)}")
            a(f"s_mov_b32 s{s.S_IT}, {9 << 18}")
            a(f"s_mul_i32 s{s.S_KH}, s{s.S_H}, 18")
        else:
            s.unit_base(s.S_KVO, 32)
            s.unit_base(s.S_IT, 64)
            a(f"s_sub_u32 s{s.S_IT}, s{s.S_IT}, s{s.S_KVO}")
        if role == 'A':
            if s.S31: a(f"s_mov_b32 s{s.S_OB}, {QN}")
            else: s.unit_base(s.S_OB, 0)
            a(f"s_lshl_b32 s{s.S_T0}, s{s.S_QT}, 12")
            a(f"s_add_u32 s{s.S_OB}, s{s.S_OB}, s{s.S_T0}")
            a(f"""
            s_lshl_b32 s{s.S_T0}, s{s.S_QT}, 4
            s_add_u32 s{s.S_T0}, s{s.S_T0}, s{s.S_H}
            s_mul_i32 s{s.S_MSK}, s{s.S_T0}, 2304
            s_add_u32 s{s.S_MSK}, s{s.S_MSK}, {OF}
            v_mov_b32 v12, -1
            v_mov_b32 v13, -1
            v_mov_b32 v14, -1
            v_mov_b32 v15, -1
            v_lshlrev_b32 v8, 4, v0
            buffer_store_dwordx4 v[12:15], v8, {sr(s.R_WS,4)}, s{s.S_MSK} offen
            buffer_store_dwordx4 v[12:15], v8, {sr(s.R_WS,4)}, s{s.S_MSK} offen offset:1024
            s_mov_b64 exec, 0xffff
            buffer_store_dwordx4 v[12:15], v8, {sr(s.R_WS,4)}, s{s.S_MSK} offen offset:2048
            s_mov_b64 exec, -1
            """)
    def patterns(self, role):
        a, s = self.a, self
        for part in range(3):
            a(f"""
            v_add_u32 v8, {48*part}, v0
            v_mul_u32_u24 v9, 57, v8
            v_lshrrev_b32 v9, 10, v9
            v_mul_u32_u24 v10, 18, v9
            v_sub_u32 v8, v8, v10
            """)
            if s.S31: a(f"""
            v_add_u32 v8, s{s.S_KH}, v8
            v_lshrrev_b32 v10, 6, v8
            v_and_b32 v8, 63, v8
            v_lshl_add_u32 v8, v10, 14, v8
            """)
            a(f"""
            v_lshlrev_b32 v8, 4, v8
            v_lshrrev_b32 v10, 1, v9
            v_lshl_add_u32 v10, v10, 10, v8
            v_and_b32 v11, 1, v9
            v_mul_lo_u32 v11, v11, s{s.S_IT}
            v_add_u32 v{s.V_P+part}, v10, v11
            """)
            if role == 'A': a(f"v_lshl_add_u32 v{s.V_P+8+part}, v9, 10, v8")
    def consts(self, t0, first, n):
        self.a(f"""
        v_mul_u32_u24 v{t0}, {KVREC}, v0
        v_add_u32 v{t0}, {first*KVREC + 2304}, v{t0}
        v_mov_b32 v{t0+1}, 0x3f803f80
        v_mov_b32 v{t0+2}, 0x3f803f80
        v_mov_b32 v{t0+3}, 0
        v_mov_b32 v{t0+4}, 0
        s_mov_b64 exec, {(1 << n) - 1 if n <= 32 else -1}
        """)
        if n > 32: self.a(f"s_mov_b32 exec_hi, {(1 << (n - 32)) - 1}")
        self.a(f"""
        ds_write2_b64 v{t0}, {vr(t0+1,2)}, {vr(t0+1,2)} offset0:0 offset1:1
        ds_write2_b64 v{t0}, {vr(t0+3,2)}, {vr(t0+3,2)} offset0:2 offset1:3
        s_mov_b64 exec, -1
        """)
    def kv_tile(self, vp, base, m0base, t):
        a, s = self.a, self
        a(f"s_add_u32 s{s.S_T1}, s{base}, {t*4096}")
        for part in range(3):
            a(f"s_add_u32 m0, s{m0base}, {t*KVREC + part*768}")
            idd = a.emit(f"buffer_load_dwordx4 v{vp+part}, {sr(s.R_WS,4)}, s{s.S_T1} offen sc1 lds")
        return idd
    def reset_flags(self):
        self.a(f"""
        v_lshlrev_b32 v8, 2, v0
        v_and_b32 v8, 63, v8
        v_mov_b32 v9, 0
        ds_write_b32 v8, v9 offset:{FLAG - 131072}
        """.replace(f"ds_write_b32 v8, v9 offset:{FLAG - 131072}", f"v_add_u32 v8, {FLAG}, v8\nds_write_b32 v8, v9"))
    S_GO = 19
    S_GOA = 99
    S_TAG = 0
    def kv_probe(self, t0, t1):
        a, s = self.a, self
        a(f"v_and_b32 v{t0}, 31, v0")
        a(f"v_lshlrev_b32 v{t0}, 2, v{t0}")
        s.probe_id[a.role] = a.emit(f"buffer_load_dword v{t1}, v{t0}, {sr(s.R_WS,4)}, s{s.S_GOA} offen sc1")
    def kv_issue(self, t0):
        a, s = self.a, self
        a(f"""
        s_mov_b32 s{s.S_GO}, 1
        s_mov_b32 exec_hi, 0xffff
        """)
        for part in range(3):
            a(f"s_add_u32 m0, s{s.S_OA}, {part*768}")
            a(f"buffer_load_dwordx4 v{s.V_P+8+part}, {sr(s.R_WS,4)}, s{s.S_OB} offen sc1 lds")
        a(f"s_lshl_b32 s{s.S_T0}, s{s.S_T3}, 12")
        a(f"s_add_u32 s{s.S_T0}, s{s.S_T0}, s{s.S_KVO}")
        for i in range(s.NFIRST): s.kv_tile(s.V_P, s.S_T0, s.S_M0, 4*i)
        a("s_mov_b32 exec_hi, -1")
    def kv_try(self, tag, t0, t1):
        a, s, name = self.a, self, self.name
        a(f"s_cmp_lg_u32 s{s.S_GO}, 0")
        a(f"s_cbranch_scc1 {name}_{tag}")
        m = a.skip_begin()
        a.wait_vm(s.probe_id['A'])
        a(f"v_cmp_ne_u32 vcc, s{s.S_TAG}, v{t1}")
        a(f"s_and_b32 vcc_lo, vcc_lo, {s.MB}")
        a(f"s_cbranch_scc1 {name}_{tag}")
        m2 = a.skip_begin(); vm0 = dict(a.vmr)
        s.kv_issue(t0)
        a.vmr = vm0
        s.first_id = dict(a.vmr)
        a.skip_end(m); a.skip_end(m2)
        a.label(f"{name}_{tag}")

    def gather(self, R, va16, va32):
        a = self.a
        def rd(wv, dst):
            for i in range(4):
                a(f"ds_read_b128 {vr(dst + 4*i, 4)}, v{va32} offset:{wv*18432 + i*1024}")
            a(f"ds_read_b128 {vr(dst + 16, 4)}, v{va16} offset:{wv*18432 + 8192}")
        rd(0, R); rd(1, R+20); rd(2, R+40)
        a("s_waitcnt lgkmcnt(5)")
        for i in range(20): a(f"v_add_f32 v{R+i}, v{R+i}, v{R+20+i}")
        rd(3, R+20)
        a("s_waitcnt lgkmcnt(5)")
        for i in range(20): a(f"v_add_f32 v{R+i}, v{R+i}, v{R+40+i}")
        a("s_waitcnt lgkmcnt(0)")
        for i in range(20): a(f"v_add_f32 v{R+i}, v{R+i}, v{R+20+i}")

    def attention(self):
        a, s, name, opts, stamp = self.a, self, self.name, self.opts, self.stamp
        R_WS, S_W, S_H, S_QB, S_T0, S_T1, S_T2, S_T3, S_IT, S_KVO = s.R_WS, s.S_W, s.S_H, s.S_QB, s.S_T0, s.S_T1, s.S_T2, s.S_T3, s.S_IT, s.S_KVO
        SP = sr(s.S_P, 2)
        SA, SB, PA, PB, OA, OB = 160, 32, 48, 56, 64, 80
        QA0, QB0, Q1 = 96, 104, 100
        K0 = [112, 116]; KX = 124; V0 = [128, 176]
        TT = 208
        A_K, A_X, A_V0, A_V1 = 2, 3, 4, 14
        GA, GBr = 5, 6
        V_ST, V_STX = 7, 8
        a("s_setprio 1")
        s.signal(F_WDONE, 9, 10)
        s.consts(17, 0, 20)
        a(f"""
        v_lshlrev_b32 v1, 4, v0
        v_lshrrev_b32 v9, 5, v0
        v_bfe_u32 v10, v0, 4, 1
        v_and_b32 v11, 1, v0
        v_lshl_add_u32 v10, v10, 1, v11
        v_bfe_u32 v11, v0, 2, 2
        v_bfe_u32 v12, v0, 1, 1
        v_lshlrev_b32 v12, 3, v12
        v_lshl_add_u32 v13, v11, 4, v12
        v_lshl_add_u32 v15, v9, 7, v13
        v_mul_u32_u24 v16, 288, v10
        v_add_u32 v17, s{s.S_OA}, v16
        v_add_u32 v21, v17, v15
        v_and_b32 v18, 0x1f, v13
        v_add_u32 v22, v17, v18
        v_mul_u32_u24 v18, {QREC}, v9
        v_add_u32 v22, v22, v18
        """)
        a(f"s_cmp_lg_u32 s{s.S_GO}, 0")
        a(f"s_cbranch_scc1 {name}_kvgo")
        m = a.skip_begin(); vm0 = dict(a.vmr)
        s.gpoll("c1a", s.R_WS, 112, f"s{s.S_GOA}", 1, s.MB, 20, sleep=4)
        s.kv_issue(19)
        a("s_waitcnt vmcnt(0)")
        a.vmr = vm0
        a.skip_end(m)
        a.label(f"{name}_kvgo")
        for i in range(3): a(f"v_mov_b32 v{196+i}, v{s.V_P+i}")
        a.wait_vm(s.first_id)
        for (q0, o) in ((QA0, 0), (QB0, QREC)):
            a(f"ds_read_b64_tr_b16 {vr(q0,2)}, v21 offset:{o}")
            a(f"ds_read_b64_tr_b16 {vr(q0+2,2)}, v21 offset:{o+64}")
        a(f"ds_read_b64_tr_b16 {vr(Q1,2)}, v22 offset:256")
        s.signal(F_C1, 17, 18)
        a(f"""
        v_lshlrev_b32 v16, 1, v16
        v_add_u32 v{A_K}, v16, v15
        v_add_u32 v17, v16, v13
        v_add_u32 v17, 256, v17
        v_lshl_add_u32 v18, v11, 4, v12
        v_add_u32 v18, {2304-32}, v18
        v_cmp_gt_u32 vcc, 2, v11
        v_cndmask_b32 v{A_X}, v18, v17, vcc
        """)
        s.poll(F_C1, 17, 18, "ac1", 0)
        stamp('kv1')
        def kreads(p, o):
            return [f"ds_read_b64_tr_b16 {vr(K0[p],2)}, v{A_K} offset:{o}",
                    f"ds_read_b64_tr_b16 {vr(K0[p]+2,2)}, v{A_K} offset:{o+64}"]
        xread = lambda o: f"ds_read_b64_tr_b16 {vr(KX,2)}, v{A_X} offset:{o}"
        for x in [xread(0)] + kreads(0, 0): a(x)
        a(f"""
        v_and_b32 v11, 31, v0
        v_and_b32 v12, 0x13, v11
        v_bfe_u32 v13, v11, 2, 1
        v_lshl_or_b32 v12, v13, 3, v12
        v_bfe_u32 v13, v11, 3, 1
        v_lshl_or_b32 v12, v13, 2, v12
        v_mul_u32_u24 v13, 576, v9
        v_lshl_add_u32 v12, v12, 4, v13
        v_add_u32 v12, 288, v12
        v_add_u32 v13, 1152, v12
        v_mov_b32 v17, 2320
        v_mov_b32 v18, 2304
        v_and_b32 v19, 27, v11
        v_cmp_eq_u32 vcc, 18, v19
        v_cndmask_b32 v17, v17, v18, vcc
        v_cmp_gt_u32 vcc, 18, v11
        v_cndmask_b32 v{A_V0}, v17, v12, vcc
        v_cndmask_b32 v{A_V1}, v17, v13, vcc
        v_cmp_gt_u32 vcc, 32, v0
        v_mov_b32 v{Q1+1}, 0
        s_waitcnt lgkmcnt(0)
        """)
        r2 = f"v_mfma_f32_32x32x4_2b_bf16 {vr(TT,32)}, {vr(KX,2)}, {vr(Q1,2)}, 0"
        qa = lambda kb: f"v_mfma_f32_32x32x16_bf16 {vr(SA,16)}, {vr(K0[kb],4)}, {vr(QA0,4)}, {vr(TT,16)}"
        qb = lambda kb: f"v_mfma_f32_32x32x16_bf16 {vr(SB,16)}, {vr(K0[kb],4)}, {vr(QB0,4)}, {vr(TT+16,16)}"
        def pv(O, P, vb):
            return [f"v_mfma_f32_32x32x16_bf16 {vr(O,16)}, {vr(V0[vb],4)}, {vr(P,4)}, {vr(O,16)}",
                    f"v_mfma_f32_32x32x16_bf16 {vr(O,16)}, {vr(V0[vb]+4,4)}, {vr(P+4,4)}, {vr(O,16)}"]
        zer = [f"v_mov_b32 v{r}, 0" for r in list(range(PB, PB+8)) + list(range(OA, OA+32)) + list(range(V0[1], V0[1]+8))]
        a(r2)
        for z in zer[:18]: a(z)
        a(qa(0)); a(qb(0))
        for z in zer[18:28]: a(z)
        zer = zer[28:]
        for S, t in ((SA, 10), (SB, 12)):
            a(f"v_max3_f32 v{t}, v{S}, v{S+1}, v{S+2}")
            for i in range(3, 15, 2): a(f"v_max3_f32 v{t}, v{t}, v{S+i}, v{S+i+1}")
            a(f"v_max_f32 v{t}, v{t}, v{S+15}")
        a(zer.pop()); a(zer.pop())
        a("v_permlane32_swap_b32 v10, v12")
        a("v_max_f32 v10, v10, v12")
        a(f"v_cvt_pk_bf16_f32 v{Q1+1}, -v10, 0")
        a(r2)
        a(xread(KVREC))
        for z in zer: a(z)
        a(qa(0))
        a(f"s_mov_b32 s{S_IT}, 0")
        a("s_waitcnt lgkmcnt(0)")
        a.fence()
        stamp('pre')
        UN = opts.get('un', 8)
        NIT = 64 // UN
        PATA = opts.get('pata', "meee" "meee" "meee" "mL" "eeeeeee" "cccccccc")
        PATB = opts.get('patb', "Wmeee" "meee" "mL" "eeeeeeeeee" "cccccccc")
        def half(PAT, S, P, mf, reads):
            e = [f"v_exp_f32 v{S+i}, v{S+i}" for i in range(16)]
            c = [f"v_cvt_pk_bf16_f32 v{P+j}, v{S+2*j}, v{S+2*j+1}" for j in range(8)]
            mi = ei = ci = 0
            for ch in PAT:
                if ch == 'm': a(mf[mi]); mi += 1
                elif ch == 'e': a(e[ei]); ei += 1
                elif ch == 'c': a(c[ci]); ci += 1
                elif ch == 'L':
                    for r in reads: a(r)
                elif ch == 'W': a("s_waitcnt lgkmcnt(0)")
            assert (mi, ei, ci) == (len(mf), 16, 8)
        a.raw(".p2align 3")
        a.label(f"{name}_aloop")
        a(f"s_bitcmp1_b32 {(1 << 1) | (1 << 2) | (1 << 4) | (1 << 6) | (1 << 7)}, s{S_IT}")
        a(f"s_cbranch_scc1 {name}_astub")
        a.label(f"{name}_acont")
        if stamp.on and opts.get('itstamp', True):
            a("s_memtime s[100:101]")
            a(f"s_add_u32 m0, s{S_IT}, 40")
            a("s_waitcnt lgkmcnt(0)")
            a(f"v_writelane_b32 v{stamp.v}, s100, m0")
        nop0 = a.nops
        for t in range(UN):
            p = t & 1
            o = t * KVREC
            rd = kreads(p ^ 1, o + KVREC) + [f"ds_read_b128 {vr(V0[p],4)}, v{A_V0} offset:{o}",
                                             f"ds_read_b128 {vr(V0[p]+4,4)}, v{A_V1} offset:{o}", xread(o + 2*KVREC)]
            half(PATA, SA, PA, [([qb(p)] + pv(OB, PB, p ^ 1) + [r2])[int(ch)] for ch in opts.get('orda', '0123')], rd)
            ex = []
            if t == UN - 1:
                ex = [f"s_add_u32 s{S_IT}, s{S_IT}, 1", f"s_cmp_lt_u32 s{S_IT}, {NIT}"] + \
                     [f"v_add_u32 v{r}, {UN*KVREC}, v{r}" for r in (A_K, A_X, A_V0, A_V1)]
            pvs = pv(OA, PA, p)
            half(PATB, SB, PB, [[pvs[0], qa(p ^ 1), pvs[1]][int(ch)] for ch in opts.get('ordb', '012')], ex)
        assert a.nops == nop0, a.nops - nop0
        a(f"s_cbranch_scc1 {name}_aloop")
        for x in pv(OB, PB, (UN - 1) & 1): a(x)
        stamp('loop')
        a(f"s_mov_b32 s{S_IT}, 0")
        a.label(f"{name}_aepi")
        a(f"s_mov_b32 s{S_T2}, {f2u(2.0**60)}")
        a(f"s_mov_b32 s{S_T1}, {f2u(2.0**-20)}")
        a(f"v_mov_b32 v13, 0x7f000000")
        a("s_waitcnt vmcnt(0)")
        for tt, (O, G, P, t) in enumerate(((OA, GA, 144, 10), (OB, GBr, 184, 11))):
            a(f"v_rcp_f32 v{P+8}, v{O+10}")
            a(f"v_maximum3_f32 v{t}, |v{O}|, |v{O+1}|, |v{O+2}|")
            a(f"v_mul_f32 v{P+8}, v{P+8}, v{G}")
            for i in (3, 5, 7): a(f"v_maximum3_f32 v{t}, v{t}, |v{O+i}|, |v{O+i+1}|")
            a(f"v_maximum3_f32 v10, v10, v{t}, |v{O+9}|")
            if tt:
                a(f"""
                v_maximum3_f32 v11, v{OA+10}, v{OB+10}, v{OB+10}
                v_minimum3_f32 v12, v{OA+10}, v{OB+10}, v{OB+10}
                v_cmp_gt_f32 {SP}, v13, v10
                v_cmp_ge_f32 vcc, s{S_T2}, v11
                s_and_b64 {SP}, vcc, {SP}
                v_cmp_le_f32 vcc, s{S_T1}, v12
                s_and_b64 vcc, vcc, {SP}
                s_cmp_eq_u64 vcc, -1
                s_cbranch_scc0 {name}_slow
                """)
                a.label(f"{name}_aepi2")
                a(f"buffer_store_dwordx4 {vr(144,4)}, v{V_ST}, {sr(R_WS,4)}, s{s.S_MSK} offen")
                a(f"buffer_store_dword v148, v{V_STX}, {sr(R_WS,4)}, s{s.S_MSK} offen offset:1024")
            for i in range(10): a(f"v_mul_f32 v{O+i}, v{O+i}, v{P+8}")
            for j in range(5): a(f"v_cvt_pk_bf16_f32 v{P+j}, v{O+2*j}, v{O+2*j+1}")
        a(f"buffer_store_dwordx4 {vr(184,4)}, v{V_ST}, {sr(R_WS,4)}, s{s.S_MSK} offen offset:1152")
        a(f"buffer_store_dword v188, v{V_STX}, {sr(R_WS,4)}, s{s.S_MSK} offen offset:{1152+1024}")
        s.signal(F_ATT, 12, 13)
        if stamp.on and opts.get('ackstamp'):
            stamp('st')
            a("s_waitcnt vmcnt(0)")
            stamp('ack')
        a(f"""
        s_lshr_b32 s{S_T1}, s{S_T3}, 1
        s_mul_i32 s{S_T0}, s{S_T1}, 9216
        v_add_u32 v10, s{S_T0}, v1
        s_and_b32 s{S_T2}, s{S_T3}, 1
        s_lshl_b32 s{S_T0}, s{S_T2}, 12
        v_add_u32 v11, s{S_T0}, v10
        s_lshl_b32 s{S_IT}, s2, 2
        s_add_u32 s{S_IT}, s{S_IT}, s{S_T3}
        s_mul_i32 s{S_T2}, s{S_IT}, 5120
        s_add_u32 s{S_T2}, s{S_T2}, {BP}
        s_add_u32 s{S_T1}, s{S_T2}, 4096
        s_lshl_b32 s{S_IT}, s{S_IT}, 5
        s_add_u32 s{S_IT}, s{S_IT}, {PFL}
        v_mov_b32 v16, 0
        v_mov_b32 v17, s{s.S_TAG}
        """)
        s.poll(F_RED, 12, 13, "ar", 1)
        s.gather(32, 10, 11)
        for i in range(4):
            a(f"buffer_store_dwordx4 {vr(32+4*i,4)}, v1, {sr(R_WS,4)}, s{S_T2} offen offset:{i*1024}")
        a(f"buffer_store_dwordx4 {vr(48,4)}, v1, {sr(R_WS,4)}, s{S_T1} offen")
        a(f"""
        s_waitcnt vmcnt(0)
        s_mov_b64 exec, 1
        buffer_store_dword v17, v16, {sr(R_WS,4)}, s{S_IT} offen
        s_mov_b64 exec, -1
        """)
        if stamp.on:
            a("s_waitcnt vmcnt(0)")
            stamp('end')
            if not opts.get('dbg'): stamp.out(9)
        a("s_endpgm")
        a.hists = [[]]
        a.label(f"{name}_slow")
        MA, MB = 144, 145
        a(f"""
        s_cmp_lg_u32 s{S_IT}, 0
        s_cbranch_scc1 {name}_aepi2
        s_nop 7
        s_sub_u32 s{S_T2}, s{s.S_OA}, {KVB}
        v_add_u32 v{A_K}, s{S_T2}, v{A_K}
        v_add_u32 v{A_X}, s{S_T2}, v{A_X}
        v_add_u32 v{A_V0}, s{S_T2}, v{A_V0}
        v_add_u32 v{A_V1}, s{S_T2}, v{A_V1}
        v_mov_b32 v{Q1+1}, 0
        v_mov_b32 v{MA}, 0xff000000
        v_mov_b32 v{MB}, 0xff000000
        s_mov_b32 s{S_IT}, 0
        s_mov_b32 s{S_T2}, s{S_KVO}
        """)
        for r in range(OA, OA+32): a(f"v_mov_b32 v{r}, 0")
        a(f"""
        v_mov_b32 v17, s{s.S_OA}
        v_add_u32 v17, 2304, v17
        v_mov_b32 v18, 0x3f803f80
        v_mov_b32 v19, 0x3f803f80
        ds_write2_b64 v17, v[18:19], v[18:19] offset0:0 offset1:1
        ds_write2_b64 v17, {vr(OA,2)}, {vr(OA,2)} offset0:2 offset1:3
        """)
        a.fence()
        a.label(f"{name}_sloop")
        a("s_mov_b32 exec_hi, 0xffff")
        s.kv_tile(196, S_T2, s.S_OA, 0)
        a("s_mov_b32 exec_hi, -1")
        a("s_waitcnt vmcnt(0)")
        for x in kreads(0, 0) + [xread(0)]: a(x)
        a(f"ds_read_b128 {vr(V0[0],4)}, v{A_V0}")
        a(f"ds_read_b128 {vr(V0[0]+4,4)}, v{A_V1}")
        a("s_waitcnt lgkmcnt(0)")
        for x in (r2, qa(0), qb(0)): a(x)
        for S, P, O, M in ((SA, PA, OA, MA), (SB, PB, OB, MB)):
            a(f"v_max3_f32 v10, v{S}, v{S+1}, v{M}")
            for i in range(2, 16, 2): a(f"v_max3_f32 v10, v10, v{S+i}, v{S+i+1}")
            a("v_mov_b32 v11, v10")
            a("v_permlane32_swap_b32 v10, v11")
            a("v_max_f32 v10, v10, v11")
            a(f"v_sub_f32 v11, v{M}, v10")
            a("v_exp_f32 v11, v11")
            a(f"v_mov_b32 v{M}, v10")
            for i in range(16): a(f"v_sub_f32 v{S+i}, v{S+i}, v10")
            for i in range(16): a(f"v_exp_f32 v{S+i}, v{S+i}")
            for i in range(16): a(f"v_mul_f32 v{O+i}, v{O+i}, v11")
            for j in range(8): a(f"v_cvt_pk_bf16_f32 v{P+j}, v{S+2*j}, v{S+2*j+1}")
            for x in pv(O, P, 0): a(x)
        a(f"""
        s_add_u32 s{S_T2}, s{S_T2}, 4096
        s_add_u32 s{S_IT}, s{S_IT}, 1
        s_cmp_lt_u32 s{S_IT}, 64
        """)
        a.fence()
        a(f"s_cbranch_scc1 {name}_sloop")
        a(f"s_branch {name}_aepi")
        a.hists = [[]]
        a.label(f"{name}_astub")
        for it in (2, 4, 6, 7):
            a(f"s_cmp_eq_u32 s{S_IT}, {it}")
            a(f"s_cbranch_scc1 {name}_astub{it}")
        a("s_waitcnt vmcnt(0)")
        s.signal(F_ST, 10, 11)
        a("s_nop 3")
        a(f"s_branch {name}_acont")
        a.label(f"{name}_astub2")
        s.poll(F_C2, 10, 11, "ap2", 1)
        a(f"s_branch {name}_acont")
        a.label(f"{name}_astub4")
        s.poll(F_C3, 10, 11, "ap3", 1)
        a(f"s_branch {name}_acont")
        a.label(f"{name}_astub6")
        s.signal(F_REL, 10, 11)
        a("s_nop 3")
        a(f"s_branch {name}_acont")
        a.label(f"{name}_astub7")
        if opts.get('hold'): s.signal(F_RD1, 10, 11)
        s.poll(F_SEEN2, 10, 11, "ap7", 1, n=1)
        a(f"""
        v_and_b32 v11, 7, v0
        v_bfe_u32 v12, v0, 3, 1
        v_lshl_add_u32 v11, v12, 4, v11
        v_bfe_u32 v12, v0, 4, 1
        v_lshl_add_u32 v11, v12, 3, v11
        v_lshlrev_b32 v12, 2, v11
        s_lshl_b32 s{S_T1}, s{s.S_QT}, 7
        s_add_u32 s{S_T1}, s{S_T1}, {GB}
        buffer_load_dword v{GA}, v12, {sr(R_WS,4)}, s{S_T1} offen sc1
        buffer_load_dword v{GBr}, v12, {sr(R_WS,4)}, s{S_T1} offen offset:128 sc1
        v_cmp_gt_u32 vcc, 32, v0
        v_mov_b32 v13, {OOB}
        v_cndmask_b32 v{V_STX}, v13, v12, vcc
        v_lshlrev_b32 v12, 4, v11
        v_lshl_add_u32 v{V_ST}, v9, 9, v12
        s_branch {name}_acont
        """)
        a.hists = [[]]

    def gemm(self):
        a, s, name, opts, stamp = self.a, self, self.name, self.opts, self.stamp
        R_WS, R_OUT, S_W, S_XCD, S_LOC, S_H, S_QB = s.R_WS, s.R_OUT, s.S_W, s.S_XCD, s.S_LOC, s.S_H, s.S_QB
        S_T0, S_T1, S_T2, S_T3, S_IT, S_KVO, S_HO, S_WO, S_M0 = s.S_T0, s.S_T1, s.S_T2, s.S_T3, s.S_IT, s.S_KVO, s.S_HO, s.S_WO, s.S_M0
        S_KH, S_OA, S_OB, S_MSK, S_HB0, S_WB0 = s.S_KH, s.S_OA, s.S_OB, s.S_MSK, s.S_HB0, s.S_WB0
        ACC32 = lambda q, h: 4 + q*36 + h*16
        ACC16 = lambda q: 4 + q*36 + 32
        BUF = lambda b: 148 + (b % 3)*28
        V_W8 = 2; V_H = 232; TM = 244
        if stamp.on:
            a(f"v_mov_b32 v255, v{stamp.v}")
            stamp.v = 255
        s.signal(F_WDONE, TM, TM+1)
        a(f"""
        v_lshlrev_b32 v1, 4, v0
        s_and_b32 s{S_KH}, s{S_XCD}, 1
        s_mul_i32 s{S_IT}, s{S_KH}, 144
        s_mul_i32 s{S_T1}, s{S_T3}, 36
        s_add_u32 s{S_IT}, s{S_IT}, s{S_T1}
        s_lshr_b32 s{S_T1}, s{S_XCD}, 1
        s_lshl_b32 s{S_T1}, s{S_T1}, 2
        s_lshr_b32 s{S_T2}, s{S_LOC}, 3
        s_add_u32 s{S_QB}, s{S_T1}, s{S_T2}
        s_and_b32 s{S_H}, s{S_LOC}, 7
        s_mul_i32 s{S_HB0}, s{S_QB}, 288
        s_add_u32 s{S_HB0}, s{S_HB0}, s{S_IT}
        s_lshl_b32 s{S_HB0}, s{S_HB0}, 12
        s_mul_i32 s{S_WB0}, s{S_H}, 288
        s_add_u32 s{S_WB0}, s{S_WB0}, s{S_IT}
        s_mul_i32 s{S_WB0}, s{S_WB0}, 2304
        s_add_u32 s{S_WB0}, s{S_WB0}, {WDP}
        s_lshl_b32 s{S_T1}, s{S_T3}, 12
        s_add_u32 s{S_KVO}, s{S_KVO}, s{S_T1}
        v_mov_b32 v236, v{s.V_P}
        v_mov_b32 v237, v{s.V_P+1}
        v_mov_b32 v238, v{s.V_P+2}
        v_bfe_u32 v{V_W8}, v0, 3, 1
        v_bfe_u32 v3, v0, 4, 1
        v_cmp_eq_u32 vcc, v{V_W8}, v3
        v_lshrrev_b32 v3, 5, v0
        v_lshlrev_b32 v3, 7, v3
        v_and_b32 v{V_W8}, 7, v0
        v_lshl_add_u32 v3, v{V_W8}, 4, v3
        v_mov_b32 v{V_W8}, {OOB}
        v_cndmask_b32 v{V_W8}, v{V_W8}, v3, vcc
        v_mov_b32 v{TM+2}, 0
        """)
        a(f"s_lshl_b32 s{S_T1}, s{S_KH}, 11")
        a(f"v_add_u32 v{V_H}, s{S_T1}, v1")
        a(f"v_xor_b32 v{V_H+1}, 2048, v{V_H}")
        a.wait_vm(s.probe_id['B'])
        a(f"v_cmp_ne_u32 vcc, s{s.S_TAG}, v113")
        GM = 0x7ff if opts.get('split31') else 0xfff
        NE = 24 if opts.get('split31') else 20
        a(f"s_and_b32 vcc_lo, vcc_lo, {GM}")
        a(f"s_cbranch_scc0 {name}_gc1ok")
        m = a.skip_begin(); vm0 = dict(a.vmr)
        s.gpoll("gc1", R_WS, 112, f"s{s.S_GOA}", 1, GM, TM+1, imm=128, sleep=16 if opts.get('split31') else 4)
        a.vmr = vm0
        a.skip_end(m)
        a.label(f"{name}_gc1ok")
        order = [4*l + i for l in ((0, 3, 6, 1, 4, 7, 2, 5, 8) if opts.get('split31') else (0, 2, 4, 6, 8, 1, 3, 5, 7)) for i in range(4)]
        ld_id = {}
        def pre(k):
            a(f"s_add_u32 s{S_HO}, s{S_HB0}, {order[k]*4096}")
            a(f"s_add_u32 s{S_WO}, s{S_WB0}, {order[k]*2304}")
        def ldH(k, q): a(f"buffer_load_dwordx4 {vr(BUF(k)+4*q,4)}, v{V_H+(q>>1)}, {sr(R_WS,4)}, s{S_HO} offen offset:{(q&1)*1024} sc1")
        def ldW(k):
            a(f"buffer_load_dwordx4 {vr(BUF(k)+16,4)}, v1, {sr(R_WS,4)}, s{S_WO} offen sc1")
            a(f"buffer_load_dwordx4 {vr(BUF(k)+20,4)}, v1, {sr(R_WS,4)}, s{S_WO} offen offset:1024 sc1")
            ld_id[k] = a.emit(f"buffer_load_dwordx4 {vr(BUF(k)+24,4)}, v{V_W8}, {sr(R_WS,4)}, s{S_WO} offen offset:2048 sc1")
        for k in range(3):
            pre(k)
            for q in range(4): ldH(k, q)
            ldW(k)
        stamp('g0')
        NC2, NC3 = 4, 7
        kvn = [0]; kv_id = {}
        def kvdma(n):
            if kvn[0] >= NC2 + NC3: return
            a("s_mov_b32 exec_hi, 0xffff")
            for _ in range(n):
                if kvn[0] >= NC2 + NC3: break
                t = 4*(s.NFIRST + kvn[0])
                kvn[0] += 1
                kv_id[kvn[0]] = s.kv_tile(236, S_KVO, S_M0, t)
            a("s_mov_b32 exec_hi, -1")
        sig = {F_C2: False, F_C3: False}
        KA = opts.get('ka', 5)
        WB = lambda k: 148 + 12*(k % 7)
        OB_ = lambda k: 76 + 8*k
        wid = {}; oid = {}
        def ldO(k):
            if k < 8:
                a(f"s_add_u32 s{S_T1}, s{S_OA}, {k*2304}")
                a(f"buffer_load_dwordx4 {vr(OB_(k),4)}, v1, {sr(R_WS,4)}, s{S_T1} offen sc1")
                return a.emit(f"buffer_load_dwordx4 {vr(OB_(k)+4,4)}, v1, {sr(R_WS,4)}, s{S_T1} offen offset:1152 sc1")
            for i in range(4):
                a(f"s_add_u32 s{S_T1}, s{S_OA}, {i*2304}")
                a(f"buffer_load_dword v{OB_(8)+i}, v{TM+6}, {sr(R_WS,4)}, s{S_T1} offen offset:1024 sc1")
                r = a.emit(f"buffer_load_dword v{OB_(8)+4+i}, v{TM+6}, {sr(R_WS,4)}, s{S_T1} offen offset:{1152+1024} sc1")
            return r
        GR = 236
        def ldWo(k):
            if k < 8: a(f"s_add_u32 s{S_WO}, s{S_KVO}, {k*2304}")
            else: a(f"s_mov_b32 s{S_WO}, s{S_M0}")
            a(f"buffer_load_dwordx4 {vr(WB(k),4)}, v1, {sr(R_WS,4)}, s{S_WO} offen sc1")
            a(f"buffer_load_dwordx4 {vr(WB(k)+4,4)}, v1, {sr(R_WS,4)}, s{S_WO} offen offset:1024 sc1")
            return a.emit(f"buffer_load_dwordx4 {vr(WB(k)+8,4)}, v{V_W8}, {sr(R_WS,4)}, s{S_WO} offen offset:2048 sc1")
        for k in range(36):
            a.wait_vm(ld_id[k])
            if k == 0:
                s.signal(F_ST, TM, TM+1)
            if k == 1:
                s.poll(F_WDONE, TM, TM+1, "gwd", 1, n=8)
                s.poll(F_C1, TM, TM+1, "gq1", 1, n=1)
                s.consts(239, 20, 44)
            hp = opts.get('gprio', '0')
            if hp[k % len(hp)] != hp[(k - 1) % len(hp)] or k == 0: a(f"s_setprio {2 if hp[k % len(hp)] == '1' else 0}")
            for fl, last in ((F_C2, NC2), (F_C3, NC2 + NC3)):
                if not sig[fl] and last in kv_id and kv_id[last]['B'] <= ld_id[k]['B']:
                    s.signal(fl, TM, TM+1); sig[fl] = True
            if k == opts.get('hold'): s.poll(F_RD1, TM, TM+1, "ghold", 4)
            if k == KA or k == KA + 3:
                a(f"s_cmp_lg_u32 s{S_W}, 4")
                a(f"s_cbranch_scc1 {name}_c2s{k}")
                m = a.skip_begin(); vm0 = dict(a.vmr)
                if k == KA:
                    s.poll(F_ST, TM, TM+1, "gst", 2, n=8)
                    s.arrive(1, TM, TM+10)
                else:
                    s.broadcast_if_last(1, TM, TM+10, f"{name}_c2s{k}", wait=False)
                a.vmr = vm0
                a.skip_end(m)
                a.label(f"{name}_c2s{k}")
            if k + 6 == NE:
                a(f"buffer_load_dword v{TM+9}, v{TM+2}, {sr(R_WS,4)}, s{s.S_GOA} offen offset:4 sc1")
            if k + 3 == NE:
                a(f"v_cmp_ne_u32 vcc, s{s.S_TAG}, v{TM+9}")
                a(f"s_cbranch_vccz {name}_c2ok")
                m = a.skip_begin(); vm0 = dict(a.vmr)
                s.gpoll("c2", s.R_WS, TM+2, f"s{s.S_GOA}", 1, 1, TM+1, imm=4)
                a.vmr = vm0
                a.skip_end(m)
                a.label(f"{name}_c2ok")
                s.signal(F_SEEN2, TM, TM+1)
                assert kvn[0] == NC2 + NC3
                a(f"""
                s_lshl_b32 s{S_IT}, s{S_QB}, 1
                s_add_u32 s{S_IT}, s{S_IT}, s{S_KH}
                s_lshl_b32 s{S_T0}, s{S_IT}, 8
                s_add_u32 s{S_T0}, s{S_T0}, {GB}
                s_lshr_b32 s{S_T2}, s{S_T3}, 1
                s_lshl_b32 s{S_T1}, s{S_T2}, 7
                s_add_u32 s{S_T1}, s{S_T1}, s{S_T0}
                v_and_b32 v{TM+3}, 31, v0
                v_lshlrev_b32 v{TM+3}, 2, v{TM+3}
                v_and_b32 v{TM+4}, 15, v0
                v_lshrrev_b32 v{TM+5}, 5, v0
                v_lshl_add_u32 v{TM+4}, v{TM+5}, 4, v{TM+4}
                v_lshlrev_b32 v{TM+4}, 2, v{TM+4}
                buffer_load_dword v{GR+4}, v{TM+3}, {sr(R_WS,4)}, s{S_T1} offen sc1
                buffer_load_dword v{GR+5}, v{TM+4}, {sr(R_WS,4)}, s{S_T1} offen sc1
                """)
            if k == 28:
                for i in (4, 5): a(f"v_add_f32 v{GR+i}, 1.0, v{GR+i}")
                for i in (4, 5): a(f"v_rcp_f32 v{GR+i}, v{GR+i}")
                a(f"""
                v_and_b32 v{TM+10}, 7, v0
                v_mul_u32_u24 v{TM+10}, 2304, v{TM+10}
                v_mul_u32_u24 v{TM+6}, {4*2304}, v{TM+5}
                v_add_u32 v{TM+6}, v{TM+6}, v{TM+3}
                v_mul_u32_u24 v{TM+7}, 288, v{TM+3}
                v_lshl_add_u32 v{TM+7}, v{TM+5}, 5, v{TM+7}
                v_mul_u32_u24 v{TM+8}, 288, v{TM+4}
                v_bfe_u32 v{TM+9}, v0, 4, 1
                v_lshl_add_u32 v{TM+8}, v{TM+9}, 3, v{TM+8}
                s_mul_i32 s{S_T0}, s{S_T3}, 18432
                v_add_u32 v{TM+3}, s{S_T0}, v1
                s_lshr_b32 s{S_T1}, s{S_T3}, 1
                s_mul_i32 s{S_T0}, s{S_T1}, 9216
                s_add_u32 s{S_T0}, s{S_T0}, 73728
                v_add_u32 v{TM+4}, s{S_T0}, v1
                s_and_b32 s{S_T2}, s{S_T3}, 1
                s_lshl_b32 s{S_T0}, s{S_T2}, 12
                v_add_u32 v{TM+5}, s{S_T0}, v{TM+4}
                s_lshl_b32 s{S_T0}, s{S_T3}, 3
                s_lshl_b32 s{S_OA}, s{S_IT}, 5
                s_add_u32 s{S_OA}, s{S_OA}, s{S_T0}
                s_mul_i32 s{S_OA}, s{S_OA}, 2304
                s_add_u32 s{S_OA}, s{S_OA}, {OF}
                s_mul_i32 s{S_KVO}, s{S_H}, 36
                s_add_u32 s{S_M0}, s{S_KVO}, s{S_T3}
                s_mul_i32 s{S_M0}, s{S_M0}, 2304
                s_add_u32 s{S_M0}, s{S_M0}, {WOP + 32*2304}
                s_add_u32 s{S_KVO}, s{S_KVO}, s{S_T0}
                s_mul_i32 s{S_KVO}, s{S_KVO}, 2304
                s_add_u32 s{S_KVO}, s{S_KVO}, {WOP}
                s_lshl_b32 s{S_T0}, s{S_IT}, 1
                s_add_u32 s{S_T0}, s{S_T0}, s{S_T1}
                s_mul_i32 s{S_OB}, s{S_T0}, {32*1152}
                s_mul_i32 s{S_T0}, s{S_H}, 144
                s_add_u32 s{S_OB}, s{S_OB}, s{S_T0}
                s_lshl_b32 s{S_T0}, s{S_T2}, 6
                s_add_u32 s{S_MSK}, s{S_OB}, s{S_T0}
                s_lshl_b32 s{S_LOC}, s2, 2
                s_add_u32 s{S_LOC}, s{S_LOC}, s{S_T3}
                s_xor_b32 s{S_T0}, s{S_LOC}, 4
                s_lshl_b32 s{s.S_QT}, s{S_T0}, 5
                s_add_u32 s{s.S_QT}, s{s.S_QT}, {PFL}
                s_mul_i32 s{S_LOC}, s{S_T0}, 5120
                s_add_u32 s{S_LOC}, s{S_LOC}, {BP}
                """)
            if stamp.on and opts.get('itstamp', True) and k % 3 == 0: stamp('', 40 + k // 3)
            if k + 3 < 36: pre(k + 3)
            for q in ((2, 3, 0, 1) if k == 35 else range(4)):
                h = vr(BUF(k)+4*q, 4)
                c = (lambda x: "0") if k == 0 else (lambda x: x)
                if k == 35 and q == 0: s.poll(F_REL, TM, TM+1, "gw1", 8)
                if k == 35 and q == 1:
                    for i in range(9): a(f"ds_write_b128 v{TM+3}, {vr(76+4*i,4)} offset:{i*1024}")
                a(f"v_mfma_f32_32x32x16_bf16 {vr(ACC32(q,0),16)}, {vr(BUF(k)+16,4)}, {h}, {c(vr(ACC32(q,0),16))}")
                a(f"v_mfma_f32_32x32x16_bf16 {vr(ACC32(q,1),16)}, {vr(BUF(k)+20,4)}, {h}, {c(vr(ACC32(q,1),16))}")
                a(f"v_mfma_f32_16x16x32_bf16 {vr(ACC16(q),4)}, {vr(BUF(k)+24,4)}, {h}, {c(vr(ACC16(q),4))}")
                if k + 3 < 36: ldH(k + 3, q)
            if k >= 1: kvdma(2 if k < 3 else 1)
            if k + 3 < 36: ldW(k + 3)
            elif k < 35:
                j = k - 33
                for jj in (2*j, 2*j+1): wid[jj] = ldWo(jj)
        assert sig[F_C2] and sig[F_C3]
        a(f"s_setprio {opts.get('redprio', 2)}")
        stamp('loop')
        for i in range(9, 18):
            a(f"ds_write_b128 v{TM+3}, {vr(76+4*i,4)} offset:{i*1024}")
        s.signal(F_RED, TM, TM+1)
        if opts.get('gate', 1):
            for j in range(4, 7): wid[j] = ldWo(j)
            a("s_setprio 0")
            s.poll(F_ATT, TM, TM+1, "gw6", 2)
            if opts.get('gate', 1) == 2:
                a(f"s_mov_b32 s{s.S_SP}, 0")
                a.label(f"{name}_og")
                a(f"""
                buffer_load_dword v{TM}, v{TM+10}, {sr(R_WS,4)}, s{S_OA} offen offset:{1152+1024} sc1
                s_add_u32 s{s.S_SP}, s{s.S_SP}, 1
                s_waitcnt vmcnt(0)
                v_cmp_eq_u32 vcc, -1, v{TM}
                s_and_b32 vcc_lo, vcc_lo, 0xff
                s_cbranch_scc0 {name}_ogd
                s_cmp_ge_u32 s{s.S_SP}, 0x8000
                s_cbranch_scc1 {name}_ogd
                s_sleep 2
                s_branch {name}_og
                """)
                a.label(f"{name}_ogd")
            a("s_setprio 2")
            for j in range(9): oid[j] = ldO(j)
        else:
            a("s_waitcnt lgkmcnt(10)")
            for j in range(4): oid[j] = ldO(j)
            a("s_waitcnt lgkmcnt(0)")
            for j in range(4, 7):
                wid[j] = ldWo(j); oid[j] = ldO(j)
            for j in (7, 8): oid[j] = ldO(j)
        a(f"v_add_u32 v{TM+3}, 73728, v{TM+3}")
        gather = lambda R, base: s.gather(R, TM+4, TM+5)
        stamp('red')
        a(f"s_mov_b32 s{s.S_SP}, 0")
        PB = WB(2)
        for k in range(9):
            a.wait_vm({r: max(oid[k][r], wid[k][r]) for r in oid[k]})
            a.label(f"{name}_ock{k}")
            o = OB_(k)
            a(f"v_max3_u32 v{TM}, v{o}, v{o+1}, v{o+2}")
            a(f"v_max3_u32 v{TM+1}, v{o+3}, v{o+4}, v{o+5}")
            a(f"v_max3_u32 v{TM}, v{TM}, v{o+6}, v{o+7}")
            a(f"v_max_u32 v{TM}, v{TM}, v{TM+1}")
            a(f"v_cmp_eq_u32 vcc, -1, v{TM}")
            a(f"s_cbranch_vccnz {name}_ort{k}")
            a.label(f"{name}_ogo{k}")
            for q in range(2):
                ov = vr(o+4*q, 4)
                a(f"v_mfma_f32_32x32x16_bf16 {vr(ACC32(q,0),16)}, {vr(WB(k),4)}, {ov}, {vr(ACC32(q,0),16)}")
                a(f"v_mfma_f32_32x32x16_bf16 {vr(ACC32(q,1),16)}, {vr(WB(k)+4,4)}, {ov}, {vr(ACC32(q,1),16)}")
                a(f"v_mfma_f32_16x16x32_bf16 {vr(ACC16(q),4)}, {vr(WB(k)+8,4)}, {ov}, {vr(ACC16(q),4)}")
            if k < 2: wid[7+k] = ldWo(7+k)
            if k == 6: pf_id = a.emit(f"buffer_load_dword v{TM+9}, v{TM+2}, {sr(R_WS,4)}, s{s.S_QT} offen sc1")
        stamp('omfma')
        def fetch_partner(tag):
            a(f"""
            v_cmp_ne_u32 vcc, s{s.S_TAG}, v{TM+9}
            s_cbranch_vccz {name}_{tag}
            """)
            m = a.skip_begin()
            s.gpoll("pp", R_WS, TM+2, f"s{s.S_QT}", 1, 1, TM+9, sleep=1)
            a.skip_end(m)
            a.label(f"{name}_{tag}")
            for i in range(4):
                a(f"buffer_load_dwordx4 {vr(PB+4*i,4)}, v1, {sr(R_WS,4)}, s{S_LOC} offen offset:{i*1024} sc1")
            a(f"s_add_u32 s{S_T1}, s{S_LOC}, 4096")
            a(f"buffer_load_dwordx4 {vr(PB+16,4)}, v1, {sr(R_WS,4)}, s{S_T1} offen sc1")
        if not opts.get('gate', 1): s.poll(F_ATT, TM, TM+1, "gw6", 1)
        for i in range(18):
            a(f"ds_write_b128 v{TM+3}, {vr(4+4*i,4)} offset:{i*1024}")
        s.signal(F_DUMP, TM, TM+1)
        a("s_waitcnt vmcnt(0)")
        fetch_partner("ppok")
        s.poll(F_DUMP, TM, TM+1, "gw5", 0)
        stamp('dump')
        gather(4, 73728)
        a("s_waitcnt vmcnt(0)")
        for i in range(20): a(f"v_add_f32 v{4+i}, v{4+i}, v{PB+i}")
        for i in range(20): a(f"v_mul_f32 v{4+i}, v{4+i}, v{GR+4+(i >= 16)}")
        for j in range(10): a(f"v_cvt_pk_bf16_f32 v{88+j}, v{4+2*j}, v{4+2*j+1}")
        a(f"buffer_store_dwordx4 v[88:91], v{TM+7}, {sr(R_OUT,4)}, s{S_MSK} offen ;plain")
        a(f"buffer_store_dwordx4 v[92:95], v{TM+7}, {sr(R_OUT,4)}, s{S_MSK} offen offset:16 ;plain")
        a(f"s_bitcmp1_b32 s{S_T3}, 0")
        a(f"s_cbranch_scc1 {name}_fin2")
        a(f"buffer_store_dwordx2 v[96:97], v{TM+8}, {sr(R_OUT,4)}, s{S_OB} offen offset:128 ;plain")
        a.label(f"{name}_fin2")
        if stamp.on:
            a("s_waitcnt vmcnt(0)")
            stamp('end')
            stamp.out(9)
        a("s_endpgm")
        a.hists = [[]]
        for k in range(9):
            a.label(f"{name}_ort{k}")
            direct = k >= opts.get('odirect', 9)
            a(f"""
            s_setprio 0
            s_sleep {opts.get('osleep', 4)}
            """)
            if not direct: a(f"buffer_load_dword v{TM}, v{TM+10}, {sr(R_WS,4)}, s{S_OA} offen offset:{1152+1024} sc1")
            a(f"""
            s_mov_b32 s{S_KH}, {k}
            s_add_u32 s{s.S_SP}, s{s.S_SP}, 1
            s_cmp_ge_u32 s{s.S_SP}, 0x8000
            s_cbranch_scc1 {name}_ogo{k}
            """)
            if not direct: a(f"""
            s_waitcnt vmcnt(0)
            v_cmp_eq_u32 vcc, -1, v{TM}
            s_and_b32 vcc_lo, vcc_lo, {(1 << k if k < 8 else 0xff) if not opts.get('oall') else (0xff << min(k, 8) if k < 8 else 0xff) & 0xff}
            s_cbranch_scc1 {name}_ort{k}
            """)
            a(f"s_branch {name}_orl{k}")
        for k in range(9):
            a.label(f"{name}_orl{k}")
            ldO(k)
        a.label(f"{name}_orlend")
        a(f"s_setprio {opts.get('redprio', 2)}")
        a("s_waitcnt vmcnt(0)")
        for k in range(8):
            a(f"s_cmp_eq_u32 s{S_KH}, {k}")
            a(f"s_cbranch_scc1 {name}_ock{k}")
        a(f"s_branch {name}_ock8")
        a.hists = [[]]
```

```python
import sys
import p1, p1b
HEADER = open('gated_mix__softmax_full_mha__geglu_ffn__prompt.s.ref').read().split('; Override')[0]

DOC = '''; ---------------------------------------------------------------------------------------------------------------
; ---------------------------------------------------------------------------------------------------------------
'''

def assemble(kernels):
    out = [HEADER.rstrip('\n')]
    for name, a, kd, l in kernels:
        out.append(f"; @launch kernel={name} grid=({l['grid']},1,1) block=({l['block']},1,1) lds={l['lds']}")
    out.append(DOC.rstrip('\n'))
    out.append('.amdgcn_target "amdgcn-amd-amdhsa--gfx950"')
    out.append('.text')
    for name, a, kd, l in kernels:
        out.append(a.text())
    out.append('all_code_end:')
    out.append('  s_endpgm')
    out.append('.section .rodata,"a"')
    for name, a, kd, l in kernels:
        out.append('.p2align 6')
        out.append(kd.strip())
    return '\n'.join(out) + '\n'

KN = "gated_mix__softmax_full_mha__geglu_ffn__prompt_kernel"
def build(opts=None, stamp=False):
    opts = dict(opts or {}); opts['stamp'] = stamp
    a, kd, l = (p1b if opts.get('split31') else p1).gen(KN, opts)
    a.lines = [x + ' sc1' if (x.strip().startswith('buffer_store') and ';plain' not in x) else x for x in a.lines]
    txt = assemble([(KN, a, kd, l)])
    if not opts.get('aslist'):
        txt = txt.replace(f"; @launch kernel={KN} grid", "; @launch grid")
    if stamp:
        txt = "; stamps " + ",".join(a.stamps) + "\n" + txt
    return txt, a

if __name__ == "__main__":
    txt, a = build()
    print("instrs", a.count, "nops", a.nops)
    open('gated_mix__softmax_full_mha__geglu_ffn__prompt.s', 'w').write(txt)
    txt, a = build(dict(aslist=True))
    open('full.s', 'w').write(txt)
    keep = ['start', 'bar0', 'S8', 'S11', 'S12', 'S13', 'M14', 'p1end']
    txt, a = build(dict(aslist=True, keep1=keep), stamp=True)
    open('fullstamp.s', 'w').write(txt)
```
